```python
import torch

def _softmax(x, axis=-1):
    return torch.softmax(x, dim=axis)
def _gelu(x):
    return torch.nn.functional.gelu(x, approximate="tanh")
def _silu(x):
    return torch.nn.functional.silu(x)
def _sigmoid(x):
    return torch.sigmoid(x)
def _layernorm(x, axis=-1, eps=1e-5):
    m = x.mean(dim=axis, keepdim=True)
    v = x.var(dim=axis, keepdim=True, unbiased=False)
    return (x - m) / torch.sqrt(v + eps)
def _scatter_add(tgt, idx, src, axis=0):
    return tgt.clone().index_add_(axis, idx, src)
def _segment_sum(src, seg, n):
    out = torch.zeros((n,) + src.shape[1:], dtype=src.dtype)
    return out.index_add_(0, seg, src)
def _pad(x, pw):
    flat = tuple(v for pair in reversed(pw) for v in pair)
    return torch.nn.functional.pad(x, flat)

kernel_name = 'gated_mix__ssm_conv_s4__spectral_gfnet__prompt'

def setup_inputs():

    _w = (lambda a: (lambda t: t.to(torch.bfloat16) if t.is_floating_point() else t)(torch.as_tensor(a)))
    def _A_setup():
        B, L, D, N = 1, 2048, 512, 128
        A_re = -(lambda _x: torch.exp(torch.as_tensor(_x)))((lambda *s: torch.randn(*s, dtype=torch.bfloat16) * 3.2)(D, N))
        A_im = torch.pi * (lambda *s: torch.randn(*s, dtype=torch.bfloat16) * 0.05)(D, N)
        B_re = (lambda *s: torch.randn(*s, dtype=torch.bfloat16) * 0.1)(D, N)
        B_im = (lambda *s: torch.randn(*s, dtype=torch.bfloat16) * 0.1)(D, N)
        C_re = (lambda *s: torch.randn(*s, dtype=torch.bfloat16) * 0.1)(D, N)
        C_im = (lambda *s: torch.randn(*s, dtype=torch.bfloat16) * 0.1)(D, N)
        log_dt = (lambda *s: torch.randn(*s, dtype=torch.bfloat16) * 0.05)(D) * 0.5 - 4.0
        Dskip = (lambda *s: torch.randn(*s, dtype=torch.bfloat16) * 0.05)(D)
        return {
            "u": _w((lambda *s: torch.randn(*s, dtype=torch.bfloat16) * 0.05)(B, L, D)),
            "A_re": _w(A_re),
            "A_im": _w(A_im),
            "B_re": _w(B_re),
            "B_im": _w(B_im),
            "C_re": _w(C_re),
            "C_im": _w(C_im),
            "log_dt": _w(log_dt),
            "Dskip": _w(Dskip),
        }
    _A_in = _A_setup()

    def _B_setup():
        B, S, D = 1, 2048, 512
        Df = D // 2 + 1
        return {
            "x": _w((lambda *s: torch.randn(*s, dtype=torch.bfloat16) * 0.05)(B, S, D)),
            "w_r": _w((lambda *s: torch.randn(*s, dtype=torch.bfloat16) * 0.8)(S, Df) * 0.02),
            "w_i": _w((lambda *s: torch.randn(*s, dtype=torch.bfloat16) * 0.8)(S, Df) * 0.02),
        }
    _B_in = _B_setup()

    return {
        "A_u": _A_in["u"],
        "A_A_re": _A_in["A_re"],
        "A_A_im": _A_in["A_im"],
        "A_B_re": _A_in["B_re"],
        "A_B_im": _A_in["B_im"],
        "A_C_re": _A_in["C_re"],
        "A_C_im": _A_in["C_im"],
        "A_log_dt": _A_in["log_dt"],
        "A_Dskip": _A_in["Dskip"],
        "B_x": _B_in["x"],
        "B_w_r": _B_in["w_r"],
        "B_w_i": _B_in["w_i"],
        "gate_w": _w((lambda *s: torch.randn(*s, dtype=torch.bfloat16) * 0.05)(512) * 16.0),
    }

def reference(A_u, A_A_re, A_A_im, A_B_re, A_B_im, A_C_re, A_C_im, A_log_dt, A_Dskip, B_x, B_w_r, B_w_i, gate_w):
    def _A_ref(u, A_re, A_im, B_re, B_im, C_re, C_im, log_dt, Dskip):
        Bsz, L, D = u.shape
        dt = torch.exp(log_dt)[:, None]
        A = A_re + 1j * A_im
        Bc = B_re + 1j * B_im
        Cc = C_re + 1j * C_im
        logdA = dt * A
        dB = dt * Bc
        l = (lambda x, dt: x.to(dt))(torch.arange(L), A_re.dtype)
        P = torch.exp(logdA[:, :, None] * l[None, None, :])
        K = torch.einsum("dn,dnl,dn->dl", Cc, P, dB).real
        L2 = 2 * L
        Kp = _pad(K, ((0, 0), (0, L)))
        up = (lambda x, *d: x.permute(*d))(u, 0, 2, 1)
        up = _pad(up, ((0, 0), (0, 0), (0, L)))
        Kf = (lambda x, axes=(-2,-1): torch.fft.rfft2(x.float(), dim=axes))(Kp[:, None, :], axes=(-2, -1))
        Uf = (lambda x, axes=(-2,-1): torch.fft.rfft2(x.float(), dim=axes))(up[:, :, None, :], axes=(-2, -1))
        Yf = Uf * Kf[None, :, :, :]
        y = (lambda x, s, axes=(-2,-1): torch.fft.irfft2(x, s=s, dim=axes).to(torch.bfloat16))(Yf, (1, L2), axes=(-2, -1))[:, :, 0, :L]
        y = (lambda x, *d: x.permute(*d))(y, 0, 2, 1) + u * Dskip[None, None, :]
        return y

    def _B_ref(x, w_r, w_i):
        B, S, D = x.shape
        X = (lambda x, axes=(-2,-1): torch.fft.rfft2(x.float(), dim=axes))(x, axes=(-2, -1))
        W = w_r + 1j * w_i
        X = X * W
        y = (lambda x, s, axes=(-2,-1): torch.fft.irfft2(x, s=s, dim=axes).to(torch.bfloat16))(X, (S, D), axes=(-2, -1))
        return y

    x = A_u
    g = _sigmoid((x * gate_w).sum(-1, keepdims=True))
    a = _A_ref(x, A_A_re, A_A_im, A_B_re, A_B_im, A_C_re, A_C_im, A_log_dt, A_Dskip)
    b = _B_ref(x, B_w_r, B_w_i)
    return g * a + (1 - g) * b
```

```python
import re
NAME = "gated_mix__ssm_conv_s4__spectral_gfnet__prompt"
HEADER = open("cdna_kernels/" + NAME + ".s.ref").read().split("; Override launch")[0]

TRANS = ("v_exp_f32", "v_log_f32", "v_rcp_f32", "v_rsq_f32", "v_sqrt_f32", "v_sin_f32", "v_cos_f32")
REG_RE = re.compile(r"^-?(?:abs\()?([vsa])(\d+)\)?$|^-?([vsa])\[(\d+):(\d+)\]$")

def regs(op):
    op = op.strip()
    if op in ("vcc",): return {"vcc"}
    if op in ("exec",): return {"exec"}
    if op == "m0": return {"m0"}
    m = REG_RE.match(op)
    if not m: return set()
    if m.group(1): return {m.group(1) + m.group(2)}
    return {m.group(3) + str(i) for i in range(int(m.group(4)), int(m.group(5)) + 1)}

class Ins:
    def __init__(self, text):
        self.text = text
        t = text.split(";")[0].strip()
        self.label = t[:-1] if t.endswith(":") else None
        self.isins = bool(t) and self.label is None and not t.startswith(".")
        self.defs = set(); self.uses = set(); self.kind = None; self.states = 0
        self.srcC = set(); self.srcAB = set(); self.target = None; self.dpp = False
        if not self.isins: return
        parts = t.split(None, 1)
        mn = self.mn = parts[0]
        rest = parts[1] if len(parts) > 1 else ""
        ops = []; cur = ""; depth = 0
        for ch in rest:
            if ch == "[": depth += 1
            if ch == "]": depth -= 1
            if ch == "," and depth == 0: ops.append(cur.strip()); cur = ""
            else: cur += ch
        if cur.strip(): ops.append(cur.strip())
        mods = ""
        if ops:
            last = ops[-1].split(None, 1)
            ops[-1] = last[0]
            if len(last) > 1: mods = last[1]
        self.ops = ops; self.mods = mods
        self.states = 1
        R = [regs(o) for o in ops]
        allr = lambda l: set().union(*l) if l else set()
        if mn == "s_nop":
            self.kind = "nop"; self.states = int(ops[0], 0) + 1
        elif mn.startswith("v_mfma"):
            self.kind = "mfma"; self.defs = R[0]; self.srcAB = R[1] | R[2]; self.srcC = R[3]; self.uses = self.srcAB | self.srcC
            self.passes = 8 if "32x32" in mn else 4
        elif mn.startswith("v_"):
            self.kind = "valu"
            self.dpp = ("row_" in mods or "quad_perm" in mods or "wave_" in mods)
            self.trans = mn.replace("_e32", "").replace("_e64", "") in TRANS
            self.dot = mn.startswith("v_dot")
            if mn.startswith("v_swap") or mn.startswith("v_permlane"):
                self.defs = R[0] | R[1]; self.uses = R[0] | R[1]
            elif mn.startswith("v_cmp"):
                self.defs = R[0]; self.uses = allr(R[1:])
            elif mn.startswith(("v_add_co", "v_sub_co", "v_addc_co", "v_subb_co")):
                self.defs = R[0] | R[1]; self.uses = allr(R[2:])
            else:
                self.defs = R[0]; self.uses = allr(R[1:])
                if mn.startswith(("v_fmac", "v_dot2c", "v_writelane")) or self.dpp: self.uses |= R[0]
        elif mn.startswith("ds_"):
            self.kind = "ds"
            if mn.startswith("ds_read") or mn.startswith("ds_bpermute") or mn.startswith("ds_swizzle"):
                self.defs = R[0]; self.uses = allr(R[1:])
            else: self.uses = allr(R)
            if "addtid" in mn: self.uses |= {"m0"}
        elif mn.startswith(("buffer_", "global_")):
            self.kind = "vmem"
            lds = " lds" in (" " + mods) or "_lds_" in mn
            if "load" in mn and not lds:
                self.defs = R[0]; self.uses = allr(R[1:])
            else:
                self.uses = allr(R)
            if lds: self.uses |= {"m0"}
            self.wide = ("store" in mn) and ("x3" in mn or "x4" in mn)
            if self.wide:
                self.data = R[0] if mn.startswith("buffer_") else R[1]
        elif mn.startswith("s_"):
            self.kind = "salu"
            if mn.startswith(("s_cbranch", "s_branch")):
                self.target = ops[0]
            elif mn.startswith(("s_cmp", "s_waitcnt", "s_barrier", "s_endpgm", "s_setprio", "s_sleep", "s_bitcmp")):
                self.uses = allr(R)
            else:
                self.defs = R[0]; self.uses = allr(R[1:])
                if "saveexec" in mn: self.defs |= {"exec"}
        else:
            raise ValueError("unknown instr " + text)

def need(p, c):
    n = 0
    pv = {r for r in p.defs if r[0] in "va"}; ps = {r for r in p.defs if r[0] == "s" or r in ("vcc", "exec")}
    if p.kind == "valu":
        if c.kind == "mfma" and pv & c.uses: n = max(n, 2)
        if c.kind == "valu":
            if c.dpp and pv & c.uses: n = max(n, 2)
            if c.mn.startswith(("v_readlane", "v_readfirstlane")) and pv & c.uses: n = max(n, 1)
            if c.mn.startswith("v_permlane") and pv & c.uses: n = max(n, 2)
            if p.trans and pv & c.uses: n = max(n, 1)
            if ps & c.uses:
                n = max(n, 4 if c.mn.startswith(("v_readlane", "v_writelane")) else 2)
            if p.dot and (pv & (c.uses | c.defs)):
                if c.mn == p.mn and not (pv & (regs(c.ops[1]) | regs(c.ops[2]))): pass
                else: n = max(n, 3)
            if "exec" in p.defs and c.dpp: n = max(n, 5)
        if p.dot and c.kind in ("mfma", "ds", "vmem") and pv & c.uses: n = max(n, 3)
        if c.kind == "vmem" and ps & c.uses: n = max(n, 5)
        if c.kind == "mfma" and "exec" in p.defs: n = max(n, 4)
        if c.kind == "salu" and ps & c.uses: n = max(n, 1)
    if p.kind == "salu":
        if "m0" in p.defs and "m0" in c.uses and c.kind in ("ds", "vmem"): n = max(n, 1)
    if p.kind == "mfma":
        k = {4: (6, 8, 3), 8: (10, 12, 7)}[p.passes]
        if c.kind == "mfma":
            if p.defs & c.srcAB: n = max(n, k[1])
            if p.defs & c.srcC and not (p.defs == c.srcC and p.passes == c.passes): n = max(n, k[0])
            if p.defs & c.defs and not (p.defs == c.srcC): n = max(n, k[1])
        elif c.kind in ("valu", "ds", "vmem"):
            if p.defs & (c.uses | c.defs): n = max(n, k[1])
            if c.kind == "valu" and p.srcC & c.defs: n = max(n, k[2])
    if p.kind == "vmem" and getattr(p, "wide", False):
        if p.data & c.defs: n = max(n, 2 if c.kind == "valu" else 1)
    return n

WINDOW = 14
def fix_hazards(lines):
    ins = [Ins(l) for l in lines]
    changed = True; total = 0
    while changed:
        changed = False
        labels = {x.label: i for i, x in enumerate(ins) if x.label}
        def check(hist, j):
            c = ins[j]; dist = 0; pad = 0
            for p in reversed(hist):
                if dist >= WINDOW: break
                if p.kind != "nop":
                    pad = max(pad, need(p, c) - dist)
                dist += p.states
            return pad
        hist = []
        for j, c in enumerate(ins):
            if not c.isins: continue
            pad = check(hist, j)
            if pad > 0:
                ins.insert(j, Ins(f"s_nop {pad-1}")); total += 1; changed = True; break
            hist.append(c)
            if c.mn in ("s_branch", "s_endpgm"): hist = []
        if changed: continue
        hist = []
        for j, c in enumerate(ins):
            if not c.isins: continue
            hist.append(c)
            if c.target is not None and c.target in labels:
                h2 = list(hist[-WINDOW:]); k = labels[c.target]; seen = 0
                while k < len(ins) and seen < WINDOW:
                    d = ins[k]
                    if d.isins:
                        pad = check(h2, k)
                        if pad > 0:
                            ins.insert(k, Ins(f"s_nop {pad-1}")); total += 1; changed = True; break
                        h2.append(d); seen += d.states
                        if d.mn in ("s_branch", "s_endpgm"): break
                    k += 1
                if changed: break
            if c.mn in ("s_branch", "s_endpgm"): hist = []
    return [x.text for x in ins], total

class Asm:
    def __init__(self): self.lines = []
    def __call__(self, s=""):
        for l in s.split("\n"):
            l = l.strip()
            if l: self.lines.append(l)
    def finish(self):
        out, n = fix_hazards(self.lines)
        return "\n".join(("" if (l.endswith(":") or l.startswith(".")) else "    ") + l for l in out) + "\n", n

def kernel_begin(label):
    return f".globl {label}\n.p2align 8\n.type {label},@function\n{label}:\n"

def descriptor(label, vgpr, sgpr=102):
    accum = (vgpr + 3) // 4 * 4
    return f""".amdhsa_kernel {label}
  .amdhsa_next_free_vgpr {vgpr}
  .amdhsa_next_free_sgpr {sgpr}
  .amdhsa_accum_offset {accum}
  .amdhsa_group_segment_fixed_size 0
  .amdhsa_kernarg_size 128
  .amdhsa_user_sgpr_count 2
  .amdhsa_user_sgpr_kernarg_segment_ptr 1
  .amdhsa_system_sgpr_workgroup_id_x 1
.end_amdhsa_kernel
"""
def table_text(label, arr, align=7):
    import numpy as np
    w = np.asarray(arr, dtype=np.uint32).reshape(-1)
    s = f".p2align {align}\n{label}:\n"
    for i in range(0, len(w), 8):
        s += ".long " + ",".join(f"0x{x:x}" for x in w[i:i+8]) + "\n"
    return s
def make_file(launches, text, descs):
    s = HEADER
    for (label, grid, block, lds) in launches:
        s += f"; @launch kernel={label} grid=({grid},1,1) block=({block},1,1) lds={lds}\n"
    s += '.amdgcn_target "amdgcn-amd-amdhsa--gfx950"\n.text\n' + text
    s += '.section .rodata,"a"\n'
    for d in descs: s += ".p2align 6\n" + d
    return s
```

```python
import numpy as np

def bf16_bits(x):
    x = np.asarray(x, dtype=np.float32)
    u = np.atleast_1d(x).view(np.uint32).astype(np.int64)
    r = ((u + 0x7FFF + ((u >> 16) & 1)) >> 16) & 0xFFFF
    return r.astype(np.uint32).reshape(x.shape)
def bf16_round(x):
    b = bf16_bits(x)
    return (np.atleast_1d(b) << np.uint32(16)).astype(np.uint32).view(np.float32).reshape(b.shape)
def bits_to_f32(b):
    return (np.asarray(b, dtype=np.uint32) << 16).astype(np.uint32).view(np.float32)
def pack8(vals):
    b = bf16_bits(vals)
    return (b[:, 0::2] | (b[:, 1::2] << 16)).astype(np.uint32)
def f32w(vals):
    return np.asarray(vals, dtype=np.float32).view(np.uint32)

lane = np.arange(64)
LN = lane & 15
LG = lane >> 4
TWO_PI = 2 * np.pi

def d1_of_slot(g, j):
    return 4 * g + j if j < 4 else 16 + 4 * g + (j - 4)
def jrow(j):
    gp, r = j >> 2, j & 3
    return 4 * (gp >> 1) + r, bool(gp & 1)
def kcol(k1, j):
    q, mir = jrow(j)
    if not mir: return k1 + 32 * q
    return (32 - k1 if k1 else 16) + 32 * q

def p1_tables():
    Bre = np.zeros((64, 8)); Bim = np.zeros((64, 8))
    Are = np.zeros((64, 8)); Aim = np.zeros((64, 8)); Sre = np.zeros((64, 8)); Sim = np.zeros((64, 8))
    Tc = np.zeros((64, 4)); Ts = np.zeros((64, 4))
    for l in range(64):
        n, g = l & 15, l >> 4
        for j in range(8):
            d1 = d1_of_slot(g, j)
            Bre[l, j] = np.cos(TWO_PI * d1 * n / 32)
            Bim[l, j] = (-1.0) ** d1 if n == 0 else -np.sin(TWO_PI * d1 * n / 32)
        for r in range(4):
            d0 = 4 * g + r
            Tc[l, r] = np.cos(TWO_PI * d0 * n / 512); Ts[l, r] = np.sin(TWO_PI * d0 * n / 512)
            q, mir = jrow(n)
            k0 = 15 - q if mir else q
            al = TWO_PI * d0 * k0 / 16
            sg = -1.0 if mir else 1.0
            Are[l, 2*r] = np.cos(al); Are[l, 2*r+1] = np.sin(al)
            Aim[l, 2*r] = -sg * np.sin(al); Aim[l, 2*r+1] = sg * np.cos(al)
            if not mir:
                a = TWO_PI * d0 * q / 16
                Sre[l, 2*r] = np.cos(a); Sre[l, 2*r+1] = 0
                Sim[l, 2*r] = (-1.0) ** d0 if q == 0 else -np.sin(a); Sim[l, 2*r+1] = 0
            else:
                b = TWO_PI * d0 * (2*q + 1) / 32
                Sre[l, 2*r] = 0; Sre[l, 2*r+1] = np.cos(b)
                Sim[l, 2*r] = 0; Sim[l, 2*r+1] = -np.sin(b)
    dre = Sre - bf16_round(Are); dim = Sim - bf16_round(Aim)
    return dict(Bre=pack8(Bre), Bim=pack8(Bim), Tc=f32w(Tc), Ts=f32w(Ts), Are=pack8(Are), Aim=pack8(Aim), dre=pack8(dre), dim=pack8(dim))

def p3_tables(nyq=True):
    Bre = np.zeros((64, 8)); Bim = np.zeros((64, 8)); Sre = np.zeros((64, 8)); Sim = np.zeros((64, 8))
    F0 = np.zeros((64, 8)); F1 = np.zeros((64, 8))
    Tc = np.zeros((64, 4)); Ts = np.zeros((64, 4))
    sc = 2.0 ** -20
    for l in range(64):
        n, g = l & 15, l >> 4
        for r in range(4):
            j = 4 * g + r; d0 = n
            q, mir = jrow(j)
            k0 = 15 - q if mir else q
            al = TWO_PI * d0 * k0 / 16
            sg = -1.0 if mir else 1.0
            Bre[l, 2*r] = np.cos(al); Bre[l, 2*r+1] = -sg * np.sin(al)
            Bim[l, 2*r] = np.sin(al); Bim[l, 2*r+1] = sg * np.cos(al)
            if not mir:
                a = TWO_PI * d0 * q / 16
                if q == 0:
                    Sre[l, 2*r] = 1; Sre[l, 2*r+1] = (-1.0) ** d0 if nyq else 0
                else:
                    Sre[l, 2*r] = 2 * np.cos(a); Sre[l, 2*r+1] = -2 * np.sin(a)
            else:
                b = TWO_PI * d0 * (2*q + 1) / 32
                Sim[l, 2*r] = 2 * np.cos(b); Sim[l, 2*r+1] = -2 * np.sin(b)
            k1 = 4 * g + r
            Tc[l, r] = np.cos(TWO_PI * n * k1 / 512); Ts[l, r] = np.sin(TWO_PI * n * k1 / 512)
            for hb, F in ((0, F0), (1, F1)):
                d1 = 16 * hb + n
                if k1 == 0:
                    F[l, 2*r] = sc; F[l, 2*r+1] = sc * (-1.0) ** d1
                else:
                    F[l, 2*r] = 2 * sc * np.cos(TWO_PI * d1 * k1 / 32); F[l, 2*r+1] = -2 * sc * np.sin(TWO_PI * d1 * k1 / 32)
    dre = Sre - bf16_round(Bre); dim = Sim - bf16_round(Bim)
    return dict(Bre=pack8(Bre), Bim=pack8(Bim), dre=pack8(dre), dim=pack8(dim), Tc=f32w(Tc), Ts=f32w(Ts), F0=pack8(F0), F1=pack8(F1))

def p2_fft_tables():
    Fre = np.zeros((64, 8)); Fim = np.zeros((64, 8)); Tc = np.zeros((64, 4)); Ts = np.zeros((64, 4))
    for l in range(64):
        a, g = l & 15, l >> 4
        for r in range(4):
            b = 4 * g + r
            Fre[l, 2*r] = np.cos(TWO_PI * a * b / 16); Fre[l, 2*r+1] = np.sin(TWO_PI * a * b / 16)
            Fim[l, 2*r] = -np.sin(TWO_PI * a * b / 16); Fim[l, 2*r+1] = np.cos(TWO_PI * a * b / 16)
            Tc[l, r] = np.cos(TWO_PI * a * b / 256); Ts[l, r] = np.sin(TWO_PI * a * b / 256)
    return dict(Fre=pack8(Fre), Fim=pack8(Fim), Tc=f32w(Tc), Ts=f32w(Ts))

BCOL = [0,1,2,3,4,5,6,7, 256,258,260,262, 512,516,768,772, 1024,1280,1536,1792, 2048]
def lround(l):
    return int(bf16_round(np.float32(l)))
```

```python
import sys, numpy as np
from asmgen import *
from tables import *

X1_OFF = 0x000000; X1_ROW = 1152; X1_S0 = 9216
UT_OFF = 0x300000
G_OFF  = 0x500000
Y1_OFF = 0x600000
AT_OFF = 0x900000
WS_USED = 0xB00000
STAMP = 0x8000000

class Cfg:
    stamps = False
    prefetch_w = False
    prefetch_code = True
cfg = Cfg()

def srd(a, s, lo, size):
    a(f"s_mov_b32 s{s}, s{lo}\ns_mov_b32 s{s+1}, s{lo+1}\ns_mov_b32 s{s+2}, {size}\ns_mov_b32 s{s+3}, 0x20000")
def st(a, i):
    if cfg.stamps: a(f"s_memtime s[{64+2*i}:{65+2*i}]")
def st_begin(a):
    if cfg.stamps:
        a("s_memrealtime s[80:81]\ns_memtime s[64:65]")
        for i in range(1, 8): a(f"s_mov_b64 s[{64+2*i}:{65+2*i}], 0")
_uid = [0]
def end(a, kidx):
    if not cfg.stamps:
        a("s_endpgm"); return
    _uid[0] += 1
    a("s_waitcnt vmcnt(0) lgkmcnt(0)")
    a("s_memtime s[78:79]\ns_memrealtime s[82:83]")
    a("s_load_dwordx2 s[88:89], s[0:1], 120\ns_waitcnt lgkmcnt(0)")
    a(f"s_add_u32 s88, s88, {STAMP + kidx*0x200000}\ns_addc_u32 s89, s89, 0")
    a("s_mov_b32 s92, s88\ns_mov_b32 s93, s89\ns_mov_b32 s94, 0x200000\ns_mov_b32 s95, 0x20000")
    a("s_mov_b64 exec, 1")
    for i in range(20): a(f"v_mov_b32 v{10+i}, s{64+i}")
    a("s_lshl_b32 s90, s2, 3\ns_add_u32 s90, s90, s3\ns_lshl_b32 s90, s90, 7\nv_mov_b32 v9, s90")
    for i in range(5): a(f"buffer_store_dwordx4 v[{10+4*i}:{13+4*i}], v9, s[92:95], 0 offen offset:{16*i}")
    a("s_endpgm")

def table_base(a, s, label, uid):
    a(f"s_getpc_b64 s[{s}:{s+1}]\ns_add_u32 s{s}, s{s}, {label}@rel32@lo+4100\ns_addc_u32 s{s+1}, s{s+1}, {label}@rel32@hi+4108")

def lane_base(a, vd, vl, vt):
    a(f"v_and_b32 v{vt}, 15, v{vl}")
    a(f"v_sub_u32 v{vt+1}, 32, v{vt}")
    a(f"v_cmp_eq_u32 vcc, 0, v{vt}")
    a(f"v_cndmask_b32 v{vt+1}, v{vt+1}, 16, vcc")
    a(f"v_and_b32 v{vd}, 16, v{vl}")
    a(f"v_cmp_eq_u32 vcc, 0, v{vd}")
    a(f"v_cndmask_b32 v{vd}, v{vt+1}, v{vt}, vcc")
    a(f"v_lshrrev_b32 v{vt}, 5, v{vl}")
    a(f"v_lshl_add_u32 v{vd}, v{vt}, 7, v{vd}")

def twiddle(a, re, im, c, s, ore, oim, conj=False):
    n1 = "" if not conj else " neg_lo:[1,0,0] neg_hi:[1,0,0]"
    n2 = " neg_lo:[1,0,0] neg_hi:[1,0,0]" if not conj else ""
    for h in (0, 2):
        a(f"v_pk_mul_f32 v[{ore+h}:{ore+h+1}], v[{re+h}:{re+h+1}], v[{c+h}:{c+h+1}]")
        a(f"v_pk_mul_f32 v[{oim+h}:{oim+h+1}], v[{im+h}:{im+h+1}], v[{c+h}:{c+h+1}]")
    for h in (0, 2):
        a(f"v_pk_fma_f32 v[{ore+h}:{ore+h+1}], v[{im+h}:{im+h+1}], v[{s+h}:{s+h+1}], v[{ore+h}:{ore+h+1}]{n1}")
        a(f"v_pk_fma_f32 v[{oim+h}:{oim+h+1}], v[{re+h}:{re+h+1}], v[{s+h}:{s+h+1}], v[{oim+h}:{oim+h+1}]{n2}")

def q(r): return f"v[{r}:{r+3}]"
def p(r): return f"v[{r}:{r+1}]"
MF32 = "v_mfma_f32_16x16x32_bf16"
MF16 = "v_mfma_f32_16x16x16_bf16"

P1_EX = 8192; P1_EXS = 2064; P1_LDS = 8192 + 4 * 2064
def gen_p1():
    a = Asm()
    st_begin(a)
    a("s_cmpk_ge_u32 s2, 512\ns_cbranch_scc1 P1_EXIT")
    a("s_load_dwordx2 s[4:5], s[0:1], 0\ns_load_dwordx2 s[6:7], s[0:1], 120")
    a("v_readfirstlane_b32 s3, v0\nv_and_b32 v1, 63, v0\nv_lshlrev_b32 v2, 4, v1\ns_lshr_b32 s3, s3, 6")
    a("s_cmpk_ge_u32 s2, 256\ns_cbranch_scc1 P1_UT")
    a("s_cmp_eq_u32 s3, 4\ns_cbranch_scc1 P1_GATE")
    table_base(a, 20, "P1_TAB", "p1")
    for i in range(8): a(f"global_load_dwordx4 {q(16+4*i)}, v2, s[20:21] offset:{1024*i-4096}")
    def dft8():
        a("v_bfe_u32 v3, v1, 1, 3\nv_lshrrev_b32 v4, 4, v1\nv_lshl_add_u32 v5, v4, 9, s2\nv_mul_u32_u24 v5, v3, v5")
        a("v_and_b32 v6, 1, v1\nv_lshl_add_u32 v5, v6, 9, v5\nv_lshl_add_u32 v6, v3, 8, v5")
        a("v_cvt_f32_u32 v5, v5\nv_cvt_f32_u32 v6, v6\nv_mul_f32 v5, 0x3a000000, v5\nv_mul_f32 v6, 0x3a000000, v6")
        a("v_cos_f32 v7, v5\nv_sin_f32 v5, v5\nv_cos_f32 v8, v6\nv_sin_f32 v6, v6")
        a("v_cvt_pk_bf16_f32 v48, v7, v5\nv_cvt_pk_bf16_f32 v49, v8, v6")
    dft8()
    a("s_waitcnt lgkmcnt(0)")
    st(a, 1)
    srd(a, 8, 4, 2097152)
    a("s_lshl_b32 s22, s2, 10\ns_lshl_b32 s23, s3, 19\ns_add_u32 s22, s22, s23\ns_lshl_b32 s24, s3, 11\ns_mov_b32 m0, s24")
    a("s_add_u32 s23, s22, 0x40000")
    a("buffer_load_dwordx4 v2, s[8:11], s22 offen lds")
    a("s_add_u32 m0, s24, 1024")
    a("buffer_load_dwordx4 v2, s[8:11], s23 offen lds")
    srd(a, 12, 6, WS_USED)
    lane_base(a, 9, 1, 10)
    a(f"s_mul_i32 s25, s3, {P1_EXS}\ns_add_u32 s25, s25, {P1_EX}")
    a("v_lshl_add_u32 v9, v9, 3, s25")
    a("v_and_b32 v10, 15, v1\nv_cmp_eq_u32 vcc, 0, v10\nv_cndmask_b32 v50, 0, -1, vcc")
    a("s_mov_b32 s26, 0xffff\ns_cmp_eq_u32 s3, 0\ns_cselect_b32 s26, s26, -1\nv_mov_b32 v11, s26\nv_cndmask_b32 v51, -1, v11, vcc")
    a(f"v_mul_u32_u24 v11, {P1_EXS}, v4\ns_lshl_b32 s26, s3, 9\ns_add_u32 s26, s26, {P1_EX}\nv_lshl_add_u32 v11, v10, 5, v11\nv_add_u32 v11, s26, v11")
    a(f"v_mul_u32_u24 v12, {2*X1_ROW}, v4\nv_lshl_add_u32 v12, v10, 4, v12")
    a(f"s_mul_i32 s27, s2, {X1_S0}\ns_lshl_b32 s26, s3, 8\ns_add_u32 s27, s27, s26")
    a("v_lshl_add_u32 v13, v1, 3, s24")
    a("s_waitcnt vmcnt(0)")
    st(a, 2)
    a("ds_read_b64_tr_b16 v[52:53], v13\nds_read_b64_tr_b16 v[54:55], v13 offset:512")
    a("ds_read_b64_tr_b16 v[56:57], v13 offset:1024\nds_read_b64_tr_b16 v[58:59], v13 offset:1536")
    a("s_waitcnt lgkmcnt(2)")
    a(f"{MF32} {q(60)}, {q(52)}, {q(16)}, 0\n{MF32} {q(64)}, {q(52)}, {q(20)}, 0")
    a("s_waitcnt lgkmcnt(0)")
    a(f"{MF32} {q(68)}, {q(56)}, {q(16)}, 0\n{MF32} {q(72)}, {q(56)}, {q(20)}, 0")
    for e in range(2):
        re, im = 60 + 8*e, 64 + 8*e
        twiddle(a, re, im, 24, 28, 76, 80)
        B, Bm = 52 + 0, 56
        if e == 1: B, Bm = 84, 88
        for r in range(4): a(f"v_cvt_pk_bf16_f32 v{B+r}, v{76+r}, v{80+r}")
        for r in range(4): a(f"v_and_b32 v{Bm+r}, v50, v{B+r}")
        a(f"{MF32} {q(re)}, {q(32)}, {q(B)}, 0\n{MF32} {q(im)}, {q(36)}, {q(B)}, 0")
        a(f"{MF32} {q(re)}, {q(40)}, {q(Bm)}, {q(re)}\n{MF32} {q(im)}, {q(44)}, {q(Bm)}, {q(im)}")
    for e in range(2):
        for r in range(4): a(f"v_cvt_pk_bf16_f32 v{92+2*r+e}, v{60+8*e+r}, v{64+8*e+r}")
    for r in range(4): a(f"ds_write_b64 v9, {p(92+2*r)} offset:{256*r}")
    a("s_waitcnt lgkmcnt(0)")
    st(a, 3)
    a("s_barrier")
    a("ds_read_b128 v[52:55], v11\nds_read_b128 v[56:59], v11 offset:16")
    a("s_waitcnt lgkmcnt(1)")
    a("v_and_b32 v52, v51, v52\nv_and_b32 v53, v51, v53")
    a(f"{MF16} {q(64)}, {p(48)}, {p(54)}, 0\n{MF16} {q(60)}, {p(48)}, {p(52)}, 0")
    a("s_waitcnt lgkmcnt(0)")
    a(f"{MF16} {q(68)}, {p(48)}, {p(56)}, 0\n{MF16} {q(72)}, {p(48)}, {p(58)}, 0")
    for t in (1, 0, 2, 3):
        a(f"v_cvt_pk_bf16_f32 v{76+t}, v{60+4*t}, v{61+4*t}\nv_cvt_pk_bf16_f32 v{80+t}, v{62+4*t}, v{63+4*t}")
    a(f"buffer_store_dwordx4 {q(76)}, v12, s[12:15], s27 offen\nbuffer_store_dwordx4 {q(80)}, v12, s[12:15], s27 offen offset:{X1_ROW}")
    st(a, 4)
    end(a, 0)
    a("P1_GATE:")
    a("s_load_dwordx2 s[28:29], s[0:1], 96")
    dft8()
    a("s_waitcnt lgkmcnt(0)")
    st(a, 1)
    srd(a, 8, 4, 2097152)
    a("s_lshl_b32 s22, s2, 10")
    a(f"global_load_dwordx4 {q(16)}, v2, s[28:29]")
    for r in range(8):
        a(f"buffer_load_dwordx4 {q(20+4*r + (4 if r == 7 else 0))}, v2, s[8:11], s22 offen")
        if r < 7: a("s_add_u32 s22, s22, 0x40000")
    srd(a, 12, 6, WS_USED)
    a(f"v_mul_u32_u24 v11, {P1_EXS}, v4\nv_add_u32 v11, {P1_EX}, v11")
    a(f"v_and_b32 v10, 15, v1\nv_mul_u32_u24 v12, {2*X1_ROW}, v4\nv_lshl_add_u32 v12, v10, 2, v12")
    a(f"s_mul_i32 s27, s2, {X1_S0}\ns_add_u32 s27, s27, 1024")
    for r in range(8):
        b = 20 + 4*r + (4 if r == 7 else 0)
        a(f"s_waitcnt vmcnt({7-r})")
        a(f"v_dot2_f32_bf16 v{60+r}, v{b}, v16, 0")
        for i in range(1, 4): a(f"v_dot2_f32_bf16 v{60+r}, v{b+i}, v{16+i}, v{60+r}")
    st(a, 2)
    for sh in ("row_shr:1", "row_shr:2", "row_shr:4", "row_shr:8"):
        for r in range(8): a(f"v_add_f32_dpp v{60+r}, v{60+r}, v{60+r} {sh} row_mask:0xf bank_mask:0xf bound_ctrl:0")
    for r in range(8): a(f"v_add_f32_dpp v{60+r}, v{60+r}, v{60+r} row_bcast:15 row_mask:0xa bank_mask:0xf")
    for r in range(8): a(f"v_add_f32_dpp v{60+r}, v{60+r}, v{60+r} row_bcast:31 row_mask:0xc bank_mask:0xf")
    for r in range(8): a(f"v_readlane_b32 s{32+r}, v{60+r}, 63")
    st(a, 3)
    a("s_barrier")
    a("ds_read_b64 v[52:53], v11")
    for r in range(8): a(f"v_writelane_b32 v60, s{32+r}, {r}")
    a("v_cvt_pk_bf16_f32 v60, v60, v60\nv_and_b32 v60, 0xffff0000, v60")
    a("s_waitcnt lgkmcnt(0)")
    a("v_lshrrev_b32 v52, 16, v52\nv_lshrrev_b32 v53, 16, v53")
    a("v_mul_f32 v60, 0xbfb8aa3b, v60")
    a(f"{MF16} {q(64)}, {p(48)}, {p(52)}, 0")
    a("v_exp_f32 v60, v60\nv_lshlrev_b32 v61, 2, v1\nv_add_f32 v60, 1.0, v60\nv_rcp_f32 v60, v60")
    a(f"s_lshl_b32 s26, s2, 5\ns_add_u32 s26, s26, {G_OFF}")
    a("v_cvt_pk_bf16_f32 v60, v60, v60\nv_and_b32 v60, 0xffff0000, v60")
    a("v_cvt_pk_bf16_f32 v68, v64, v65\nv_cvt_pk_bf16_f32 v69, v66, v67")
    a(f"buffer_store_dword v68, v12, s[12:15], s27 offen\nbuffer_store_dword v69, v12, s[12:15], s27 offen offset:{X1_ROW}")
    a("s_mov_b64 exec, 0xff")
    a("buffer_store_dword v60, v61, s[12:15], s26 offen")
    st(a, 4)
    end(a, 0)
    a("P1_UT:")
    a("s_sub_u32 s30, s2, 256\ns_cmp_eq_u32 s3, 4\ns_cbranch_scc1 P1_PF")
    a("s_lshr_b32 s20, s30, 2\ns_and_b32 s21, s30, 3")
    a("v_lshrrev_b32 v4, 4, v1\ns_and_b32 s22, s3, 1\ns_lshl_b32 s22, s22, 2\nv_or_b32 v5, s22, v4")
    a("v_and_b32 v6, 15, v1\nv_lshlrev_b32 v6, 4, v6\nv_lshlrev_b32 v5, 5, v5\nv_xor_b32 v6, v5, v6\nv_lshl_add_u32 v6, v4, 10, v6")
    a("s_lshl_b32 s22, s20, 15\ns_lshl_b32 s23, s3, 13\ns_add_u32 s22, s22, s23\ns_lshl_b32 s23, s21, 8\ns_add_u32 s22, s22, s23\ns_add_u32 s23, s22, 4096")
    a("s_lshl_b32 s24, s3, 11\ns_mov_b32 m0, s24")
    a("s_waitcnt lgkmcnt(0)")
    st(a, 1)
    srd(a, 8, 4, 2097152)
    a("buffer_load_dwordx4 v6, s[8:11], s22 offen lds\ns_add_u32 m0, s24, 1024\nbuffer_load_dwordx4 v6, s[8:11], s23 offen lds")
    srd(a, 12, 6, WS_USED)
    a("v_bfe_u32 v7, v1, 2, 2\nv_and_b32 v8, 1, v4\nv_lshl_or_b32 v8, v8, 2, v7\ns_lshl_b32 s25, s3, 1\nv_xor_b32 v8, s25, v8")
    a("v_lshl_add_u32 v7, v4, 3, v7\nv_lshlrev_b32 v7, 8, v7\nv_lshl_add_u32 v7, v8, 5, v7\nv_and_b32 v8, 3, v1\nv_lshl_add_u32 v7, v8, 3, v7\nv_xor_b32 v8, 32, v7")
    a("v_and_b32 v9, 15, v1\nv_lshlrev_b32 v9, 6, v9\nv_lshl_add_u32 v9, v4, 4, v9")
    a(f"s_lshl_b32 s26, s20, 15\ns_lshl_b32 s27, s21, 13\ns_add_u32 s26, s26, s27\ns_lshl_b32 s27, s3, 11\ns_add_u32 s26, s26, s27\ns_add_u32 s26, s26, {UT_OFF}")
    a("s_waitcnt vmcnt(0)")
    st(a, 2)
    a("s_barrier")
    a("ds_read_b64_tr_b16 v[12:13], v7\nds_read_b64_tr_b16 v[14:15], v7 offset:1024")
    a("ds_read_b64_tr_b16 v[16:17], v8\nds_read_b64_tr_b16 v[18:19], v8 offset:1024")
    a("s_waitcnt lgkmcnt(2)\nbuffer_store_dwordx4 v[12:15], v9, s[12:15], s26 offen")
    a("s_waitcnt lgkmcnt(0)\nbuffer_store_dwordx4 v[16:19], v9, s[12:15], s26 offen offset:1024")
    st(a, 4)
    end(a, 0)
    a("P1_PF:")
    a("s_load_dwordx8 s[32:39], s[0:1], 8\ns_load_dwordx8 s[40:47], s[0:1], 40")
    if cfg.prefetch_w: a("s_load_dwordx4 s[48:51], s[0:1], 80")
    if cfg.prefetch_code:
        table_base(a, 20, "P2_CODE", "pf")
        table_base(a, 24, "P2_TAB", "pf2")
        a("s_lshr_b32 s22, s30, 3\ns_lshl_b32 s22, s22, 10\nv_add_u32 v3, s22, v2")
        a(f"v_min_u32 v5, CODE_END-P2_CODE-16, v3\nglobal_load_dwordx4 v[20:23], v5, s[20:21] offset:-4096")
        a(f"v_min_u32 v5, TAB_END-P2_TAB-16, v3\nglobal_load_dwordx4 v[24:27], v5, s[24:25] offset:-4096")
    a("v_and_b32 v3, 7, v1\nv_lshlrev_b32 v3, 6, v3\ns_lshl_b32 s22, s30, 9\nv_add_u32 v3, s22, v3\nv_and_b32 v4, 15, v1\nv_lshlrev_b32 v4, 6, v4")
    a("s_waitcnt lgkmcnt(0)")
    for i in range(6): a(f"global_load_dword v{8+i}, v3, s[{32+2*i}:{33+2*i}]")
    a("global_load_dword v14, v4, s[44:45]\nglobal_load_dword v15, v4, s[46:47]")
    if cfg.prefetch_w:
        a("s_and_b32 s22, s30, 7\ns_lshr_b32 s23, s30, 3\ns_lshl_b32 s23, s23, 6\ns_add_u32 s22, s22, s23\ns_mul_i32 s22, s22, 514")
        a("v_lshrrev_b32 v5, 3, v1\nv_mul_u32_u24 v5, 4112, v5\nv_and_b32 v6, 7, v1\nv_mul_u32_u24 v6, 73, v6\nv_add3_u32 v5, v5, v6, s22")
        a("global_load_ubyte v16, v5, s[48:49]\nglobal_load_ubyte v17, v5, s[50:51]")
    end(a, 0)
    a("P1_EXIT:\ns_endpgm")
    T = p1_tables()
    tab = np.concatenate([T[k].reshape(-1) for k in ("Bre", "Bim", "Tc", "Ts", "Are", "Aim", "dre", "dim")])
    return a, table_text("P1_TAB", tab), 100

P3_PS = 2624; P3_AB = 4 * 2624; P3_LDS = P3_AB + 8192
def gen_p3():
    a = Asm()
    st_begin(a)
    a("s_cmpk_ge_u32 s2, 256\ns_cbranch_scc1 P3_EXIT")
    a("s_load_dwordx2 s[4:5], s[0:1], 104\ns_load_dwordx2 s[6:7], s[0:1], 120")
    a("v_readfirstlane_b32 s3, v0\nv_and_b32 v1, 63, v0\nv_lshlrev_b32 v2, 4, v1\ns_lshr_b32 s3, s3, 6")
    a("s_and_b32 s20, s2, 7\ns_lshl_b32 s20, s20, 5\ns_lshr_b32 s21, s2, 3\ns_add_u32 s20, s20, s21")
    a("s_lshl_b32 s21, s20, 5")
    a("v_lshrrev_b32 v4, 4, v1\nv_bfe_u32 v3, v1, 1, 3\nv_and_b32 v10, 15, v1")
    def idft8_angles():
        a("v_lshl_add_u32 v5, v3, 8, s20\nv_mul_u32_u24 v6, v4, v5\nv_and_b32 v7, 1, v1\nv_lshlrev_b32 v7, 8, v7\nv_sub_u32 v6, v7, v6\nv_lshlrev_b32 v6, 1, v6\nv_sub_u32 v5, v6, v5")
        a("v_cvt_f32_i32 v6, v6\nv_cvt_f32_i32 v5, v5\nv_mul_f32 v6, 0x3a000000, v6\nv_mul_f32 v5, 0x3a000000, v5")
        a("v_cos_f32 v7, v6\nv_sin_f32 v6, v6\nv_cos_f32 v8, v5\nv_sin_f32 v5, v5")
    def idft8_finish():
        a("v_sub_f32 v14, 1.0, v14\nv_cvt_pk_bf16_f32 v14, v14, v14\nv_and_b32 v14, 0xffff0000, v14")
        a("v_mul_f32 v7, v14, v7\nv_mul_f32 v6, v14, v6\nv_mul_f32 v8, v14, v8\nv_mul_f32 v5, v14, v5")
        a("v_cvt_pk_bf16_f32 v48, v7, v6\nv_cvt_pk_bf16_f32 v49, v8, v5")
    a("s_cmp_eq_u32 s3, 4\ns_cbranch_scc1 P3_NYQ")
    table_base(a, 22, "P3_TAB", "p3")
    for i in range(8): a(f"global_load_dwordx4 {q(16+4*i)}, v2, s[22:23] offset:{1024*i-4096}")
    a("v_lshrrev_b32 v11, 1, v1\nv_and_b32 v12, 1, v1\nv_lshlrev_b32 v12, 4, v12\nv_lshl_add_u32 v13, v11, 16, v12\nv_lshl_add_u32 v11, v11, 13, v12")
    a(f"s_mul_i32 s24, s3, {2*33*8192}\ns_add_u32 s24, s24, s21\ns_add_u32 s24, s24, {Y1_OFF}\ns_add_u32 s25, s24, {33*8192}")
    a(f"s_mul_i32 s26, s3, {P3_PS}")
    a(f"s_and_b32 s27, s3, 1\ns_lshl_b32 s27, s27, 2\ns_lshr_b32 s28, s3, 1\ns_add_u32 s27, s27, s28\ns_lshl_b32 s27, s27, 13\ns_add_u32 s27, s27, s21\ns_add_u32 s27, s27, {AT_OFF}\ns_add_u32 s28, s27, 16384")
    a(f"s_lshl_b32 s29, s3, 11\ns_add_u32 s29, s29, {P3_AB}")
    a("v_lshlrev_b32 v15, 2, v3")
    a(f"s_add_u32 s30, s21, {G_OFF}")
    a("s_mov_b32 m0, s26")
    a("s_waitcnt lgkmcnt(0)")
    st(a, 1)
    srd(a, 12, 6, WS_USED)
    a("buffer_load_dword v14, v15, s[12:15], s30 offen")
    a("buffer_load_dwordx4 v11, s[12:15], s24 offen lds\ns_add_u32 m0, s26, 1280\ns_lshl_b32 s31, s3, 3")
    a("buffer_load_dwordx4 v11, s[12:15], s25 offen lds\ns_mov_b32 m0, s29\ns_add_u32 s31, s31, s30")
    a("buffer_load_dwordx4 v13, s[12:15], s27 offen lds\ns_add_u32 m0, s29, 1024\ns_load_dwordx2 s[32:33], s[6:7], s31")
    a("buffer_load_dwordx4 v13, s[12:15], s28 offen lds")
    srd(a, 8, 4, 2097152)
    idft8_angles()
    lane_base(a, 9, 1, 11)
    a("v_lshl_add_u32 v9, v9, 2, s26\nv_add_u32 v50, 1280, v9")
    a("v_mov_b32 v51, s26")
    a("v_cmp_eq_u32 vcc, 0, v10\nv_cndmask_b32 v92, 0, -1, vcc")
    a("v_mov_b32 v93, 0x03020100\nv_mov_b32 v11, 0x05040100\nv_cmp_eq_u32 vcc, 0, v1\nv_cndmask_b32 v93, v93, v11, vcc")
    a(f"v_mul_u32_u24 v11, {P3_PS}, v4\nv_lshl_add_u32 v11, v10, 2, v11\ns_lshl_b32 s31, s3, 6\nv_add_u32 v11, s31, v11")
    a(f"v_lshl_add_u32 v12, v4, 5, v10\nv_lshlrev_b32 v12, 5, v12\ns_lshl_b32 s31, s3, 3\ns_add_u32 s31, s31, {P3_AB}\nv_add_u32 v12, s31, v12")
    a("v_lshlrev_b32 v13, 5, v10\nv_lshl_add_u32 v13, v4, 3, v13")
    a("s_lshl_b32 s34, s20, 10\ns_lshl_b32 s35, s3, 19\ns_add_u32 s34, s34, s35\ns_add_u32 s35, s34, 0x40000")
    a("s_waitcnt vmcnt(4)")
    idft8_finish()
    a("s_waitcnt lgkmcnt(0)")
    a("s_lshr_b32 s36, s32, 16\ns_lshr_b32 s37, s33, 16")
    a("s_waitcnt vmcnt(0)")
    st(a, 2)
    a("s_barrier")
    for t in range(4): a(f"ds_read2st64_b32 {p(52+2*t)}, v11 offset0:{t} offset1:{t+5}")
    for i, (hb, e2) in enumerate(((0,0),(0,1),(1,0),(1,1))): a(f"ds_read_b64 {p(96+2*i)}, v12 offset:{4096*e2+512*hb}")
    for t in range(4):
        a(f"s_waitcnt lgkmcnt({7-t})\n{MF16} {q(60+4*t)}, {p(48)}, {p(52+2*t)}, 0")
    for t in range(4):
        a(f"v_cvt_pk_bf16_f32 v{52+2*t}, v{60+4*t}, v{61+4*t}\nv_cvt_pk_bf16_f32 v{53+2*t}, v{62+4*t}, v{63+4*t}")
        a(f"ds_write2st64_b32 v11, v{52+2*t}, v{53+2*t} offset0:{t} offset1:{t+5}")
    a("s_waitcnt lgkmcnt(0)")
    st(a, 3)
    a("s_barrier")
    for e, ad in ((0, 9), (1, 50)):
        a(f"ds_read2_b32 {p(52+8*e)}, v{ad} offset1:32\nds_read2_b32 {p(54+8*e)}, v{ad} offset0:64 offset1:96\nds_read_b32 v{94+e}, v51 offset:{1024+1280*e}")
    for e in range(2):
        A, Am = 52 + 8*e, 56 + 8*e
        re, im = 68 + 8*e, 72 + 8*e
        a(f"s_waitcnt lgkmcnt({3-3*e})")
        a(f"v_perm_b32 v{A}, v{94+e}, v{A}, v93")
        for r in range(4): a(f"v_and_b32 v{Am+r}, v92, v{A+r}")
        a(f"{MF32} {q(re)}, {q(A)}, {q(16)}, 0\n{MF32} {q(im)}, {q(A)}, {q(20)}, 0")
        a(f"{MF32} {q(re)}, {q(Am)}, {q(24)}, {q(re)}\n{MF32} {q(im)}, {q(Am)}, {q(28)}, {q(im)}")
    for e in range(2):
        re, im = 68 + 8*e, 72 + 8*e
        twiddle(a, re, im, 32, 36, 84, 88, conj=True)
        for r in range(4): a(f"v_cvt_pk_bf16_f32 v{52+4*e+r}, v{84+r}, v{88+r}")
        a(f"{MF32} {q(re)}, {q(52+4*e)}, {q(40)}, 0\n{MF32} {q(im)}, {q(52+4*e)}, {q(44)}, 0")
    for e in range(2):
        for hb in range(2):
            D = 68 + 8*e + 4*hb
            for e2 in range(2):
                av = 96 + 2*(2*hb + e2) + e
                a(f"v_dot2_f32_bf16 v{D+2*e2}, v{av}, s{36+e}, v{D+2*e2}\nv_dot2_f32_bf16 v{D+2*e2+1}, v{av}, s{32+e}, v{D+2*e2+1}")
    for e in range(2):
        for hb in range(2):
            D = 68 + 8*e + 4*hb; o = 60 + 4*e + 2*hb
            a(f"v_cvt_pk_bf16_f32 v{o}, v{D}, v{D+1}\nv_cvt_pk_bf16_f32 v{o+1}, v{D+2}, v{D+3}")
            a(f"buffer_store_dwordx2 {p(o)}, v13, s[8:11], s{34+e} offen offset:{512*hb}")
    st(a, 4)
    end(a, 2)
    a("P3_NYQ:")
    a(f"v_mul_u32_u24 v11, {2*33*8192}, v4\ns_add_u32 s24, s21, {Y1_OFF + 32*8192}\ns_add_u32 s25, s24, {33*8192}\ns_add_u32 s30, s21, {G_OFF}\nv_lshlrev_b32 v15, 2, v3")
    a("s_waitcnt lgkmcnt(0)")
    st(a, 1)
    srd(a, 12, 6, WS_USED)
    a("buffer_load_dword v14, v15, s[12:15], s30 offen\nbuffer_load_dword v52, v11, s[12:15], s24 offen\nbuffer_load_dword v53, v11, s[12:15], s25 offen")
    idft8_angles()
    a(f"v_mul_u32_u24 v11, {P3_PS}, v4\nv_lshl_add_u32 v11, v10, 2, v11")
    a("s_waitcnt vmcnt(2)")
    idft8_finish()
    a("s_waitcnt vmcnt(0)")
    a(f"{MF16} {q(60)}, {p(48)}, {p(52)}, 0")
    a("v_cvt_pk_bf16_f32 v52, v60, v61\nv_cvt_pk_bf16_f32 v53, v62, v63")
    a("ds_write2st64_b32 v11, v52, v53 offset0:4 offset1:9")
    a("s_waitcnt lgkmcnt(0)")
    st(a, 2)
    a("s_barrier")
    end(a, 2)
    a("P3_EXIT:\ns_endpgm")
    T = p3_tables()
    tab = np.concatenate([T[k].reshape(-1) for k in ("Bre", "Bim", "dre", "dim", "Tc", "Ts", "F0", "F1")])
    return a, table_text("P3_TAB", tab), 104

RS = 544
L_TA = 0; L_TAS = 32 * RS
L_TB = 2 * L_TAS; L_TBS = 21 * RS
L_KS = L_TB + 2 * L_TBS; L_KSS = 4640
L_KB = L_KS + 2 * L_KSS; K_CS = 4160; K_CH = 4 * K_CS
L_UB = (L_KB + 2 * K_CH + 255) // 256 * 256; U_PS = 1280; U_CH = 4 * U_PS
L_EB = L_UB + 2 * U_CH; E_CH = 64 * 72 + 64
P2_LDS = L_EB + 2 * E_CH

def expand_table():
    T = np.zeros((256, 8), np.uint32)
    for t in range(256):
        r1 = 2 if t < 64 else 0
        r2 = 4 if t < 128 else 0
        srcs = [(-4, 0), (-2, 0), (0, 0), (r1, r2), (r2, 8), (6, 8)]
        for k in range(6):
            s1, s0 = srcs[k]; sel = 0
            for h in range(2):
                l = 8 * t + 2 * (k - 2) + h
                pos = (lround(l) if l >= 0 else l) - 8 * t
                if pos in (s1, s1 + 1): b = 2 * (pos - s1)
                elif pos in (s0, s0 + 1): b = 4 + 2 * (pos - s0)
                else:
                    assert k == 0 and h == 0, (t, k, h, pos)
                    b = 0
                sel |= (b | ((b + 1) << 8)) << (16 * h)
            T[t, k] = sel
    return T

def cmul(a, d, x, y, t):
    a(f"v_pk_mul_f32 {p(t)}, {p(x)}, {p(y)} op_sel_hi:[0,1]")
    a(f"v_pk_fma_f32 {p(d)}, {p(x)}, {p(y)}, {p(t)} op_sel:[1,1,0] op_sel_hi:[1,0,1] neg_lo:[0,1,0]")
def cmul_seq(a, items):
    for (d, x, y, t) in items: a(f"v_pk_mul_f32 {p(t)}, {p(x)}, {p(y)} op_sel_hi:[0,1]")
    for (d, x, y, t) in items: a(f"v_pk_fma_f32 {p(d)}, {p(x)}, {p(y)}, {p(t)} op_sel:[1,1,0] op_sel_hi:[1,0,1] neg_lo:[0,1,0]")
def zpow(a, items, ar, th):
    for (d, pw, t) in items:
        if pw is None: a(f"v_exp_f32 v{t}, v{ar}\nv_fract_f32 v{t+1}, v{th}")
        else: a(f"v_mul_f32 v{t}, {pw}, v{ar}\nv_mul_f32 v{t+1}, {pw}, v{th}")
    for (d, pw, t) in items:
        if pw is not None: a(f"v_exp_f32 v{t}, v{t}\nv_fract_f32 v{t+1}, v{t+1}")
    for (d, pw, t) in items: a(f"v_cos_f32 v{d}, v{t+1}\nv_sin_f32 v{d+1}, v{t+1}")
    for (d, pw, t) in items: a(f"v_pk_mul_f32 {p(d)}, {p(d)}, {p(t)} op_sel_hi:[1,0]")

def gen_p2():
    a = Asm()
    st_begin(a)
    a("s_cmpk_ge_u32 s2, 256\ns_cbranch_scc1 P2_EXIT")
    a("s_load_dwordx8 s[32:39], s[0:1], 8\ns_load_dwordx8 s[40:47], s[0:1], 40\ns_load_dwordx4 s[48:51], s[0:1], 80\ns_load_dwordx2 s[6:7], s[0:1], 120")
    a("v_readfirstlane_b32 s3, v0\nv_and_b32 v1, 63, v0\nv_lshlrev_b32 v2, 4, v1\ns_lshr_b32 s3, s3, 6")
    table_base(a, 20, "P2_TAB", "p2")
    a("v_and_b32 v3, 0xff, v0\nv_lshlrev_b32 v4, 5, v3")
    a("global_load_dwordx4 v[120:123], v4, s[20:21] offset:1024\nglobal_load_dwordx2 v[124:125], v4, s[20:21] offset:1040")
    a("v_lshrrev_b32 v4, 4, v1\nv_and_b32 v10, 15, v1")
    a("v_mov_b32 v5, 0\nv_lshlrev_b32 v6, 2, v1")
    a(f"s_mul_i32 s22, s3, {U_PS}\ns_add_u32 s22, s22, {L_UB}\nv_add_u32 v7, s22, v6\nds_write_b32 v7, v5")
    a(f"s_mul_i32 s23, s3, {K_CS}\ns_add_u32 s23, s23, {L_KB}\nv_lshlrev_b32 v7, 2, v10\nv_add_u32 v8, s23, v7\nds_write_b32 v8, v5")
    a(f"s_lshr_b32 s24, s3, 2\ns_mul_i32 s25, s24, {L_KSS}\ns_add_u32 s25, s25, {L_KS}\nv_and_b32 v7, 12, v6\nv_add_u32 v8, s25, v7\nds_write_b32 v8, v5")
    a(f"v_lshl_add_u32 v126, v3, 4, s25\ns_mul_i32 s25, s24, {K_CH}\ns_add_u32 s25, s25, {L_KB + 64}\nv_lshl_add_u32 v127, v3, 4, s25")
    a("s_and_b32 s25, s3, 3\ns_cmp_ge_u32 s25, 1\ns_cselect_b64 s[56:57], -1, 0\ns_cmp_ge_u32 s25, 2\ns_cselect_b64 s[58:59], -1, 0")
    a("s_bfe_u32 s26, s3, 0x10001\ns_and_b32 s27, s3, 1\ns_lshl_b32 s28, s2, 9\ns_lshl_b32 s29, s26, 8\ns_add_u32 s28, s28, s29\ns_lshl_b32 s29, s27, 7\ns_add_u32 s28, s28, s29")
    a("v_lshl_add_u32 v5, v1, 1, s28")
    a(f"v_lshlrev_b32 v6, 15, v1\ns_lshl_b32 s28, s2, 7\ns_lshl_b32 s29, s3, 4\ns_add_u32 s28, s28, s29\ns_add_u32 s28, s28, {UT_OFF}\ns_add_u32 m0, s22, 256")
    a("s_lshl_b32 s29, s2, 2")
    a("s_cmp_ge_u32 s3, 4\ns_cbranch_scc1 P2_BW")
    a("global_load_dwordx2 v[114:115], v2, s[20:21] offset:-4096")
    a("s_waitcnt lgkmcnt(0)")
    st(a, 1)
    a("s_load_dword s30, s[44:45], s29\ns_load_dword s31, s[46:47], s29")
    a("global_load_ushort v11, v5, s[32:33]\nglobal_load_ushort v12, v5, s[34:35]")
    srd(a, 12, 6, WS_USED)
    a("buffer_load_dwordx4 v6, s[12:15], s28 offen lds")
    def dt_calc():
        a("s_lshl_b32 s52, s26, 4\ns_sub_u32 s52, 16, s52")
        a("s_waitcnt lgkmcnt(0)")
        a("s_lshl_b32 s30, s30, s52\ns_and_b32 s30, s30, 0xffff0000\nv_mov_b32 v13, 0x3fb8aa3b\nv_mul_f32 v14, s30, v13\nv_exp_f32 v14, v14")
        a("v_cvt_pk_bf16_f32 v14, v14, v14\nv_and_b32 v14, 0xffff0000, v14")
    dt_calc()
    a("s_lshl_b32 s31, s31, s52\ns_and_b32 s31, s31, 0xffff0000\ns_cmp_eq_u32 s27, 0\ns_cselect_b32 s31, s31, 0")
    a("v_mov_b32 v15, s31\nv_cmp_eq_u32 vcc, 0, v1\nv_cndmask_b32 v119, 0, v15, vcc")
    a(f"s_mul_i32 s53, s26, {L_TAS}\ns_lshl_b32 s54, s27, 8\ns_add_u32 s54, s54, s53\ns_mov_b32 m0, s54")
    a(f"v_lshl_add_u32 v15, s27, 4, v10\nv_mul_u32_u24 v15, {RS}, v15\nv_lshl_add_u32 v15, v4, 4, v15\nv_add_u32 v118, s53, v15")
    a(f"s_mul_i32 s53, s26, {L_TBS}\ns_add_u32 s53, s53, {L_TB}\nv_mul_u32_u24 v15, {RS}, v10\nv_lshl_add_u32 v15, v4, 4, v15\nv_add_u32 v117, s53, v15")
    a("s_waitcnt vmcnt(1)")
    st(a, 2)
    a("v_lshlrev_b32 v11, 16, v11\nv_lshlrev_b32 v12, 16, v12\nv_mul_f32 v11, v14, v11\nv_mul_f32 v12, v14, v12\nv_mul_f32 v11, v13, v11\nv_mul_f32 v12, 0.15915494, v12")
    zpow(a, [(22, "0x41000000", 30), (28, "0x42000000", 32)], 11, 12)
    a("v_mov_b32 v20, 1.0\nv_mov_b32 v21, 0")
    cmul(a, 24, 22, 22, 30); cmul(a, 26, 24, 22, 30)
    a("s_mov_b32 s55, 8")
    a("P2_AL:")
    for c in range(4): a(f"v_cvt_pk_bf16_f32 v{16+c}, v{20+2*c}, v{21+2*c}")
    for c in range(4): a(f"v_pk_mul_f32 {p(30+2*c)}, {p(20+2*c)}, {p(28)} op_sel_hi:[0,1]\nds_write_addtid_b32 v{16+c} offset:{RS*c}")
    a(f"s_sub_u32 s55, s55, 1\ns_add_u32 m0, m0, {4*RS}")
    for c in range(4): a(f"v_pk_fma_f32 {p(20+2*c)}, {p(20+2*c)}, {p(28)}, {p(30+2*c)} op_sel:[1,1,0] op_sel_hi:[1,0,1] neg_lo:[0,1,0]")
    a("s_cmp_lg_u32 s55, 0\ns_cbranch_scc1 P2_AL")
    a(f"s_mul_i32 s53, s26, {L_KSS}\ns_lshl_b32 s54, s27, 8\ns_add_u32 s53, s53, s54\ns_add_u32 s53, s53, {L_KS + 16}")
    a("v_lshl_add_u32 v15, v4, 6, s53\nv_add_u32 v114, v114, v15\nv_add_u32 v115, v115, v15")
    a("s_waitcnt lgkmcnt(0)")
    st(a, 3)
    a("s_barrier")
    def rd(ks):
        b = 16 + 12 * (ks % 4)
        a(f"ds_read_b128 {q(b)}, v118 offset:{64*ks}\nds_read_b128 {q(b+4)}, v117 offset:{64*ks}\nds_read_b128 {q(b+8)}, v117 offset:{64*ks + 16*RS}")
    for ks in range(4): rd(ks)
    for ks in range(8):
        b = 16 + 12 * (ks % 4)
        out_after = 3 * (min(ks + 3, 7) - ks)
        a(f"s_waitcnt lgkmcnt({out_after})")
        c0 = "0" if ks == 0 else q(64); c1 = "0" if ks == 0 else q(68)
        a(f"{MF32} {q(64)}, {q(b)}, {q(b+4)}, {c0}\n{MF32} {q(68)}, {q(b)}, {q(b+8)}, {c1}")
        if ks + 4 < 8: rd(ks + 4)
    a(f"s_mul_i32 s53, s26, {K_CH}\ns_lshl_b32 s54, s27, 5\ns_add_u32 s53, s53, s54\ns_add_u32 s53, s53, {L_KB + 56}")
    a(f"v_bfe_u32 v15, v1, 2, 2\nv_mul_u32_u24 v15, {K_CS}, v15\nv_and_b32 v16, 3, v1\nv_lshl_add_u32 v15, v16, 3, v15\nv_lshlrev_b32 v16, 4, v4\nv_sub_u32 v15, v15, v16\nv_add_u32 v112, s53, v15")
    a(f"s_mul_i32 s53, s26, {U_CH}\ns_add_u32 s53, s53, {L_UB + 240}\nv_mul_u32_u24 v15, {U_PS}, v4\nv_lshl_add_u32 v15, v10, 4, v15\nv_add_u32 v113, s53, v15")
    a("v_add_f32 v64, v119, v64")
    a("v_cvt_pk_bf16_f32 v16, v64, v65\nv_cvt_pk_bf16_f32 v17, v66, v67\nv_cvt_pk_bf16_f32 v18, v68, v69\nv_cvt_pk_bf16_f32 v19, v70, v71")
    for nt in range(2):
        for h in range(2):
            a(f"ds_write_b16 v{114+nt}, v{16+2*nt+h} offset:{32*h}\nds_write_b16_d16_hi v{114+nt}, v{16+2*nt+h} offset:{32*h+16}")
    a("s_waitcnt vmcnt(0)\ns_branch P2_EXP")
    a("P2_BW:")
    for i in range(4): a(f"global_load_dwordx4 {q(96+4*i)}, v2, s[20:21] offset:{1024*i-3072}")
    a(f"s_and_b32 s60, s2, 7\ns_lshr_b32 s61, s2, 3\ns_sub_u32 s62, s3, 4")
    a(f"v_lshl_add_u32 v7, v4, 6, v10\nv_mul_u32_u24 v116, {X1_S0}, v7\nv_lshlrev_b32 v118, 5, v7")
    a(f"v_lshlrev_b32 v7, 6, v4\nv_add_u32 v7, v7, v10\nv_mul_u32_u24 v117, {8*514}, v7")
    a(f"s_mul_i32 s4, s60, {X1_ROW}\ns_lshl_b32 s5, s61, 5\ns_add_u32 s4, s4, s5\ns_lshl_b32 s5, s62, 3\ns_add_u32 s4, s4, s5")
    a(f"s_mul_i32 s8, s60, 514\ns_lshl_b32 s5, s61, 4\ns_add_u32 s8, s8, s5\ns_lshl_b32 s5, s62, 2\ns_add_u32 s8, s8, s5")
    a(f"s_mul_i32 s63, s60, 33\ns_add_u32 s63, s63, s61\ns_lshl_b32 s63, s63, 13\ns_lshl_b32 s5, s62, 3\ns_add_u32 s63, s63, s5\ns_add_u32 s63, s63, {Y1_OFF}")
    a("s_waitcnt lgkmcnt(0)")
    st(a, 1)
    a("s_load_dword s30, s[44:45], s29")
    for i in range(6): a(f"global_load_ushort v{16+i}, v5, s[{32+2*i}:{33+2*i}]")
    srd(a, 12, 6, WS_USED)
    a("buffer_load_dwordx4 v6, s[12:15], s28 offen lds")
    srd(a, 32, 48, 2048 * 514); srd(a, 36, 50, 2048 * 514)
    def fft_loads():
        a(f"s_add_u32 s5, s4, {16*X1_S0}\ns_add_u32 s16, s4, {32*X1_S0}\ns_add_u32 s17, s4, {48*X1_S0}")
        a(f"buffer_load_dwordx2 {p(72)}, v116, s[12:15], s4 offen\nbuffer_load_dwordx2 {p(76)}, v116, s[12:15], s5 offen")
        a(f"buffer_load_dwordx2 {p(74)}, v116, s[12:15], s16 offen\nbuffer_load_dwordx2 {p(78)}, v116, s[12:15], s17 offen")
        a(f"s_add_u32 s9, s8, {128*514}\ns_add_u32 s10, s8, {256*514}\ns_add_u32 s11, s8, {384*514}")
        for r in range(4):
            a(f"buffer_load_dword v{80+r}, v117, s[32:35], s{8+r} offen\nbuffer_load_dword v{84+r}, v117, s[36:39], s{8+r} offen")
    fft_loads()
    dt_calc()
    a(f"s_mul_i32 s53, s26, {L_TBS}\ns_lshl_b32 s54, s27, 8\ns_add_u32 s54, s54, s53\ns_add_u32 m0, s54, {L_TB}")
    a("s_waitcnt vmcnt(13)")
    st(a, 2)
    for i in range(6): a(f"v_lshlrev_b32 v{16+i}, 16, v{16+i}")
    a("v_mul_f32 v11, v14, v16\nv_mul_f32 v12, v14, v17\nv_mul_f32 v11, v13, v11\nv_mul_f32 v12, 0.15915494, v12")
    a(f"v_pk_mul_f32 {p(18)}, {p(18)}, {p(14)} op_sel_hi:[1,0]")
    zpow(a, [(22, None, 30), (24, "0x43800000", 32)], 11, 12)
    Z1, Z256, Z2, Z4, C0 = 22, 24, 26, 28, 34
    cmul_seq(a, [(C0, 20, 18, 30), (Z2, Z1, Z1, 32)])
    wr = [0]
    def put(row, src):
        t = 60 + (wr[0] % 4); wr[0] += 1
        a(f"v_cvt_pk_bf16_f32 v{t}, v{src}, -v{src+1}\nds_write_addtid_b32 v{t} offset:{RS*row}")
    cmul_seq(a, [(38, C0, Z1, 30), (40, C0, Z256, 32), (36, C0, Z2, 44), (Z4, Z2, Z2, 46)])
    put(0, C0); put(1, 38); put(8, 40); put(2, 36)
    cmul_seq(a, [(42, 40, Z2, 30), (48, 40, Z4, 32), (40, 40, Z256, 44), (38, 38, Z2, 46), (36, 36, Z2, 50)])
    put(9, 42); put(10, 48); put(12, 40); put(3, 38); put(4, 36)
    cmul_seq(a, [(42, 48, Z2, 30), (48, 40, Z4, 32), (40, 40, Z256, 44), (38, 38, Z2, 46), (36, 36, Z2, 50)])
    put(11, 42); put(13, 48); put(14, 40); put(5, 38); put(6, 36)
    cmul_seq(a, [(48, 40, Z4, 32), (40, 40, Z256, 44), (38, 38, Z2, 46), (52, Z256, Z256, 50)])
    put(15, 48); put(16, 40); put(7, 38)
    cmul_seq(a, [(42, 40, Z256, 30), (48, 40, 52, 32)])
    put(17, 42); put(18, 48)
    cmul_seq(a, [(42, 42, 52, 30), (48, 48, 52, 32)])
    put(19, 42); put(20, 48)
    a("s_waitcnt lgkmcnt(0)")
    st(a, 3)
    a("s_barrier")
    a("s_waitcnt vmcnt(12)")
    a("P2_EXP:")
    a("s_waitcnt lgkmcnt(0)")
    st(a, 4)
    a("s_barrier")
    a("ds_read_b128 v[16:19], v126 offset:16\nds_read_b64 v[20:21], v126 offset:8\nds_read_b32 v22, v126 offset:32")
    a("s_waitcnt lgkmcnt(2)")
    a("v_cndmask_b32 v17, v17, v16, s[56:57]\nv_cndmask_b32 v18, v18, v16, s[58:59]")
    a("v_perm_b32 v24, v16, v16, v122\nv_perm_b32 v25, v18, v17, v123")
    a("s_waitcnt lgkmcnt(0)")
    a("v_perm_b32 v26, v22, v18, v124\nv_perm_b32 v27, v22, v19, v125\nv_perm_b32 v28, v16, v21, v121\nv_perm_b32 v23, v16, v20, v120")
    a("ds_write_b128 v127, v[24:27]")
    a("v_mov_b32 v29, v24\nv_mov_b32 v30, v25\nv_mov_b32 v31, v26")
    a(f"ds_write_b128 v127, v[28:31] offset:{2*K_CS}")
    a("v_alignbit_b32 v32, v24, v28, 16\nv_alignbit_b32 v33, v25, v24, 16\nv_alignbit_b32 v34, v26, v25, 16\nv_alignbit_b32 v35, v27, v26, 16")
    a(f"ds_write_b128 v127, v[32:35] offset:{K_CS}")
    a("v_alignbit_b32 v36, v28, v23, 16\nv_mov_b32 v37, v32\nv_mov_b32 v38, v33\nv_mov_b32 v39, v34")
    a(f"ds_write_b128 v127, v[36:39] offset:{3*K_CS}")
    a("s_cmp_ge_u32 s3, 4")
    a("s_waitcnt lgkmcnt(0)")
    a("s_barrier")
    st(a, 5)
    a("s_cbranch_scc1 P2_FFT")
    SET = (16, 48)
    ACC = 80
    def ldA(s, e, off, half):
        r = SET[s] + 4*e + 2*half
        a(f"ds_read_b64_tr_b16 {p(r)}, v112 offset:{off + 1024*e + (8 if half == 0 else 0)}")
    def ldG(s, c, off): a(f"ds_read_b128 {q(SET[s]+16+4*c)}, v113 offset:{off + 256*c}")
    def mm(s, e, cb): a(f"{MF32} {q(ACC+4*cb)}, {q(SET[s]+4*e)}, {q(SET[s]+16+4*(cb-e))}, {q(ACC+4*cb)}")
    ldA(0,0,0,0); ldA(0,0,0,1)
    for c in range(4): ldG(0, c, 16)
    for e in range(1, 4): ldA(0,e,0,0); ldA(0,e,0,1)
    for i in range(16): a(f"v_mov_b32 v{ACC+i}, 0")
    a("s_mov_b32 s55, 8")
    a("P2_CL:")
    def step(P, Q, offA, offG, pre=None):
        W = lambda n: a(f"s_waitcnt lgkmcnt({n})")
        W(9); mm(P,0,0)
        if pre: a(pre)
        ldA(Q,0,offA,0); ldA(Q,0,offA,1)
        W(10); mm(P,0,1); ldG(Q,0,offG)
        W(10); mm(P,0,2); ldG(Q,1,offG)
        W(10); mm(P,0,3); ldG(Q,2,offG)
        W(9); mm(P,1,1); ldG(Q,3,offG)
        mm(P,1,2); ldA(Q,1,offA,0)
        mm(P,1,3); ldA(Q,1,offA,1)
        W(10); mm(P,2,2); ldA(Q,2,offA,0)
        mm(P,2,3); ldA(Q,2,offA,1)
        W(10); mm(P,3,3); ldA(Q,3,offA,0); ldA(Q,3,offA,1)
    step(0, 1, 64, 0)
    step(1, 0, 0, 16, pre="v_add_u32 v112, 128, v112\nv_subrev_u32 v113, 32, v113\ns_sub_u32 s55, s55, 1\ns_cmp_lg_u32 s55, 0")
    a("s_cbranch_scc1 P2_CL")
    st(a, 6)
    a(f"s_mul_i32 s53, s26, {E_CH}\ns_lshl_b32 s54, s27, 5\ns_add_u32 s53, s53, s54\ns_add_u32 s53, s53, {L_EB}")
    a("v_mul_u32_u24 v15, 72, v10\nv_lshl_add_u32 v15, v4, 3, v15\nv_add_u32 v15, s53, v15")
    for cb in range(4):
        a(f"v_cvt_pk_bf16_f32 v{96+2*cb}, v{ACC+4*cb}, v{ACC+4*cb+1}\nv_cvt_pk_bf16_f32 v{97+2*cb}, v{ACC+4*cb+2}, v{ACC+4*cb+3}")
        a(f"ds_write_b64 v15, {p(96+2*cb)} offset:{1152*cb + (64 if cb >= 2 else 0)}")
    a("P2_EPI:")
    a("v_lshrrev_b32 v3, 6, v0\nv_mul_u32_u24 v3, 72, v3\nv_and_b32 v5, 62, v0\nv_add_u32 v3, v3, v5\nv_and_b32 v5, 1, v0")
    a(f"v_mul_u32_u24 v5, {2304+64}, v5\nv_add_u32 v3, v3, v5\nv_add_u32 v3, {L_EB}, v3\nv_lshlrev_b32 v5, 4, v0")
    a(f"s_lshl_b32 s53, s2, 13\ns_add_u32 s53, s53, {AT_OFF}\ns_mov_b32 s54, 0x05040100")
    a("s_waitcnt lgkmcnt(0)")
    a("s_barrier")
    for i in range(4): a(f"ds_read_u16 v{16+i}, v3 offset:{576*i}\nds_read_u16 v{20+i}, v3 offset:{576*i + E_CH}")
    for i in range(4): a(f"s_waitcnt lgkmcnt({6-2*i})\nv_perm_b32 v{24+i}, v{20+i}, v{16+i}, s54")
    a("buffer_store_dwordx4 v[24:27], v5, s[12:15], s53 offen")
    end(a, 1)
    a("P2_FFT:")
    FRE, FIM, TC, TS = 96, 100, 104, 108
    a("s_waitcnt vmcnt(8)")
    a("v_swap_b32 v73, v76\nv_swap_b32 v75, v78")
    col = (72, 76); D = ((16, 20), (24, 28)); T = ((32, 36), (40, 44))
    for c in range(2): a(f"{MF32} {q(D[c][0])}, {q(col[c])}, {q(FRE)}, 0\n{MF32} {q(D[c][1])}, {q(col[c])}, {q(FIM)}, 0")
    for c in range(2):
        twiddle(a, D[c][0], D[c][1], TC, TS, T[c][0], T[c][1])
        for r in range(4): a(f"v_cvt_pk_bf16_f32 v{col[c]+r}, v{T[c][0]+r}, v{T[c][1]+r}")
        a(f"{MF32} {q(D[c][0])}, {q(FRE)}, {q(col[c])}, 0\n{MF32} {q(D[c][1])}, {q(FIM)}, {q(col[c])}, 0")
    a("s_waitcnt vmcnt(0)")
    for r in range(4): a(f"v_lshlrev_b32 v{48+r}, 16, v{80+r}\nv_lshlrev_b32 v{52+r}, 16, v{84+r}")
    for r in range(4): a(f"v_and_b32 v{56+r}, 0xffff0000, v{80+r}\nv_and_b32 v{60+r}, 0xffff0000, v{84+r}")
    for c in range(2):
        twiddle(a, D[c][0], D[c][1], 48 + 8*c, 52 + 8*c, T[c][0], T[c][1], conj=True)
        for r in range(4): a(f"v_cvt_pk_bf16_f32 v{col[c]+r}, v{T[c][1]+r}, v{T[c][0]+r}")
        a(f"{MF32} {q(D[c][0])}, {q(col[c])}, {q(FRE)}, 0\n{MF32} {q(D[c][1])}, {q(col[c])}, {q(FIM)}, 0")
    for c in range(2):
        twiddle(a, D[c][0], D[c][1], TC, TS, T[c][0], T[c][1])
        for r in range(4): a(f"v_cvt_pk_bf16_f32 v{col[c]+r}, v{T[c][0]+r}, v{T[c][1]+r}")
        a(f"{MF32} {q(D[c][0])}, {q(FRE)}, {q(col[c])}, 0\n{MF32} {q(D[c][1])}, {q(FIM)}, {q(col[c])}, 0")
    for c in range(2):
        for r in range(4): a(f"v_cvt_pk_bf16_f32 v{48+2*r+c}, v{D[c][1]+r}, v{D[c][0]+r}")
    for r in range(4): a(f"buffer_store_dwordx2 {p(48+2*r)}, v118, s[12:15], s63 offen offset:{512*r}")
    st(a, 6)
    a("s_or_b32 s5, s61, s62\ns_cmp_lg_u32 s5, 0\ns_cbranch_scc1 P2_EPI")
    a(f"s_mov_b32 s61, 1\ns_add_u32 s4, s4, 1024\ns_add_u32 s8, s8, 512\ns_add_u32 s63, s63, {32*8192}")
    fft_loads()
    a("s_branch P2_FFT")
    a("P2_EXIT:\ns_endpgm")
    F = p2_fft_tables()
    stg = np.zeros((64, 4), np.uint32)
    for l in range(64):
        n = l & 15
        stg[l, 0] = 2 * BCOL[n]; stg[l, 1] = 2 * (BCOL[16 + n] if 16 + n < 21 else 2049)
    tab = np.concatenate([stg.reshape(-1)] + [F[k].reshape(-1) for k in ("Fre", "Fim", "Tc", "Ts")])
    return a, tab, expand_table(), 128

def build(path):
    a1, t1, v1 = gen_p1(); a2, tab2, exp2, v2 = gen_p2(); a3, t3, v3 = gen_p3()
    txt = ""
    for lab, aa in (("p1_kernel", a1), ("p2_kernel", a2), ("p3_kernel", a3)):
        body, n = aa.finish()
        txt += kernel_begin(lab) + ("P2_CODE:\n" if lab == "p2_kernel" else "") + body
        print(lab, "instructions:", len(aa.lines), "nops inserted:", n, file=sys.stderr)
    txt += "CODE_END:\n"
    rod = table_text("P2_TAB", np.concatenate([tab2, exp2.reshape(-1)])) + t3 + "TAB_END:\n" + t1
    launches = [("p1_kernel", 512, 320, P1_LDS), ("p2_kernel", 256, 512, P2_LDS), ("p3_kernel", 256, 320, P3_LDS)]
    descs = [descriptor("p1_kernel", v1), descriptor("p2_kernel", v2), descriptor("p3_kernel", v3)]
    open(path, "w").write(make_file(launches, txt, descs) + rod)

if __name__ == "__main__":
    for o in sys.argv[2:]:
        k, v = o.split("="); setattr(cfg, k, int(v))
    build(sys.argv[1])
```

```python
import re
NAME = "gated_mix__ssm_conv_s4__spectral_gfnet__prompt"
HEADER = open("cdna_kernels/" + NAME + ".s.ref").read().split("; Override launch")[0]

TRANS = ("v_exp_f32", "v_log_f32", "v_rcp_f32", "v_rsq_f32", "v_sqrt_f32", "v_sin_f32", "v_cos_f32")
REG_RE = re.compile(r"^-?(?:abs\()?([vsa])(\d+)\)?$|^-?([vsa])\[(\d+):(\d+)\]$")

def regs(op):
    op = op.strip()
    if op in ("vcc",): return {"vcc"}
    if op in ("exec",): return {"exec"}
    if op == "m0": return {"m0"}
    m = REG_RE.match(op)
    if not m: return set()
    if m.group(1): return {m.group(1) + m.group(2)}
    return {m.group(3) + str(i) for i in range(int(m.group(4)), int(m.group(5)) + 1)}

class Ins:
    def __init__(self, text):
        self.text = text
        t = text.split(";")[0].strip()
        self.label = t[:-1] if t.endswith(":") else None
        self.isins = bool(t) and self.label is None and not t.startswith(".")
        self.defs = set(); self.uses = set(); self.kind = None; self.states = 0
        self.srcC = set(); self.srcAB = set(); self.target = None; self.dpp = False
        if not self.isins: return
        parts = t.split(None, 1)
        mn = self.mn = parts[0]
        rest = parts[1] if len(parts) > 1 else ""
        ops = []; cur = ""; depth = 0
        for ch in rest:
            if ch == "[": depth += 1
            if ch == "]": depth -= 1
            if ch == "," and depth == 0: ops.append(cur.strip()); cur = ""
            else: cur += ch
        if cur.strip(): ops.append(cur.strip())
        mods = ""
        if ops:
            last = ops[-1].split(None, 1)
            ops[-1] = last[0]
            if len(last) > 1: mods = last[1]
        self.ops = ops; self.mods = mods
        self.states = 1
        R = [regs(o) for o in ops]
        allr = lambda l: set().union(*l) if l else set()
        if mn == "s_nop":
            self.kind = "nop"; self.states = int(ops[0], 0) + 1
        elif mn.startswith("v_mfma"):
            self.kind = "mfma"; self.defs = R[0]; self.srcAB = R[1] | R[2]; self.srcC = R[3]; self.uses = self.srcAB | self.srcC
            self.passes = 8 if "32x32" in mn else 4
        elif mn.startswith("v_"):
            self.kind = "valu"
            self.dpp = ("row_" in mods or "quad_perm" in mods or "wave_" in mods)
            self.trans = mn.replace("_e32", "").replace("_e64", "") in TRANS
            self.dot = mn.startswith("v_dot")
            if mn.startswith("v_swap") or mn.startswith("v_permlane"):
                self.defs = R[0] | R[1]; self.uses = R[0] | R[1]
            elif mn.startswith("v_cmp"):
                self.defs = R[0]; self.uses = allr(R[1:])
            elif mn.startswith(("v_add_co", "v_sub_co", "v_addc_co", "v_subb_co")):
                self.defs = R[0] | R[1]; self.uses = allr(R[2:])
            else:
                self.defs = R[0]; self.uses = allr(R[1:])
                if mn.startswith(("v_fmac", "v_dot2c", "v_writelane")) or self.dpp: self.uses |= R[0]
        elif mn.startswith("ds_"):
            self.kind = "ds"
            if mn.startswith("ds_read") or mn.startswith("ds_bpermute") or mn.startswith("ds_swizzle"):
                self.defs = R[0]; self.uses = allr(R[1:])
            else: self.uses = allr(R)
            if "addtid" in mn: self.uses |= {"m0"}
        elif mn.startswith(("buffer_", "global_")):
            self.kind = "vmem"
            lds = " lds" in (" " + mods) or "_lds_" in mn
            if "load" in mn and not lds:
                self.defs = R[0]; self.uses = allr(R[1:])
            else:
                self.uses = allr(R)
            if lds: self.uses |= {"m0"}
            self.wide = ("store" in mn) and ("x3" in mn or "x4" in mn)
            if self.wide:
                self.data = R[0] if mn.startswith("buffer_") else R[1]
        elif mn.startswith("s_"):
            self.kind = "salu"
            if mn.startswith(("s_cbranch", "s_branch")):
                self.target = ops[0]
            elif mn.startswith(("s_cmp", "s_waitcnt", "s_barrier", "s_endpgm", "s_setprio", "s_sleep", "s_bitcmp")):
                self.uses = allr(R)
            else:
                self.defs = R[0]; self.uses = allr(R[1:])
                if "saveexec" in mn: self.defs |= {"exec"}
        else:
            raise ValueError("unknown instr " + text)

def need(p, c):
    n = 0
    pv = {r for r in p.defs if r[0] in "va"}; ps = {r for r in p.defs if r[0] == "s" or r in ("vcc", "exec")}
    if p.kind == "valu":
        if c.kind == "mfma" and pv & c.uses: n = max(n, 2)
        if c.kind == "valu":
            if c.dpp and pv & c.uses: n = max(n, 2)
            if c.mn.startswith(("v_readlane", "v_readfirstlane")) and pv & c.uses: n = max(n, 1)
            if c.mn.startswith("v_permlane") and pv & c.uses: n = max(n, 2)
            if p.trans and pv & c.uses: n = max(n, 1)
            if ps & c.uses:
                n = max(n, 4 if c.mn.startswith(("v_readlane", "v_writelane")) else 2)
            if p.dot and (pv & (c.uses | c.defs)):
                if c.mn == p.mn and not (pv & (regs(c.ops[1]) | regs(c.ops[2]))): pass
                else: n = max(n, 3)
            if "exec" in p.defs and c.dpp: n = max(n, 5)
        if p.dot and c.kind in ("mfma", "ds", "vmem") and pv & c.uses: n = max(n, 3)
        if c.kind == "vmem" and ps & c.uses: n = max(n, 5)
        if c.kind == "mfma" and "exec" in p.defs: n = max(n, 4)
        if c.kind == "salu" and ps & c.uses: n = max(n, 1)
    if p.kind == "salu":
        if "m0" in p.defs and "m0" in c.uses and c.kind in ("ds", "vmem"): n = max(n, 1)
    if p.kind == "mfma":
        k = {4: (6, 8, 3), 8: (10, 12, 7)}[p.passes]
        if c.kind == "mfma":
            if p.defs & c.srcAB: n = max(n, k[1])
            if p.defs & c.srcC and not (p.defs == c.srcC and p.passes == c.passes): n = max(n, k[0])
            if p.defs & c.defs and not (p.defs == c.srcC): n = max(n, k[1])
        elif c.kind in ("valu", "ds", "vmem"):
            if p.defs & (c.uses | c.defs): n = max(n, k[1])
            if c.kind == "valu" and p.srcC & c.defs: n = max(n, k[2])
    if p.kind == "vmem" and getattr(p, "wide", False):
        if p.data & c.defs: n = max(n, 2 if c.kind == "valu" else 1)
    return n

WINDOW = 14
def fix_hazards(lines):
    ins = [Ins(l) for l in lines]
    changed = True; total = 0
    while changed:
        changed = False
        labels = {x.label: i for i, x in enumerate(ins) if x.label}
        def check(hist, j):
            c = ins[j]; dist = 0; pad = 0
            for p in reversed(hist):
                if dist >= WINDOW: break
                if p.kind != "nop":
                    pad = max(pad, need(p, c) - dist)
                dist += p.states
            return pad
        hist = []
        for j, c in enumerate(ins):
            if not c.isins: continue
            pad = check(hist, j)
            if pad > 0:
                ins.insert(j, Ins(f"s_nop {pad-1}")); total += 1; changed = True; break
            hist.append(c)
            if c.mn in ("s_branch", "s_endpgm"): hist = []
        if changed: continue
        hist = []
        for j, c in enumerate(ins):
            if not c.isins: continue
            hist.append(c)
            if c.target is not None and c.target in labels:
                h2 = list(hist[-WINDOW:]); k = labels[c.target]; seen = 0
                while k < len(ins) and seen < WINDOW:
                    d = ins[k]
                    if d.isins:
                        pad = check(h2, k)
                        if pad > 0:
                            ins.insert(k, Ins(f"s_nop {pad-1}")); total += 1; changed = True; break
                        h2.append(d); seen += d.states
                        if d.mn in ("s_branch", "s_endpgm"): break
                    k += 1
                if changed: break
            if c.mn in ("s_branch", "s_endpgm"): hist = []
    return [x.text for x in ins], total

import subprocess, tempfile, os
def sizes_of(lines):
    txt = "\n".join(lines) + "\n"
    r = subprocess.run(["llvm-mc", "-triple", "amdgcn-amd-amdhsa", "-mcpu=gfx950", "-show-encoding"],
                       input=txt, capture_output=True, text=True)
    assert r.returncode == 0, r.stderr[:3000]
    enc = [l.split("encoding: [")[1].count(",") + 1 for l in r.stdout.split("\n") if "encoding: [" in l]
    out = []; k = 0
    for l in lines:
        if Ins(l).isins: out.append(enc[k]); k += 1
        else: out.append(0)
    assert k == len(enc)
    return out
NOPROMOTE = ("v_readfirstlane", "v_swap", "v_permlane", "v_nop", "v_fmac", "v_dot2c")
def align_runs(lines, minrun=6, noprun=10):
    lines = list(lines); sz = sizes_of(lines)
    i = 0; off = 0; last_run_end = 0; fixes = 0
    while i < len(lines):
        if lines[i].startswith(".p2align"):
            off = 0; i += 1; last_run_end = i; continue
        if sz[i] == 8 and off % 8 == 4:
            j = i; n = 0
            while j < len(lines) and sz[j] in (0, 8) and not lines[j].startswith('.p2align'):
                if sz[j] == 8: n += 1
                j += 1
            if n >= minrun:
                k = i - 1; done = False
                while k >= last_run_end and k >= i - 12:
                    t = lines[k]
                    if sz[k] == 4 and t.startswith("v_") and not t.startswith(NOPROMOTE) and "_e32" not in t:
                        mn = t.split(None, 1)
                        lines[k] = mn[0] + "_e64 " + mn[1]; sz[k] = 8; off += 4; done = True; break
                    k -= 1
                if not done and n >= noprun:
                    at = i - 1 if lines[i-1].startswith("s_getpc") else i
                    lines.insert(at, "s_nop 0"); sz.insert(at, 4); off += 4; i += 1; j += 1; done = True
                fixes += done
            while i < j:
                off += sz[i]; i += 1
            last_run_end = i
            continue
        if sz[i] == 8:
            j = i
            while j < len(lines) and sz[j] in (0, 8): j += 1
            if j - i >= minrun: last_run_end = j
        off += sz[i]; i += 1
    return lines, sum(sz)

class Asm:
    def __init__(self): self.lines = []
    def __call__(self, s=""):
        for l in s.split("\n"):
            l = l.strip()
            if l: self.lines.append(l)
    def finish(self):
        out, n = fix_hazards(self.lines)
        out, self.nbytes = align_runs(out)
        return "\n".join(("" if (l.endswith(":") or l.startswith(".")) else "    ") + l for l in out) + "\n", n

def kernel_begin(label):
    return f".globl {label}\n.p2align 8\n.type {label},@function\n{label}:\n"

def descriptor(label, vgpr, sgpr=102):
    accum = (vgpr + 3) // 4 * 4
    return f""".amdhsa_kernel {label}
  .amdhsa_next_free_vgpr {vgpr}
  .amdhsa_next_free_sgpr {sgpr}
  .amdhsa_accum_offset {accum}
  .amdhsa_group_segment_fixed_size 0
  .amdhsa_kernarg_size 128
  .amdhsa_user_sgpr_count 2
  .amdhsa_user_sgpr_kernarg_segment_ptr 1
  .amdhsa_system_sgpr_workgroup_id_x 1
.end_amdhsa_kernel
"""
def table_text(label, arr, align=7):
    import numpy as np
    w = np.asarray(arr, dtype=np.uint32).reshape(-1)
    s = f".p2align {align}\n{label}:\n"
    for i in range(0, len(w), 8):
        s += ".long " + ",".join(f"0x{x:x}" for x in w[i:i+8]) + "\n"
    return s
def make_file(launches, text, descs):
    s = HEADER
    for (label, grid, block, lds) in launches:
        s += f"; @launch kernel={label} grid=({grid},1,1) block=({block},1,1) lds={lds}\n"
    s += '.amdgcn_target "amdgcn-amd-amdhsa--gfx950"\n.text\n' + text
    s += '.section .rodata,"a"\n'
    for d in descs: s += ".p2align 6\n" + d
    return s
```

```python
import sys, numpy as np
from asmgen import *
from tables import *

X1_OFF = 0x000000; X1_ROW = 1024; X1_S0 = 8192
XN_OFF = 0x200000
WN_OFF = 0x210000
YN_OFF = 0x218000
G_OFF  = 0x220000
UT_OFF = 0x300000
KC_OFF = 0x500000
Y1_OFF = 0x600000
AT_OFF = 0x900000
WS_USED = 0xB00000
STAMP = 0x8000000

class Cfg:
    stamps = 0
    prefetch_w = 0
    prefetch_code = 1
    prio = 1
    nofft = 0
    unroll = 4
cfg = Cfg()

def srd(a, s, lo, size):
    a(f"s_mov_b32 s{s}, s{lo}\ns_mov_b32 s{s+1}, s{lo+1}\ns_mov_b32 s{s+2}, {size}\ns_mov_b32 s{s+3}, 0x20000")
def srd_pre(a, s, size):
    a(f"s_mov_b32 s{s+2}, {size}\ns_mov_b32 s{s+3}, 0x20000")
def st(a, i):
    if cfg.stamps: a(f"s_memtime s[{64+2*i}:{65+2*i}]")
def st_begin(a):
    if cfg.stamps:
        a("s_memrealtime s[80:81]\ns_memtime s[64:65]")
        for i in range(1, 8): a(f"s_mov_b64 s[{64+2*i}:{65+2*i}], 0")
def end(a, kidx):
    if not cfg.stamps:
        a("s_endpgm"); return
    a("s_waitcnt vmcnt(0) lgkmcnt(0)")
    a("s_memtime s[78:79]\ns_memrealtime s[82:83]")
    a("s_load_dwordx2 s[88:89], s[0:1], 120\ns_waitcnt lgkmcnt(0)")
    a(f"s_add_u32 s88, s88, {STAMP + kidx*0x200000}\ns_addc_u32 s89, s89, 0")
    a("s_mov_b32 s92, s88\ns_mov_b32 s93, s89\ns_mov_b32 s94, 0x200000\ns_mov_b32 s95, 0x20000")
    a("s_mov_b64 exec, 1")
    a("s_getreg_b32 s84, hwreg(HW_REG_HW_ID)\ns_getreg_b32 s85, hwreg(HW_REG_XCC_ID)")
    for i in range(24): a(f"v_mov_b32 v{10+i}, s{64+i}")
    a("s_lshl_b32 s90, s2, 3\ns_add_u32 s90, s90, s3\ns_lshl_b32 s90, s90, 7\nv_mov_b32 v9, s90")
    for i in range(6): a(f"buffer_store_dwordx4 v[{10+4*i}:{13+4*i}], v9, s[92:95], 0 offen offset:{16*i}")
    a("s_endpgm")

def table_base(a, s, label):
    a(f"s_getpc_b64 s[{s}:{s+1}]\ns_add_u32 s{s}, s{s}, {label}@rel32@lo+4100\ns_addc_u32 s{s+1}, s{s+1}, {label}@rel32@hi+4108")

def lane_base(a, vd, vl, vn, vt):
    a(f"v_and_b32 v{vd}, 16, v{vl}\nv_cmp_eq_u32 s[40:41], 0, v{vd}")
    a(f"v_cmp_eq_u32 vcc, 0, v{vn}\nv_sub_u32 v{vt}, 32, v{vn}\nv_lshrrev_b32 v{vd}, 5, v{vl}")
    a(f"v_cndmask_b32 v{vt}, v{vt}, 16, vcc\nv_cndmask_b32 v{vt}, v{vt}, v{vn}, s[40:41]")
    a(f"v_lshl_add_u32 v{vd}, v{vd}, 7, v{vt}")

def twiddle(a, re, im, c, s, ore, oim, conj=False, packed=True):
    if not packed:
        for r in range(4): a(f"v_mul_f32 v{ore+r}, v{re+r}, v{c+r}\nv_mul_f32 v{oim+r}, v{im+r}, v{c+r}")
        for r in range(4):
            if conj: a(f"v_fma_f32 v{ore+r}, -v{im+r}, v{s+r}, v{ore+r}\nv_fmac_f32 v{oim+r}, v{re+r}, v{s+r}")
            else: a(f"v_fmac_f32 v{ore+r}, v{im+r}, v{s+r}\nv_fma_f32 v{oim+r}, -v{re+r}, v{s+r}, v{oim+r}")
        return
    n1 = "" if not conj else " neg_lo:[1,0,0] neg_hi:[1,0,0]"
    n2 = " neg_lo:[1,0,0] neg_hi:[1,0,0]" if not conj else ""
    for h in (0, 2):
        a(f"v_pk_mul_f32 v[{ore+h}:{ore+h+1}], v[{re+h}:{re+h+1}], v[{c+h}:{c+h+1}]")
        a(f"v_pk_mul_f32 v[{oim+h}:{oim+h+1}], v[{im+h}:{im+h+1}], v[{c+h}:{c+h+1}]")
    for h in (0, 2):
        a(f"v_pk_fma_f32 v[{ore+h}:{ore+h+1}], v[{im+h}:{im+h+1}], v[{s+h}:{s+h+1}], v[{ore+h}:{ore+h+1}]{n1}")
        a(f"v_pk_fma_f32 v[{oim+h}:{oim+h+1}], v[{re+h}:{re+h+1}], v[{s+h}:{s+h+1}], v[{oim+h}:{oim+h+1}]{n2}")

def q(r): return f"v[{r}:{r+3}]"
def p(r): return f"v[{r}:{r+1}]"
MF32 = "v_mfma_f32_16x16x32_bf16"
MF16 = "v_mfma_f32_16x16x16_bf16"

def pk2(a, d, x, y, t): a(f"v_pk_fma_f32 {p(d)}, {p(x)}, {p(y)}, {p(t)} op_sel:[1,1,0] op_sel_hi:[1,0,1] neg_lo:[0,1,0]")
def pk1(a, x, y, t): a(f"v_pk_mul_f32 {p(t)}, {p(x)}, {p(y)} op_sel_hi:[0,1]")
def cmul_seq(a, items):
    for (d, x, y, t) in items: pk1(a, x, y, t)
    for (d, x, y, t) in items: pk2(a, d, x, y, t)
def zpow(a, items, ar, th):
    for (d, pw, t) in items:
        if pw is None: a(f"v_exp_f32 v{t}, v{ar}\nv_fract_f32 v{t+1}, v{th}")
        else: a(f"v_mul_f32 v{t}, {pw}, v{ar}\nv_mul_f32 v{t+1}, {pw}, v{th}")
    for (d, pw, t) in items:
        if pw is not None: a(f"v_exp_f32 v{t}, v{t}\nv_fract_f32 v{t+1}, v{t+1}")
    for (d, pw, t) in items: a(f"v_cos_f32 v{d}, v{t+1}\nv_sin_f32 v{d+1}, v{t+1}")
    for (d, pw, t) in items: a(f"v_pk_mul_f32 {p(d)}, {p(d)}, {p(t)} op_sel_hi:[1,0]")

RS = 544
P1_EX = 8192; P1_EXS = 2064; P1_UX = P1_EX + 4 * P1_EXS; P1_GW = P1_UX + 8192
P1_TB = 32 * RS
P1_LDS = 64 * RS
def gen_p1():
    a = Asm()
    st_begin(a)
    a("s_load_dwordx2 s[12:13], s[0:1], 120\ns_load_dwordx2 s[8:9], s[0:1], 0\ns_load_dwordx2 s[16:17], s[0:1], 96")
    a("s_load_dwordx8 s[32:39], s[0:1], 8\ns_load_dwordx8 s[40:47], s[0:1], 40\ns_load_dwordx4 s[48:51], s[0:1], 80")
    a("v_readfirstlane_b32 s3, v0\nv_and_b32 v1, 63, v0\nv_lshlrev_b32 v2, 4, v1\ns_lshr_b32 s3, s3, 6")
    a("s_cmpk_lt_u32 s2, 512\ns_cbranch_scc1 P1_K")
    a("s_cmpk_ge_u32 s2, 768\ns_cbranch_scc1 P1_EXIT")
    table_base(a, 20, "P1_TAB")
    for i in range(8): a(f"global_load_dwordx4 {q(16+4*i)}, v2, s[20:21] offset:{1024*i-4096}")
    srd_pre(a, 8, 2097152); srd_pre(a, 12, WS_USED); srd_pre(a, 16, 1024)
    a("s_and_b32 s30, s2, 7\ns_bfe_u32 s31, s2, 0x50003\ns_lshl_b32 s52, s30, 5\ns_add_u32 s52, s52, s31\ns_lshr_b32 s53, s31, 2\ns_lshl_b32 s53, s53, 3\ns_add_u32 s30, s30, s53\ns_and_b32 s31, s31, 3")
    a("s_lshl_b32 s22, s52, 10\ns_lshl_b32 s23, s3, 19\ns_add_u32 s22, s22, s23\ns_lshl_b32 s24, s3, 11\ns_add_u32 s23, s22, 0x40000")
    a("v_lshrrev_b32 v4, 4, v1\nv_and_b32 v10, 15, v1")
    a("s_and_b32 s25, s3, 1\ns_lshl_b32 s25, s25, 2\nv_or_b32 v5, s25, v4\nv_lshlrev_b32 v6, 4, v10\nv_lshlrev_b32 v5, 5, v5\nv_xor_b32 v6, v5, v6\nv_lshl_add_u32 v6, v4, 10, v6")
    a("s_lshl_b32 s54, s30, 15\ns_lshl_b32 s55, s3, 13\ns_add_u32 s55, s54, s55\ns_lshl_b32 s56, s31, 8\ns_add_u32 s55, s55, s56\ns_add_u32 s56, s55, 4096")
    a(f"s_add_u32 s57, s24, {P1_UX}\ns_mov_b32 m0, s24")
    a("s_waitcnt lgkmcnt(0)")
    st(a, 1)
    a("buffer_load_dwordx4 v2, s[8:11], s22 offen lds\ns_add_u32 m0, s24, 1024\ns_nop 0")
    a("buffer_load_dwordx4 v2, s[8:11], s23 offen lds\ns_mov_b32 m0, s57\ns_nop 0")
    a("buffer_load_dwordx4 v6, s[8:11], s55 offen lds\ns_add_u32 m0, s57, 1024\ns_nop 0")
    a(f"buffer_load_dwordx4 v6, s[8:11], s56 offen lds\ns_mov_b32 m0, {P1_GW}\ns_nop 0")
    a("buffer_load_dwordx4 v2, s[16:19], 0 offen lds")
    a("s_branch P1_R")
    a("P1_K:")
    a("s_mov_b32 s30, s2\ns_and_b32 s27, s3, 1\ns_and_b32 s26, s30, 1\ns_lshl_b32 s28, s30, 8\ns_lshl_b32 s29, s27, 7\ns_add_u32 s28, s28, s29")
    a("v_lshl_add_u32 v5, v1, 1, s28\ns_lshr_b32 s29, s30, 1\ns_lshl_b32 s29, s29, 2\ns_lshl_b32 s52, s26, 4\ns_sub_u32 s52, 16, s52")
    a("v_mov_b32 v13, 0x3fb8aa3b\nv_lshrrev_b32 v4, 4, v1\nv_and_b32 v10, 15, v1")
    srd_pre(a, 12, WS_USED)
    a("s_lshl_b32 s54, s27, 8\ns_mov_b32 m0, s54\ns_cmp_ge_u32 s3, 2")
    a("s_waitcnt lgkmcnt(0)")
    st(a, 1)
    a("s_load_dword s30, s[44:45], s29\ns_load_dword s31, s[46:47], s29")
    a("global_load_ushort v11, v5, s[32:33]\nglobal_load_ushort v12, v5, s[34:35]")
    a("s_cbranch_scc0 P1_KA")
    for i in range(2, 6): a(f"global_load_ushort v{16+i}, v5, s[{32+2*i}:{33+2*i}]")
    a("s_branch P1_KB\nP1_KA:")
    a(f"v_lshl_add_u32 v15, s27, 4, v10\nv_mul_u32_u24 v15, {RS}, v15\nv_lshl_add_u32 v46, v4, 4, v15")
    a(f"v_mul_u32_u24 v15, {RS}, v10\nv_lshl_add_u32 v15, v4, 4, v15\nv_add_u32 v47, {P1_TB}, v15")
    a(f"s_lshl_b32 s53, s2, 11\ns_lshl_b32 s54, s27, 10\ns_add_u32 s53, s53, s54\ns_add_u32 s53, s53, {KC_OFF}")
    a("v_mov_b32 v20, 1.0\nv_mov_b32 v21, 0\nv_cmp_eq_u32 vcc, 0, v1")
    def dt_calc():
        a("s_waitcnt lgkmcnt(0)")
        a("s_lshl_b32 s30, s30, s52\ns_and_b32 s30, s30, 0xffff0000\nv_mul_f32 v14, s30, v13\nv_exp_f32 v14, v14")
        a("v_cvt_pk_bf16_f32 v14, v14, v14\nv_and_b32 v14, 0xffff0000, v14")
    dt_calc()
    a("s_lshl_b32 s31, s31, s52\ns_and_b32 s31, s31, 0xffff0000\ns_cmp_eq_u32 s27, 0\ns_cselect_b32 s31, s31, 0")
    a("v_mov_b32 v15, s31\nv_cndmask_b32 v45, 0, v15, vcc\nv_mul_f32 v13, v14, v13\nv_mul_f32 v14, 0.15915494, v14")
    a("s_waitcnt vmcnt(0)")
    st(a, 2)
    a("v_lshlrev_b32 v11, 16, v11\nv_lshlrev_b32 v12, 16, v12\nv_mul_f32 v11, v13, v11\nv_mul_f32 v12, v14, v12")
    zpow(a, [(22, "0x41000000", 30), (28, "0x42000000", 32)], 11, 12)
    cmul_seq(a, [(24, 22, 22, 30)]); cmul_seq(a, [(26, 24, 22, 30)])
    for it in range(8):
        for c in range(4): a(f"v_cvt_pk_bf16_f32 v{16+c}, v{20+2*c}, v{21+2*c}")
        for c in range(4):
            if it < 7: pk1(a, 20+2*c, 28, 30+2*c)
            a(f"ds_write_addtid_b32 v{16+c} offset:{RS*(4*it+c)}")
        if it < 7:
            for c in range(4): pk2(a, 20+2*c, 20+2*c, 28, 30+2*c)
    a("s_waitcnt lgkmcnt(0)")
    st(a, 3)
    a("s_barrier")
    def rd(ks):
        b = 48 + 12 * (ks % 4)
        a(f"ds_read_b128 {q(b)}, v46 offset:{64*ks}\nds_read_b128 {q(b+4)}, v47 offset:{64*ks}\nds_read_b128 {q(b+8)}, v47 offset:{64*ks + 16*RS}")
    for ks in range(4): rd(ks)
    for ks in range(8):
        b = 48 + 12 * (ks % 4)
        a(f"s_waitcnt lgkmcnt({3 * (min(ks + 3, 7) - ks)})")
        c0 = "0" if ks == 0 else q(16); c1 = "0" if ks == 0 else q(20)
        a(f"{MF32} {q(16)}, {q(b)}, {q(b+4)}, {c0}\n{MF32} {q(20)}, {q(b)}, {q(b+8)}, {c1}")
        if ks + 4 < 8: rd(ks + 4)
    a("v_add_f32 v16, v45, v16")
    for i in range(4): a(f"v_cvt_pk_bf16_f32 v{24+i}, v{16+2*i}, v{17+2*i}")
    a("buffer_store_dwordx4 v[24:27], v2, s[12:15], s53 offen")
    st(a, 4)
    end(a, 0)
    a("P1_KB:")
    a(f"s_add_u32 m0, s54, {P1_TB}")
    dt_calc()
    a("v_mul_f32 v13, v14, v13\nv_mul_f32 v15, 0.15915494, v14")
    a("s_waitcnt vmcnt(0)")
    st(a, 2)
    a("v_lshlrev_b32 v11, 16, v11\nv_lshlrev_b32 v12, 16, v12")
    for i in range(2, 6): a(f"v_lshlrev_b32 v{16+i}, 16, v{16+i}")
    a("v_mul_f32 v11, v13, v11\nv_mul_f32 v12, v15, v12")
    a(f"v_pk_mul_f32 {p(18)}, {p(18)}, {p(14)} op_sel_hi:[1,0]")
    zpow(a, [(22, None, 30), (24, "0x43800000", 32)], 11, 12)
    Z1, Z256, Z2, Z4, C0 = 22, 24, 26, 28, 34
    cmul_seq(a, [(C0, 20, 18, 30), (Z2, Z1, Z1, 32)])
    wr = [0]
    def put(row, src):
        t = 60 + (wr[0] % 4); wr[0] += 1
        a(f"v_cvt_pk_bf16_f32 v{t}, v{src}, -v{src+1}\nds_write_addtid_b32 v{t} offset:{RS*row}")
    cmul_seq(a, [(38, C0, Z1, 30), (40, C0, Z256, 32), (36, C0, Z2, 44), (Z4, Z2, Z2, 46)])
    put(0, C0); put(1, 38); put(8, 40); put(2, 36)
    cmul_seq(a, [(42, 40, Z2, 30), (48, 40, Z4, 32), (40, 40, Z256, 44), (38, 38, Z2, 46), (36, 36, Z2, 50)])
    put(9, 42); put(10, 48); put(12, 40); put(3, 38); put(4, 36)
    cmul_seq(a, [(42, 48, Z2, 30), (48, 40, Z4, 32), (40, 40, Z256, 44), (38, 38, Z2, 46), (36, 36, Z2, 50)])
    put(11, 42); put(13, 48); put(14, 40); put(5, 38); put(6, 36)
    cmul_seq(a, [(48, 40, Z4, 32), (40, 40, Z256, 44), (38, 38, Z2, 46), (52, Z256, Z256, 50)])
    put(15, 48); put(16, 40); put(7, 38)
    cmul_seq(a, [(42, 40, Z256, 30), (48, 40, 52, 32)])
    put(17, 42); put(18, 48)
    cmul_seq(a, [(42, 42, 52, 30), (48, 48, 52, 32)])
    put(19, 42); put(20, 48)
    a("s_waitcnt lgkmcnt(0)")
    st(a, 3)
    a("s_barrier")
    a("s_cmpk_ge_u32 s2, 256\ns_cbranch_scc1 P1_DONE")
    a("s_and_b32 s22, s2, 7\ns_lshr_b32 s23, s2, 3\ns_cmp_eq_u32 s3, 3\ns_cbranch_scc1 P1_PF")
    a("s_lshl_b32 s22, s22, 5\ns_add_u32 s22, s22, s23\nv_and_b32 v3, 7, v1\nv_lshl_add_u32 v3, s22, 3, v3\nv_mul_u32_u24 v4, 514, v3")
    a("global_load_ushort v6, v4, s[48:49] offset:512\nglobal_load_ushort v7, v4, s[50:51] offset:512")
    a(f"v_lshlrev_b32 v3, 1, v3\ns_mov_b32 s22, {WN_OFF}\ns_mov_b32 s23, {WN_OFF + 4096}")
    a("s_waitcnt vmcnt(1)\nbuffer_store_short v6, v3, s[12:15], s22 offen\ns_waitcnt vmcnt(1)\nbuffer_store_short v7, v3, s[12:15], s23 offen")
    a("P1_DONE:")
    end(a, 0)
    a("P1_PF:")
    if cfg.prefetch_code:
        table_base(a, 20, "P2_CODE"); table_base(a, 24, "P2_TAB")
        a("s_lshl_b32 s26, s23, 10\nv_add_u32 v3, s26, v2")
        a("v_min_u32 v5, CODE_END-P2_CODE-16, v3\nglobal_load_dwordx4 v[20:23], v5, s[20:21] offset:-4096")
        a("v_min_u32 v5, TAB_END-P2_TAB-16, v3\nglobal_load_dwordx4 v[24:27], v5, s[24:25] offset:-4096")
    if cfg.prefetch_w:
        a("s_lshl_b32 s23, s23, 6\ns_add_u32 s22, s22, s23\ns_mul_i32 s22, s22, 514")
        a("v_lshrrev_b32 v5, 3, v1\nv_mul_u32_u24 v5, 4112, v5\nv_and_b32 v6, 7, v1\nv_mul_u32_u24 v6, 73, v6\nv_add3_u32 v5, v5, v6, s22")
        a("global_load_ubyte v16, v5, s[48:49]\nglobal_load_ubyte v17, v5, s[50:51]")
    end(a, 0)
    a("P1_R:")
    a("v_bfe_u32 v3, v1, 1, 3\nv_lshl_add_u32 v5, v4, 9, s52\nv_mul_u32_u24 v5, v3, v5")
    a("v_and_b32 v6, 1, v1\nv_lshl_add_u32 v5, v6, 9, v5\nv_lshl_add_u32 v6, v3, 8, v5")
    a("v_cvt_f32_u32 v5, v5\nv_cvt_f32_u32 v6, v6\nv_mul_f32 v5, 0x3a000000, v5\nv_mul_f32 v6, 0x3a000000, v6")
    a("v_cos_f32 v7, v5\nv_sin_f32 v5, v5\nv_cos_f32 v8, v6\nv_sin_f32 v6, v6")
    a("v_cvt_pk_bf16_f32 v48, v7, v5\nv_cvt_pk_bf16_f32 v49, v8, v6")
    lane_base(a, 9, 1, 10, 11)
    a(f"s_mul_i32 s25, s3, {P1_EXS}\ns_add_u32 s25, s25, {P1_EX}")
    a("v_lshl_add_u32 v9, v9, 3, s25\nv_cndmask_b32 v50, 0, -1, vcc")
    a("s_mov_b32 s26, 0xffff\ns_cmp_eq_u32 s3, 0\ns_cselect_b32 s26, s26, -1\nv_mov_b32 v11, s26\nv_cndmask_b32 v51, -1, v11, vcc")
    a(f"v_mul_u32_u24 v14, {P1_EXS}, v4\ns_lshl_b32 s26, s3, 9\nv_add_u32 v14, {P1_EX}, v14\nv_lshl_add_u32 v11, v10, 5, v14\nv_add_u32 v11, s26, v11")
    a("v_lshlrev_b32 v12, 11, v4\nv_lshl_add_u32 v12, v10, 4, v12")
    a("s_lshl_b32 s27, s52, 13\ns_lshl_b32 s26, s3, 8\ns_add_u32 s27, s27, s26")
    a("v_lshl_add_u32 v13, v1, 3, s24\nv_lshlrev_b32 v15, 3, v1")
    a("v_bfe_u32 v7, v1, 2, 2\nv_and_b32 v8, 1, v4\nv_lshl_or_b32 v8, v8, 2, v7\ns_lshl_b32 s25, s3, 1\nv_xor_b32 v8, s25, v8")
    a(f"v_lshl_add_u32 v7, v4, 3, v7\nv_lshlrev_b32 v7, 8, v7\nv_lshl_add_u32 v7, v8, 5, v7\nv_and_b32 v8, 3, v1\nv_lshl_add_u32 v7, v8, 3, v7\nv_xor_b32 v8, 32, v7")
    a("v_lshlrev_b32 v5, 6, v10\nv_lshl_add_u32 v5, v4, 4, v5\nv_lshlrev_b32 v6, 3, v4")
    a(f"s_lshl_b32 s55, s31, 13\ns_add_u32 s54, s54, s55\ns_add_u32 s54, s54, s24\ns_add_u32 s54, s54, {UT_OFF}")
    a(f"s_lshl_b32 s55, s52, 5\ns_add_u32 s56, s55, {XN_OFF}\ns_lshl_b32 s57, s3, 3\ns_add_u32 s55, s55, s57\ns_add_u32 s55, s55, {G_OFF}")
    a("s_waitcnt vmcnt(3)")
    st(a, 2)
    a("ds_read_b64_tr_b16 v[52:53], v13\nds_read_b64_tr_b16 v[54:55], v13 offset:512")
    a("ds_read_b64_tr_b16 v[56:57], v13 offset:1024\nds_read_b64_tr_b16 v[58:59], v13 offset:1536")
    a("s_waitcnt lgkmcnt(2)")
    a(f"{MF32} {q(60)}, {q(52)}, {q(16)}, 0\n{MF32} {q(64)}, {q(52)}, {q(20)}, 0")
    a("s_waitcnt lgkmcnt(0)")
    a(f"{MF32} {q(68)}, {q(56)}, {q(16)}, 0\n{MF32} {q(72)}, {q(56)}, {q(20)}, 0")
    for e in range(2):
        re, im = 60 + 8*e, 64 + 8*e
        twiddle(a, re, im, 24, 28, 76, 80)
        B, Bm = (84, 88) if e else (16, 20)
        for r in range(4): a(f"v_cvt_pk_bf16_f32 v{B+r}, v{76+r}, v{80+r}")
        for r in range(4): a(f"v_and_b32 v{Bm+r}, v50, v{B+r}")
        a(f"{MF32} {q(re)}, {q(32)}, {q(B)}, 0\n{MF32} {q(im)}, {q(36)}, {q(B)}, 0")
        a(f"{MF32} {q(re)}, {q(40)}, {q(Bm)}, {q(re)}\n{MF32} {q(im)}, {q(44)}, {q(Bm)}, {q(im)}")
    for e in range(2):
        for r in range(4): a(f"v_cvt_pk_bf16_f32 v{92+2*r+e}, v{60+8*e+r}, v{64+8*e+r}")
    for r in range(4): a(f"ds_write_b64 v9, {p(92+2*r)} offset:{256*r}")
    a("s_waitcnt lgkmcnt(0)")
    st(a, 3)
    a("s_barrier")
    a("ds_read_b128 v[16:19], v11\nds_read_b128 v[20:23], v11 offset:16\nds_read_b64 v[24:25], v14")
    a("s_waitcnt lgkmcnt(2)")
    a("v_and_b32 v16, v51, v16\nv_and_b32 v17, v51, v17")
    a(f"{MF16} {q(64)}, {p(48)}, {p(18)}, 0")
    a("s_waitcnt lgkmcnt(0)")
    a(f"{MF16} {q(60)}, {p(48)}, {p(16)}, 0")
    a("v_lshrrev_b32 v24, 16, v24\nv_lshrrev_b32 v25, 16, v25")
    a(f"{MF16} {q(68)}, {p(48)}, {p(20)}, 0\n{MF16} {q(72)}, {p(48)}, {p(22)}, 0\n{MF16} {q(40)}, {p(48)}, {p(24)}, 0")
    a("s_waitcnt vmcnt(0)\ns_barrier")
    a(f"ds_read_b64_tr_b16 v[28:29], v7 offset:{P1_UX}\nds_read_b64_tr_b16 v[30:31], v7 offset:{P1_UX+1024}")
    a(f"ds_read_b64_tr_b16 v[32:33], v8 offset:{P1_UX}\nds_read_b64_tr_b16 v[34:35], v8 offset:{P1_UX+1024}")
    a(f"ds_read_b64_tr_b16 v[36:37], v15 offset:{P1_GW}\nds_read_b64_tr_b16 v[38:39], v15 offset:{P1_GW+512}")
    for t in (1, 0, 2, 3):
        a(f"v_cvt_pk_bf16_f32 v{76+t}, v{60+4*t}, v{61+4*t}\nv_cvt_pk_bf16_f32 v{80+t}, v{62+4*t}, v{63+4*t}")
    a(f"buffer_store_dwordx4 {q(76)}, v12, s[12:15], s27 offen\nbuffer_store_dwordx4 {q(80)}, v12, s[12:15], s27 offen offset:{X1_ROW}")
    a("s_waitcnt lgkmcnt(4)\nbuffer_store_dwordx4 v[28:31], v5, s[12:15], s54 offen")
    a("s_waitcnt lgkmcnt(2)\nbuffer_store_dwordx4 v[32:35], v5, s[12:15], s54 offen offset:1024")
    a("v_cvt_pk_bf16_f32 v44, v40, v41\nv_cvt_pk_bf16_f32 v45, v42, v43")
    a("s_waitcnt lgkmcnt(0)")
    st(a, 4)
    for i in range(4):
        for e in range(2): a(f"v_dot2_f32_bf16 v{60+e}, v{52+4*e+i}, v{36+i}, " + ("0" if i == 0 else f"v{60+e}"))
    a("s_cmp_lg_u32 s3, 0\ns_cbranch_scc1 P1_NONYQ\nbuffer_store_dwordx2 v[44:45], v6, s[12:15], s56 offen\nP1_NONYQ:")
    for sh in ("row_shr:1", "row_shr:2", "row_shr:4", "row_shr:8"):
        for e in range(2): a(f"v_add_f32_dpp v{60+e}, v{60+e}, v{60+e} {sh} row_mask:0xf bank_mask:0xf bound_ctrl:0")
    for e in range(2): a(f"v_add_f32_dpp v{60+e}, v{60+e}, v{60+e} row_bcast:15 row_mask:0xa bank_mask:0xf")
    for e in range(2): a(f"v_add_f32_dpp v{60+e}, v{60+e}, v{60+e} row_bcast:31 row_mask:0xc bank_mask:0xf")
    a("v_cvt_pk_bf16_f32 v60, v60, v61\nv_and_b32 v61, 0xffff0000, v60\nv_lshlrev_b32 v60, 16, v60")
    a("v_mul_f32 v60, 0xbfb8aa3b, v60\nv_mul_f32 v61, 0xbfb8aa3b, v61\nv_exp_f32 v60, v60\nv_exp_f32 v61, v61")
    a("v_add_f32 v60, 1.0, v60\nv_add_f32 v61, 1.0, v61\nv_rcp_f32 v60, v60\nv_rcp_f32 v61, v61")
    a("v_mov_b32 v62, 0\ns_mov_b32 exec_lo, 0\ns_mov_b32 exec_hi, 0x80000000")
    a("v_cvt_pk_bf16_f32 v60, v60, v61\nv_and_b32 v61, 0xffff0000, v60\nv_lshlrev_b32 v60, 16, v60")
    a("buffer_store_dwordx2 v[60:61], v62, s[12:15], s55 offen")
    end(a, 0)
    a("P1_EXIT:\ns_endpgm")
    T = p1_tables()
    tab = np.concatenate([T[k].reshape(-1) for k in ("Bre", "Bim", "Tc", "Ts", "Are", "Aim", "dre", "dim")])
    return a, table_text("P1_TAB", tab), 100

L_KS = 0; L_KSS = 4672; L_EB = 0; E_CH = 64 * 72 + 64
L_KB = 2 * L_KSS; K_CS = 4160; K_CH = 4 * K_CS
L_UB = (L_KB + 2 * K_CH + 255) // 256 * 256; U_P1 = 1280; U_P2 = 2592; U_CH = 5200
L_XB = L_UB + 2 * U_CH; L_FL = L_XB + 8192; L_WB = L_FL + 32
P2_LDS = L_WB + 8192

def expand_table():
    T = np.zeros((256, 8), np.uint32)
    for t in range(256):
        r1 = 2 if t < 64 else 0
        r2 = 4 if t < 128 else 0
        srcs = [(-4, 0), (-2, 0), (0, 0), (r1, r2), (r2, 8), (6, 8)]
        for k in range(6):
            s1, s0 = srcs[k]; sel = 0
            for h in range(2):
                l = 8 * t + 2 * (k - 2) + h
                pos = (lround(l) if l >= 0 else l) - 8 * t
                if pos in (s1, s1 + 1): b = 2 * (pos - s1)
                elif pos in (s0, s0 + 1): b = 4 + 2 * (pos - s0)
                else:
                    assert k == 0 and h == 0, (t, k, h, pos)
                    b = 0
                sel |= (b | ((b + 1) << 8)) << (16 * h)
            T[t, k] = sel
    return T

def gen_p2():
    a = Asm()
    st_begin(a)
    a("s_load_dwordx2 s[12:13], s[0:1], 120")
    a("v_readfirstlane_b32 s3, v0\nv_and_b32 v1, 63, v0\nv_lshlrev_b32 v2, 4, v1\ns_lshr_b32 s3, s3, 6")
    table_base(a, 20, "P2_TAB")
    srd_pre(a, 12, WS_USED)
    a("s_cmp_ge_u32 s3, 4\ns_cbranch_scc1 P2_F")
    a("s_cmpk_ge_u32 s2, 256\ns_cbranch_scc1 P2_EXIT")
    a("v_lshlrev_b32 v4, 5, v0")
    a("global_load_dwordx2 v[114:115], v2, s[20:21] offset:-4096")
    a("global_load_dwordx4 v[120:123], v4, s[20:21] offset:1024\nglobal_load_dwordx2 v[124:125], v4, s[20:21] offset:1040")
    a("v_lshrrev_b32 v6, 3, v1\nv_and_b32 v7, 7, v1\nv_lshlrev_b32 v8, 15, v6\nv_lshl_add_u32 v8, v7, 4, v8")
    a(f"s_lshl_b32 s28, s2, 7\ns_lshl_b32 s29, s3, 19\ns_add_u32 s28, s28, s29\ns_add_u32 s28, s28, {UT_OFF}\ns_add_u32 s29, s28, 0x40000")
    a(f"s_lshl_b32 s30, s2, 12\ns_lshl_b32 s31, s3, 10\ns_add_u32 s30, s30, s31\ns_add_u32 s30, s30, {KC_OFF}")
    a("s_waitcnt lgkmcnt(0)")
    st(a, 1)
    a("buffer_load_dwordx4 v[40:43], v2, s[12:15], s30 offen")
    a("buffer_load_dwordx4 v[96:99], v8, s[12:15], s28 offen\nbuffer_load_dwordx4 v[100:103], v8, s[12:15], s29 offen")
    a("v_lshrrev_b32 v4, 4, v1\nv_and_b32 v10, 15, v1\nv_mov_b32 v104, 0\nv_mov_b32 v105, 0\ns_lshr_b32 s26, s3, 1\ns_and_b32 s27, s3, 1")
    a(f"v_and_b32 v9, 1, v7\nv_mul_u32_u24 v9, {U_P2}, v9\nv_bfe_u32 v11, v7, 1, 1\nv_mul_u32_u24 v11, {U_P1}, v11\nv_lshrrev_b32 v7, 2, v7\nv_mul_u32_u24 v7, {U_CH}, v7")
    a(f"v_add3_u32 v9, v9, v11, v7\ns_lshl_b32 s22, s3, 8\ns_add_u32 s22, s22, {L_UB + 256}\nv_lshl_add_u32 v6, v6, 4, s22\nv_add_u32 v119, v6, v9")
    a(f"s_mul_i32 s22, s27, {U_P2}\ns_mul_i32 s23, s26, {U_CH}\ns_add_u32 s22, s22, s23\ns_add_u32 s22, s22, {L_UB}\nv_lshl_add_u32 v7, v1, 2, s22")
    a(f"ds_write_b32 v7, v104\nds_write_b32 v7, v104 offset:{U_P1}")
    a(f"s_mul_i32 s23, s3, {2*K_CS}\ns_add_u32 s23, s23, {L_KB}\nv_lshl_add_u32 v7, v10, 2, s23\nds_write_b32 v7, v104\nds_write_b32 v7, v104 offset:{K_CS}")
    a(f"ds_write_b64 v104, v[104:105] offset:8\nds_write_b64 v104, v[104:105] offset:{L_KSS + 8}")
    a(f"v_lshlrev_b32 v126, 4, v0\nv_add_u32 v127, {L_KB + 64}, v126")
    a("s_cmp_ge_u32 s3, 1\ns_cselect_b64 s[56:57], -1, 0\ns_cmp_ge_u32 s3, 2\ns_cselect_b64 s[58:59], -1, 0")
    a(f"s_mul_i32 s53, s26, {K_CH}\ns_lshl_b32 s54, s27, 5\ns_add_u32 s53, s53, s54\ns_add_u32 s53, s53, {L_KB + 56}")
    a(f"v_bfe_u32 v15, v1, 2, 2\nv_mul_u32_u24 v15, {K_CS}, v15\nv_and_b32 v16, 3, v1\nv_lshl_add_u32 v15, v16, 3, v15\nv_and_b32 v16, 16, v1\nv_lshlrev_b32 v16, 1, v16\nv_sub_u32 v15, v15, v16\nv_and_b32 v16, 32, v1\nv_lshrrev_b32 v16, 1, v16\nv_sub_u32 v15, v15, v16\nv_add_u32 v112, s53, v15")
    a(f"s_mul_i32 s53, s26, {U_CH}\ns_add_u32 s53, s53, {L_UB}\nv_and_b32 v15, 1, v4\nv_mul_u32_u24 v15, {U_P1}, v15\nv_lshrrev_b32 v16, 5, v1\nv_mul_u32_u24 v16, {U_P2}, v16")
    a("v_lshl_add_u32 v15, v10, 4, v15\nv_add3_u32 v113, v15, v16, s53")
    a(f"s_mul_i32 s53, s26, {E_CH}\ns_add_u32 s53, s53, s54")
    a("v_mul_u32_u24 v15, 72, v10\nv_lshl_add_u32 v15, v4, 3, v15\nv_add_u32 v116, s53, v15")
    a("v_and_b32 v5, 62, v0\nv_and_b32 v3, 1, v0\ns_mul_i32 s53, s3, 72")
    a(f"v_mul_u32_u24 v3, {2304+64}, v3\nv_add3_u32 v118, v3, v5, s53")
    a(f"s_lshl_b32 s53, s2, 13\ns_add_u32 s53, s53, {AT_OFF}\ns_add_u32 s55, s53, 4096\ns_mov_b32 s54, 0x05040100")
    ACC = 80
    for i in range(16): a(f"v_mov_b32 v{ACC+i}, 0")
    a(f"s_mul_i32 s31, s26, {L_KSS}\ns_lshl_b32 s30, s27, 8\ns_add_u32 s31, s31, s30\ns_add_u32 s31, s31, {L_KS + 16}\nv_lshl_add_u32 v15, v4, 6, s31")
    a("s_waitcnt vmcnt(3)\nv_add_u32 v114, v114, v15\nv_add_u32 v115, v115, v15")
    a("s_waitcnt vmcnt(2)")
    st(a, 2)
    for nt in range(2):
        for h in range(2):
            a(f"ds_write_b16 v{114+nt}, v{40+2*nt+h} offset:{32*h}\nds_write_b16_d16_hi v{114+nt}, v{40+2*nt+h} offset:{32*h+16}")
    a("s_waitcnt lgkmcnt(0)")
    st(a, 3)
    a("s_barrier")
    for c in range(2):
        b = 16 + 8*c; o = L_KSS * c
        a(f"ds_read_b128 {q(b)}, v126 offset:{o+16}\nds_read_b64 {p(b+4)}, v126 offset:{o+8}\nds_read_b32 v{b+6}, v126 offset:{o+32}")
    for c in range(2):
        b = 16 + 8*c; e = 32 + 16*c; o = K_CH * c
        a(f"s_waitcnt lgkmcnt({5 if c == 0 else 6})")
        a(f"v_cndmask_b32 v{b+1}, v{b+1}, v{b}, s[56:57]\nv_cndmask_b32 v{b+2}, v{b+2}, v{b}, s[58:59]")
        a(f"v_perm_b32 v{e}, v{b}, v{b}, v122\nv_perm_b32 v{e+1}, v{b+2}, v{b+1}, v123")
        a(f"s_waitcnt lgkmcnt({3 if c == 0 else 4})")
        a(f"v_perm_b32 v{e+2}, v{b+6}, v{b+2}, v124\nv_perm_b32 v{e+3}, v{b+6}, v{b+3}, v125\nv_perm_b32 v{e+4}, v{b}, v{b+5}, v121\nv_perm_b32 v{b+7}, v{b}, v{b+4}, v120")
        a(f"ds_write_b128 v127, {q(e)} offset:{o}")
        a(f"v_mov_b32 v{e+5}, v{e}\nv_mov_b32 v{e+6}, v{e+1}\nv_mov_b32 v{e+7}, v{e+2}")
        a(f"ds_write_b128 v127, {q(e+4)} offset:{o + 2*K_CS}")
        a(f"v_alignbit_b32 v{e+8}, v{e}, v{e+4}, 16\nv_alignbit_b32 v{e+9}, v{e+1}, v{e}, 16\nv_alignbit_b32 v{e+10}, v{e+2}, v{e+1}, 16\nv_alignbit_b32 v{e+11}, v{e+3}, v{e+2}, 16")
        a(f"ds_write_b128 v127, {q(e+8)} offset:{o + K_CS}")
        a(f"v_alignbit_b32 v{e+12}, v{e+4}, v{b+7}, 16\nv_mov_b32 v{e+13}, v{e+8}\nv_mov_b32 v{e+14}, v{e+9}\nv_mov_b32 v{e+15}, v{e+10}")
        a(f"ds_write_b128 v127, {q(e+12)} offset:{o + 3*K_CS}")
    a("s_waitcnt vmcnt(1)\nds_write_b128 v119, v[96:99]\ns_waitcnt vmcnt(0)\nds_write_b128 v119, v[100:103] offset:128")
    a("s_waitcnt lgkmcnt(0)")
    st(a, 4)
    a("s_barrier")
    st(a, 5)
    SET = (16, 48)
    def ldA(s, e, d, half):
        a(f"ds_read_b64_tr_b16 {p(SET[s] + 4*e + 2*half)}, v112 offset:{64*d + 1024*e + (8 if half == 0 else 0)}")
    def ldG(s, c, d): a(f"ds_read_b128 {q(SET[s]+16+4*c)}, v113 offset:{16*(16-d) + 256*c}")
    def mm(s, e, cb): a(f"{MF32} {q(ACC+4*cb)}, {q(SET[s]+4*e)}, {q(SET[s]+16+4*(cb-e))}, {q(ACC+4*cb)}")
    ldA(0,0,0,0); ldA(0,0,0,1)
    for c in range(4): ldG(0, c, 0)
    for e in range(1, 4): ldA(0,e,0,0); ldA(0,e,0,1)
    W = lambda n: a(f"s_waitcnt lgkmcnt({n})")
    U = cfg.unroll
    if U < 16: a(f"s_mov_b32 s22, {16//U}\n.p2align 6\nP2_CL:")
    for d in range(U):
        P, Q = d & 1, 1 - (d & 1)
        if d < 15:
            n = d + 1
            W(9 if (d == 0 and U == 16) else 6); mm(P,0,0)
            if n == U:
                a(f"v_add_u32 v112, {64*U}, v112\nv_subrev_u32 v113, {16*U}, v113\ns_sub_u32 s22, s22, 1\ns_cmp_lg_u32 s22, 0"); n = 0
            ldA(Q,0,n,0); ldA(Q,0,n,1)
            if d == 0 and U == 16: W(8)
            mm(P,0,1); ldG(Q,0,n)
            mm(P,0,2); ldG(Q,1,n)
            mm(P,0,3); ldG(Q,2,n)
            W(7); mm(P,1,1); ldG(Q,3,n)
            mm(P,1,2); ldA(Q,1,n,0)
            mm(P,1,3); ldA(Q,1,n,1)
            mm(P,2,2); ldA(Q,2,n,0)
            mm(P,2,3); ldA(Q,2,n,1)
            W(10); mm(P,3,3); ldA(Q,3,n,0); ldA(Q,3,n,1)
        else:
            W(6); mm(P,0,0); mm(P,0,1); mm(P,0,2); mm(P,0,3); W(2); mm(P,1,1); mm(P,1,2); mm(P,1,3)
            mm(P,2,2); mm(P,2,3); W(0); mm(P,3,3)
    if U < 16: a("s_cbranch_scc1 P2_CL")
    st(a, 6)
    for cb in range(4):
        a(f"v_cvt_pk_bf16_f32 v{96+2*cb}, v{ACC+4*cb}, v{ACC+4*cb+1}\nv_cvt_pk_bf16_f32 v{97+2*cb}, v{ACC+4*cb+2}, v{ACC+4*cb+3}")
        a(f"ds_write_b64 v116, {p(96+2*cb)} offset:{1152*cb + (64 if cb >= 2 else 0)}")
    a("s_waitcnt lgkmcnt(0)")
    a("s_barrier")
    for j in range(2):
        for i in range(4): a(f"ds_read_u16 v{16+8*j+i}, v118 offset:{288*j + 576*i}\nds_read_u16 v{20+8*j+i}, v118 offset:{288*j + 576*i + E_CH}")
        if j == 0: a("s_waitcnt lgkmcnt(7)")
    for j in range(2):
        for i in range(4): a(f"s_waitcnt lgkmcnt({8*(1-j) + 6-2*i})\nv_perm_b32 v{32+4*j+i}, v{20+8*j+i}, v{16+8*j+i}, s54")
        a(f"buffer_store_dwordx4 {q(32+4*j)}, v126, s[12:15], s{53 + 2*j} offen")
    end(a, 1)
    a("P2_F:")
    a("s_cmpk_ge_u32 s2, 257\ns_cbranch_scc1 P2_EXIT")
    a("s_load_dwordx2 s[32:33], s[0:1], 80\ns_load_dwordx2 s[36:37], s[0:1], 88\ns_sub_u32 s7, s3, 4")
    if cfg.prio == 2: a("s_setprio 2")
    FRE, FIM, TC, TS = 96, 100, 104, 108
    for i in range(4): a(f"global_load_dwordx4 {q(96+4*i)}, v2, s[20:21] offset:{1024*i-3072}")
    srd_pre(a, 32, 2048 * 514); srd_pre(a, 36, 2048 * 514)
    a("s_and_b32 s60, s2, 7\ns_bfe_u32 s61, s2, 0x50003")
    a(f"s_lshl_b32 s4, s7, 19\ns_lshl_b32 s5, s60, 10\ns_add_u32 s4, s4, s5\ns_lshl_b32 s5, s61, 5\ns_add_u32 s4, s4, s5")
    a("s_lshl_b32 s8, s7, 9\ns_add_u32 s8, s8, s60\ns_mul_i32 s8, s8, 514\ns_lshl_b32 s9, s61, 4\ns_add_u32 s8, s8, s9")
    a(f"s_lshl_b32 s63, s60, 5\ns_add_u32 s63, s63, s61\ns_lshl_b32 s63, s63, 13\ns_add_u32 s63, s63, {Y1_OFF}")
    a(f"s_lshl_b32 s10, s7, 11\ns_lshl_b32 s11, s7, 10\ns_add_u32 s16, s10, {XN_OFF}\ns_add_u32 s17, s11, {WN_OFF}")
    a("s_cmpk_eq_u32 s2, 256")
    a(f"s_cselect_b32 s4, s16, s4\ns_cselect_b32 s8, s17, s8\ns_cselect_b32 s63, {YN_OFF}, s63\ns_cselect_b32 s16, 32, {X1_S0}\ns_cselect_b32 s17, 16, 4112\ns_cselect_b32 s18, 4096, 0")
    a("v_lshrrev_b32 v12, 1, v1\nv_and_b32 v13, 1, v1\nv_mul_lo_u32 v12, v12, s16\nv_lshl_add_u32 v12, v13, 4, v12\nv_mul_u32_u24 v13, s17, v1")
    a(f"s_lshl_b32 s5, s16, 5\ns_add_u32 s5, s5, s4\ns_add_u32 s9, s8, s18\ns_add_u32 s11, s11, {L_WB}\ns_add_u32 s10, s10, {L_XB}\ns_mov_b32 m0, s10")
    a("v_lshrrev_b32 v4, 4, v1\nv_and_b32 v10, 15, v1\nv_lshl_add_u32 v7, v4, 6, v10\ns_lshl_b32 s19, s7, 3\nv_lshl_add_u32 v114, v7, 5, s19")
    a(f"s_lshl_b32 s19, s7, 2\nv_mov_b32 v112, s19\ns_add_u32 s19, s19, {L_WB}\nv_lshl_add_u32 v116, v7, 4, s19\nv_mov_b32 v15, 0\nv_mov_b32 v113, 1")
    a(f"ds_write_b32 v112, v15 offset:{L_FL}\nds_write_b32 v112, v15 offset:{L_FL+16}\ns_mov_b32 s6, 0x100000\ns_cmpk_eq_u32 s2, 256")
    a("s_waitcnt lgkmcnt(0)")
    a(f"s_cselect_b64 s[32:33], s[12:13], s[32:33]\ns_cselect_b64 s[36:37], s[12:13], s[36:37]\ns_cselect_b32 s34, s14, s34\ns_cselect_b32 s38, s14, s38")
    st(a, 1)
    a("s_barrier")
    a("buffer_load_dwordx4 v12, s[12:15], s4 offen lds\ns_add_u32 m0, s10, 1024\ns_nop 0")
    a("buffer_load_dwordx4 v12, s[12:15], s5 offen lds\ns_mov_b32 m0, s11\ns_nop 0")
    a("buffer_load_dwordx4 v13, s[32:35], s8 offen lds\ns_add_u32 m0, s11, 4096\ns_nop 0")
    a("buffer_load_dwordx4 v13, s[36:39], s9 offen lds")
    st(a, 2)
    a("s_barrier")
    def sync4(k, off):
        a(f"ds_write_b32 v112, v113 offset:{off}\nP2_SP{k}:")
        a(f"ds_read_b128 v[80:83], v15 offset:{off}\ns_waitcnt lgkmcnt(0)\nv_and_b32 v80, v80, v81\nv_and_b32 v82, v82, v83\nv_and_b32 v80, v80, v82")
        a(f"v_readfirstlane_b32 s5, v80\ns_sub_u32 s6, s6, 1\ns_cselect_b32 s5, 1, s5\ns_cmp_eq_u32 s5, 0\ns_cbranch_scc1 P2_SP{k}")
    a("s_waitcnt vmcnt(2)")
    sync4(0, L_FL)
    st(a, 3)
    for j, r in enumerate((72, 76, 74, 78)): a(f"ds_read_b64 {p(r)}, v114 offset:{L_XB + 512*j}")
    a("s_waitcnt lgkmcnt(0)\nv_swap_b32 v73, v76\nv_swap_b32 v75, v78")
    def mf(t):
        if cfg.prio == 1: a("s_setprio 2")
        a(t)
        if cfg.prio == 1: a("s_setprio 0")
    if cfg.nofft: end(a, 1)
    col = (72, 76); D = ((16, 20), (24, 28)); T = ((32, 36), (40, 44))
    for c in range(2): mf(f"{MF32} {q(D[c][0])}, {q(col[c])}, {q(FRE)}, 0\n{MF32} {q(D[c][1])}, {q(col[c])}, {q(FIM)}, 0")
    for c in range(2):
        twiddle(a, D[c][0], D[c][1], TC, TS, T[c][0], T[c][1], packed=False)
        for r in range(4): a(f"v_cvt_pk_bf16_f32 v{col[c]+r}, v{T[c][0]+r}, v{T[c][1]+r}")
        mf(f"{MF32} {q(D[c][0])}, {q(FRE)}, {q(col[c])}, 0\n{MF32} {q(D[c][1])}, {q(FIM)}, {q(col[c])}, 0")
    a("s_waitcnt vmcnt(0)")
    sync4(1, L_FL + 16)
    st(a, 4)
    for arr in range(2):
        for r in (0, 2): a(f"ds_read2st64_b32 {p(80+4*arr+r)}, v116 offset0:{16*arr+r} offset1:{16*arr+r+1}")
    a("s_waitcnt lgkmcnt(0)")
    for r in range(4): a(f"v_lshlrev_b32 v{48+r}, 16, v{80+r}\nv_lshlrev_b32 v{52+r}, 16, v{84+r}")
    for r in range(4): a(f"v_and_b32 v{56+r}, 0xffff0000, v{80+r}\nv_and_b32 v{60+r}, 0xffff0000, v{84+r}")
    for c in range(2):
        twiddle(a, D[c][0], D[c][1], 48 + 8*c, 52 + 8*c, T[c][0], T[c][1], conj=True, packed=False)
        for r in range(4): a(f"v_cvt_pk_bf16_f32 v{col[c]+r}, v{T[c][1]+r}, v{T[c][0]+r}")
        mf(f"{MF32} {q(D[c][0])}, {q(col[c])}, {q(FRE)}, 0\n{MF32} {q(D[c][1])}, {q(col[c])}, {q(FIM)}, 0")
    for c in range(2):
        twiddle(a, D[c][0], D[c][1], TC, TS, T[c][0], T[c][1], packed=False)
        for r in range(4): a(f"v_cvt_pk_bf16_f32 v{col[c]+r}, v{T[c][0]+r}, v{T[c][1]+r}")
        mf(f"{MF32} {q(D[c][0])}, {q(FRE)}, {q(col[c])}, 0\n{MF32} {q(D[c][1])}, {q(FIM)}, {q(col[c])}, 0")
    for c in range(2):
        for r in range(4): a(f"v_cvt_pk_bf16_f32 v{48+2*r+c}, v{D[c][1]+r}, v{D[c][0]+r}")
    for r in range(4): a(f"buffer_store_dwordx2 {p(48+2*r)}, v114, s[12:15], s63 offen offset:{512*r}")
    st(a, 6)
    end(a, 1)
    a("P2_EXIT:\ns_endpgm")
    F = p2_fft_tables()
    stg = np.zeros((64, 4), np.uint32)
    for l in range(64):
        n = l & 15
        stg[l, 0] = 2 * BCOL[n]; stg[l, 1] = 2 * (BCOL[16 + n] if 16 + n < 21 else 2049)
    tab = np.concatenate([stg.reshape(-1)] + [F[k].reshape(-1) for k in ("Fre", "Fim", "Tc", "Ts")] + [expand_table().reshape(-1)])
    return a, table_text("P2_TAB", tab), 128

P3_PS = 2624; P3_AB = 4 * 2624; P3_LDS = P3_AB + 8192
def gen_p3():
    a = Asm()
    st_begin(a)
    a("s_load_dwordx2 s[12:13], s[0:1], 120\ns_load_dwordx2 s[8:9], s[0:1], 104")
    a("s_cmpk_ge_u32 s2, 256\ns_cbranch_scc1 P3_EXIT")
    a("v_readfirstlane_b32 s3, v0\nv_and_b32 v1, 63, v0\nv_lshlrev_b32 v2, 4, v1\ns_lshr_b32 s3, s3, 6")
    table_base(a, 22, "P3_TAB")
    for i in range(8): a(f"global_load_dwordx4 {q(16+4*i)}, v2, s[22:23] offset:{1024*i-4096}")
    a("s_and_b32 s20, s2, 7\ns_lshl_b32 s20, s20, 5\ns_lshr_b32 s21, s2, 3\ns_add_u32 s20, s20, s21")
    a("s_lshl_b32 s21, s20, 5")
    a("v_lshrrev_b32 v4, 4, v1\nv_bfe_u32 v3, v1, 1, 3\nv_and_b32 v10, 15, v1")
    srd_pre(a, 12, WS_USED)
    a(f"v_lshlrev_b32 v15, 2, v3\ns_add_u32 s30, s21, {G_OFF}\nv_lshlrev_b32 v9, 3, v4\ns_add_u32 s38, s21, {YN_OFF}")
    a("v_lshrrev_b32 v11, 1, v1\nv_and_b32 v12, 1, v1\nv_lshlrev_b32 v12, 4, v12\nv_lshl_add_u32 v13, v11, 16, v12\nv_lshl_add_u32 v11, v11, 13, v12")
    a(f"s_lshl_b32 s24, s3, 19\ns_add_u32 s24, s24, s21\ns_add_u32 s24, s24, {Y1_OFF}\ns_add_u32 s25, s24, {32*8192}")
    a(f"s_mul_i32 s26, s3, {P3_PS}")
    a(f"s_and_b32 s27, s3, 1\ns_lshl_b32 s27, s27, 2\ns_lshr_b32 s28, s3, 1\ns_add_u32 s27, s27, s28\ns_lshl_b32 s27, s27, 13\ns_add_u32 s27, s27, s21\ns_add_u32 s27, s27, {AT_OFF}\ns_add_u32 s28, s27, 16384")
    a(f"s_lshl_b32 s29, s3, 11\ns_add_u32 s29, s29, {P3_AB}\ns_lshl_b32 s31, s3, 3\ns_add_u32 s31, s31, s30")
    a("s_mov_b32 m0, s26")
    a("s_waitcnt lgkmcnt(0)")
    st(a, 1)
    a("buffer_load_dword v14, v15, s[12:15], s30 offen\nbuffer_load_dwordx2 v[104:105], v9, s[12:15], s38 offen")
    a("buffer_load_dwordx4 v11, s[12:15], s24 offen lds\ns_add_u32 m0, s26, 1280\ns_nop 0")
    a("buffer_load_dwordx4 v11, s[12:15], s25 offen lds\ns_mov_b32 m0, s29\ns_nop 0")
    a("buffer_load_dwordx4 v13, s[12:15], s27 offen lds\ns_add_u32 m0, s29, 1024\ns_load_dwordx2 s[32:33], s[12:13], s31")
    a("buffer_load_dwordx4 v13, s[12:15], s28 offen lds")
    srd_pre(a, 8, 2097152)
    a("v_lshl_add_u32 v5, v3, 8, s20\nv_mul_u32_u24 v6, v4, v5\nv_and_b32 v7, 1, v1\nv_lshlrev_b32 v7, 8, v7\nv_sub_u32 v6, v7, v6\nv_lshlrev_b32 v6, 1, v6\nv_sub_u32 v5, v6, v5")
    a("v_cvt_f32_i32 v6, v6\nv_cvt_f32_i32 v5, v5\nv_mul_f32 v6, 0x3a000000, v6\nv_mul_f32 v5, 0x3a000000, v5")
    a("v_cos_f32 v7, v6\nv_sin_f32 v6, v6\nv_cos_f32 v8, v5\nv_sin_f32 v5, v5")
    lane_base(a, 9, 1, 10, 11)
    a("v_lshl_add_u32 v9, v9, 2, s26\nv_cndmask_b32 v92, 0, -1, vcc\nv_add_u32 v50, 1280, v9\nv_mov_b32 v51, s26")
    a("v_mov_b32 v93, 0x03020100\nv_mov_b32 v11, 0x05040100\nv_cmp_eq_u32 vcc, 0, v1\nv_cndmask_b32 v93, v93, v11, vcc")
    a(f"v_mul_u32_u24 v15, {P3_PS}, v4\nv_lshl_add_u32 v15, v10, 2, v15\ns_lshl_b32 s31, s3, 6\nv_add_u32 v11, s31, v15")
    a(f"v_lshl_add_u32 v12, v4, 5, v10\nv_lshlrev_b32 v12, 5, v12\ns_lshl_b32 s31, s3, 3\ns_add_u32 s31, s31, {P3_AB}\nv_add_u32 v12, s31, v12")
    a("v_lshlrev_b32 v13, 5, v10\nv_lshl_add_u32 v13, v4, 3, v13")
    a("s_lshl_b32 s34, s20, 10\ns_lshl_b32 s35, s3, 19\ns_add_u32 s34, s34, s35\ns_add_u32 s35, s34, 0x40000")
    a("s_waitcnt vmcnt(5)")
    a("v_sub_f32 v14, 1.0, v14\nv_cvt_pk_bf16_f32 v14, v14, v14\nv_and_b32 v14, 0xffff0000, v14")
    a("v_mul_f32 v7, v14, v7\nv_mul_f32 v6, v14, v6\nv_mul_f32 v8, v14, v8\nv_mul_f32 v5, v14, v5")
    a("v_cvt_pk_bf16_f32 v48, v7, v6\nv_cvt_pk_bf16_f32 v49, v8, v5")
    a("s_waitcnt vmcnt(4) lgkmcnt(0)")
    a(f"{MF16} {q(60)}, {p(48)}, {p(104)}, 0")
    a("s_lshr_b32 s36, s32, 16\ns_lshr_b32 s37, s33, 16")
    a("v_cvt_pk_bf16_f32 v52, v60, v61\nv_cvt_pk_bf16_f32 v53, v62, v63")
    a("ds_write2st64_b32 v15, v52, v53 offset0:4 offset1:9")
    a("s_waitcnt vmcnt(2)")
    st(a, 2)
    a("s_barrier")
    for t in range(4): a(f"ds_read2st64_b32 {p(52+2*t)}, v11 offset0:{t} offset1:{t+5}")
    for t in range(4):
        a(f"s_waitcnt lgkmcnt({3-t})\n{MF16} {q(60+4*t)}, {p(48)}, {p(52+2*t)}, 0")
    for t in range(4):
        a(f"v_cvt_pk_bf16_f32 v{52+2*t}, v{60+4*t}, v{61+4*t}\nv_cvt_pk_bf16_f32 v{53+2*t}, v{62+4*t}, v{63+4*t}")
        a(f"ds_write2st64_b32 v11, v{52+2*t}, v{53+2*t} offset0:{t} offset1:{t+5}")
    a("s_waitcnt lgkmcnt(0)")
    st(a, 3)
    a("s_barrier")
    for e, ad in ((0, 9), (1, 50)):
        a(f"ds_read2_b32 {p(52+8*e)}, v{ad} offset1:32\nds_read2_b32 {p(54+8*e)}, v{ad} offset0:64 offset1:96\nds_read_b32 v{94+e}, v51 offset:{1024+1280*e}")
    for e in range(2):
        A, Am = 52 + 8*e, 56 + 8*e
        re, im = 68 + 8*e, 72 + 8*e
        a(f"s_waitcnt lgkmcnt({3-3*e})")
        a(f"v_perm_b32 v{A}, v{94+e}, v{A}, v93")
        for r in range(4): a(f"v_and_b32 v{Am+r}, v92, v{A+r}")
        a(f"{MF32} {q(re)}, {q(A)}, {q(16)}, 0\n{MF32} {q(im)}, {q(A)}, {q(20)}, 0")
        a(f"{MF32} {q(re)}, {q(Am)}, {q(24)}, {q(re)}\n{MF32} {q(im)}, {q(Am)}, {q(28)}, {q(im)}")
    a("s_waitcnt vmcnt(0)\ns_barrier")
    for i, (hb, e2) in enumerate(((0,0),(0,1),(1,0),(1,1))): a(f"ds_read_b64 {p(96+2*i)}, v12 offset:{4096*e2+512*hb}")
    for e in range(2):
        re, im = 68 + 8*e, 72 + 8*e
        twiddle(a, re, im, 32, 36, 84, 88, conj=True)
        for r in range(4): a(f"v_cvt_pk_bf16_f32 v{52+4*e+r}, v{84+r}, v{88+r}")
        a(f"{MF32} {q(re)}, {q(52+4*e)}, {q(40)}, 0\n{MF32} {q(im)}, {q(52+4*e)}, {q(44)}, 0")
    a("s_waitcnt lgkmcnt(0)")
    for e in range(2):
        for hb in range(2):
            D = 68 + 8*e + 4*hb
            for e2 in range(2):
                av = 96 + 2*(2*hb + e2) + e
                a(f"v_dot2_f32_bf16 v{D+2*e2}, v{av}, s{36+e}, v{D+2*e2}\nv_dot2_f32_bf16 v{D+2*e2+1}, v{av}, s{32+e}, v{D+2*e2+1}")
        for hb in range(2):
            D = 68 + 8*e + 4*hb; o = 60 + 4*e + 2*hb
            a(f"v_cvt_pk_bf16_f32 v{o}, v{D}, v{D+1}\nv_cvt_pk_bf16_f32 v{o+1}, v{D+2}, v{D+3}")
            a(f"buffer_store_dwordx2 {p(o)}, v13, s[8:11], s{34+e} offen offset:{512*hb}")
    st(a, 4)
    end(a, 2)
    a("P3_EXIT:\ns_endpgm")
    T = p3_tables()
    tab = np.concatenate([T[k].reshape(-1) for k in ("Bre", "Bim", "dre", "dim", "Tc", "Ts", "F0", "F1")])
    return a, table_text("P3_TAB", tab), 106

def build(path):
    a1, t1, v1 = gen_p1(); a2, t2, v2 = gen_p2(); a3, t3, v3 = gen_p3()
    txt = ""
    for lab, aa in (("p1_kernel", a1), ("p2_kernel", a2), ("p3_kernel", a3)):
        body, n = aa.finish()
        txt += kernel_begin(lab) + ("P2_CODE:\n" if lab == "p2_kernel" else "") + body
        print(lab, "instructions:", len(aa.lines), "nops inserted:", n, "bytes:", aa.nbytes, file=sys.stderr)
    txt += "CODE_END:\n"
    rod = t2 + t3 + "TAB_END:\n" + t1
    launches = [("p1_kernel", 768, 256, P1_LDS), ("p2_kernel", 257, 512, P2_LDS), ("p3_kernel", 256, 256, P3_LDS)]
    descs = [descriptor("p1_kernel", v1), descriptor("p2_kernel", v2), descriptor("p3_kernel", v3)]
    open(path, "w").write(make_file(launches, txt, descs) + rod)

if __name__ == "__main__":
    for o in sys.argv[2:]:
        k, v = o.split("="); setattr(cfg, k, int(v))
    build(sys.argv[1])
```

```python
import sys, numpy as np
from asmgen import *
from tables import *

X1_OFF = 0x000000; X1_ROW = 1024; X1_S0 = 8192
XN_OFF = 0x200000
WN_OFF = 0x210000
YN_OFF = 0x218000
G_OFF  = 0x220000
UT_OFF = 0x300000
KC_OFF = 0x500000
Y1_OFF = 0x600000
AT_OFF = 0x900000
WS_USED = 0xB00000
STAMP = 0x8000000

class Cfg:
    stamps = 0
    prefetch_w = 0
    prefetch_code = 1
    prio = 1
    nofft = 0
    padk = -1
    padt = 0
    unroll = 4
cfg = Cfg()

def srd(a, s, lo, size):
    a(f"s_mov_b32 s{s}, s{lo}\ns_mov_b32 s{s+1}, s{lo+1}\ns_mov_b32 s{s+2}, {size}\ns_mov_b32 s{s+3}, 0x20000")
def srd_pre(a, s, size):
    a(f"s_mov_b32 s{s+2}, {size}\ns_mov_b32 s{s+3}, 0x20000")
def st(a, i):
    if cfg.stamps: a(f"s_memtime s[{64+2*i}:{65+2*i}]")
_pu = [0]
def pad_begin(a, kidx):
    if cfg.padk < 0: return
    if kidx == 0:
        a("s_memrealtime s[84:85]")
def pad_end(a, kidx):
    if cfg.padk < 0: return
    _pu[0] += 1; u = _pu[0]
    a("s_waitcnt vmcnt(0) lgkmcnt(0)\ns_load_dwordx2 s[88:89], s[0:1], 120\ns_waitcnt lgkmcnt(0)")
    if kidx == 0:
        a(f"s_or_b32 s86, s2, s3\ns_cmp_lg_u32 s86, 0\ns_cbranch_scc1 LPD{u}")
        a("s_mov_b64 exec, 1\nv_mov_b32 v10, s84\nv_mov_b32 v11, s85\nv_mov_b32 v9, 0x7000000\nglobal_store_dwordx2 v9, v[10:11], s[88:89]")
        a(f"LPD{u}:")
    elif kidx == cfg.padk:
        a("s_mov_b32 s86, 0x7000000\ns_load_dwordx2 s[84:85], s[88:89], s86\ns_waitcnt lgkmcnt(0)")
    if kidx == cfg.padk:
        a(f"LPE{u}:\ns_memrealtime s[86:87]\ns_waitcnt lgkmcnt(0)\ns_sub_u32 s86, s86, s84\ns_cmp_lt_u32 s86, {cfg.padt*100}\ns_cbranch_scc1 LPE{u}")
def st_begin(a):
    if cfg.stamps:
        a("s_memrealtime s[80:81]\ns_memtime s[64:65]")
        for i in range(1, 8): a(f"s_mov_b64 s[{64+2*i}:{65+2*i}], 0")
def end(a, kidx):
    pad_end(a, kidx)
    if not cfg.stamps:
        a("s_endpgm"); return
    a("s_waitcnt vmcnt(0) lgkmcnt(0)")
    a("s_memtime s[78:79]\ns_memrealtime s[82:83]")
    a("s_load_dwordx2 s[88:89], s[0:1], 120\ns_waitcnt lgkmcnt(0)")
    a(f"s_add_u32 s88, s88, {STAMP + kidx*0x200000}\ns_addc_u32 s89, s89, 0")
    a("s_mov_b32 s92, s88\ns_mov_b32 s93, s89\ns_mov_b32 s94, 0x200000\ns_mov_b32 s95, 0x20000")
    a("s_mov_b64 exec, 1")
    a("s_getreg_b32 s84, hwreg(HW_REG_HW_ID)\ns_getreg_b32 s85, hwreg(HW_REG_XCC_ID)")
    for i in range(24): a(f"v_mov_b32 v{10+i}, s{64+i}")
    a("s_lshl_b32 s90, s2, 3\ns_add_u32 s90, s90, s3\ns_lshl_b32 s90, s90, 7\nv_mov_b32 v9, s90")
    for i in range(6): a(f"buffer_store_dwordx4 v[{10+4*i}:{13+4*i}], v9, s[92:95], 0 offen offset:{16*i}")
    a("s_endpgm")

def table_base(a, s, label):
    a(f"s_getpc_b64 s[{s}:{s+1}]\ns_add_u32 s{s}, s{s}, {label}@rel32@lo+4100\ns_addc_u32 s{s+1}, s{s+1}, {label}@rel32@hi+4108")

def lane_base(a, vd, vl, vn, vt):
    a(f"v_and_b32 v{vd}, 16, v{vl}\nv_cmp_eq_u32 s[40:41], 0, v{vd}")
    a(f"v_cmp_eq_u32 vcc, 0, v{vn}\nv_sub_u32 v{vt}, 32, v{vn}\nv_lshrrev_b32 v{vd}, 5, v{vl}")
    a(f"v_cndmask_b32 v{vt}, v{vt}, 16, vcc\nv_cndmask_b32 v{vt}, v{vt}, v{vn}, s[40:41]")
    a(f"v_lshl_add_u32 v{vd}, v{vd}, 7, v{vt}")

def twiddle(a, re, im, c, s, ore, oim, conj=False, packed=True):
    if not packed:
        for r in range(4): a(f"v_mul_f32 v{ore+r}, v{re+r}, v{c+r}\nv_mul_f32 v{oim+r}, v{im+r}, v{c+r}")
        for r in range(4):
            if conj: a(f"v_fma_f32 v{ore+r}, -v{im+r}, v{s+r}, v{ore+r}\nv_fmac_f32 v{oim+r}, v{re+r}, v{s+r}")
            else: a(f"v_fmac_f32 v{ore+r}, v{im+r}, v{s+r}\nv_fma_f32 v{oim+r}, -v{re+r}, v{s+r}, v{oim+r}")
        return
    n1 = "" if not conj else " neg_lo:[1,0,0] neg_hi:[1,0,0]"
    n2 = " neg_lo:[1,0,0] neg_hi:[1,0,0]" if not conj else ""
    for h in (0, 2):
        a(f"v_pk_mul_f32 v[{ore+h}:{ore+h+1}], v[{re+h}:{re+h+1}], v[{c+h}:{c+h+1}]")
        a(f"v_pk_mul_f32 v[{oim+h}:{oim+h+1}], v[{im+h}:{im+h+1}], v[{c+h}:{c+h+1}]")
    for h in (0, 2):
        a(f"v_pk_fma_f32 v[{ore+h}:{ore+h+1}], v[{im+h}:{im+h+1}], v[{s+h}:{s+h+1}], v[{ore+h}:{ore+h+1}]{n1}")
        a(f"v_pk_fma_f32 v[{oim+h}:{oim+h+1}], v[{re+h}:{re+h+1}], v[{s+h}:{s+h+1}], v[{oim+h}:{oim+h+1}]{n2}")

def q(r): return f"v[{r}:{r+3}]"
def p(r): return f"v[{r}:{r+1}]"
MF32 = "v_mfma_f32_16x16x32_bf16"
MF16 = "v_mfma_f32_16x16x16_bf16"

def pk2(a, d, x, y, t): a(f"v_pk_fma_f32 {p(d)}, {p(x)}, {p(y)}, {p(t)} op_sel:[1,1,0] op_sel_hi:[1,0,1] neg_lo:[0,1,0]")
def pk1(a, x, y, t): a(f"v_pk_mul_f32 {p(t)}, {p(x)}, {p(y)} op_sel_hi:[0,1]")
def cmul_seq(a, items):
    for (d, x, y, t) in items: pk1(a, x, y, t)
    for (d, x, y, t) in items: pk2(a, d, x, y, t)
def zpow(a, items, ar, th):
    for (d, pw, t) in items:
        if pw is None: a(f"v_exp_f32 v{t}, v{ar}\nv_fract_f32 v{t+1}, v{th}")
        else: a(f"v_mul_f32 v{t}, {pw}, v{ar}\nv_mul_f32 v{t+1}, {pw}, v{th}")
    for (d, pw, t) in items:
        if pw is not None: a(f"v_exp_f32 v{t}, v{t}\nv_fract_f32 v{t+1}, v{t+1}")
    for (d, pw, t) in items: a(f"v_cos_f32 v{d}, v{t+1}\nv_sin_f32 v{d+1}, v{t+1}")
    for (d, pw, t) in items: a(f"v_pk_mul_f32 {p(d)}, {p(d)}, {p(t)} op_sel_hi:[1,0]")

RS = 544
P1_EX = 8192; P1_EXS = 2064; P1_UX = P1_EX + 4 * P1_EXS; P1_GW = P1_UX + 8192
P1_TB = 32 * RS
P1_LDS = 64 * RS
def gen_p1():
    a = Asm()
    st_begin(a)
    pad_begin(a, 0)
    a("s_load_dwordx2 s[12:13], s[0:1], 120\ns_load_dwordx2 s[8:9], s[0:1], 0\ns_load_dwordx2 s[16:17], s[0:1], 96")
    a("s_load_dwordx8 s[32:39], s[0:1], 8\ns_load_dwordx8 s[40:47], s[0:1], 40\ns_load_dwordx4 s[48:51], s[0:1], 80")
    a("v_readfirstlane_b32 s3, v0\nv_and_b32 v1, 63, v0\nv_lshlrev_b32 v2, 4, v1\ns_lshr_b32 s3, s3, 6")
    a("s_cmpk_lt_u32 s2, 512\ns_cbranch_scc1 P1_K")
    a("s_cmpk_ge_u32 s2, 768\ns_cbranch_scc1 P1_EXIT")
    table_base(a, 20, "P1_TAB")
    for i in range(8): a(f"global_load_dwordx4 {q(16+4*i)}, v2, s[20:21] offset:{1024*i-4096}")
    srd_pre(a, 8, 2097152); srd_pre(a, 12, WS_USED); srd_pre(a, 16, 1024)
    a("s_and_b32 s30, s2, 7\ns_bfe_u32 s31, s2, 0x50003\ns_lshl_b32 s52, s30, 5\ns_add_u32 s52, s52, s31\ns_lshr_b32 s53, s31, 2\ns_lshl_b32 s53, s53, 3\ns_add_u32 s30, s30, s53\ns_and_b32 s31, s31, 3")
    a("s_lshl_b32 s22, s52, 10\ns_lshl_b32 s23, s3, 19\ns_add_u32 s22, s22, s23\ns_lshl_b32 s24, s3, 11\ns_add_u32 s23, s22, 0x40000")
    a("v_lshrrev_b32 v4, 4, v1\nv_and_b32 v10, 15, v1")
    a("s_and_b32 s25, s3, 1\ns_lshl_b32 s25, s25, 2\nv_or_b32 v5, s25, v4\nv_lshlrev_b32 v6, 4, v10\nv_lshlrev_b32 v5, 5, v5\nv_xor_b32 v6, v5, v6\nv_lshl_add_u32 v6, v4, 10, v6")
    a("s_lshl_b32 s54, s30, 15\ns_lshl_b32 s55, s3, 13\ns_add_u32 s55, s54, s55\ns_lshl_b32 s56, s31, 8\ns_add_u32 s55, s55, s56\ns_add_u32 s56, s55, 4096")
    a(f"s_add_u32 s57, s24, {P1_UX}\ns_mov_b32 m0, s24")
    a("s_waitcnt lgkmcnt(0)")
    st(a, 1)
    a("buffer_load_dwordx4 v2, s[8:11], s22 offen lds\ns_add_u32 m0, s24, 1024\ns_nop 0")
    a("buffer_load_dwordx4 v2, s[8:11], s23 offen lds\ns_mov_b32 m0, s57\ns_nop 0")
    a("buffer_load_dwordx4 v6, s[8:11], s55 offen lds\ns_add_u32 m0, s57, 1024\ns_nop 0")
    a(f"buffer_load_dwordx4 v6, s[8:11], s56 offen lds\ns_mov_b32 m0, {P1_GW}\ns_nop 0")
    a("buffer_load_dwordx4 v2, s[16:19], 0 offen lds")
    a("s_branch P1_R")
    a("P1_K:")
    a("s_mov_b32 s30, s2\ns_and_b32 s27, s3, 1\ns_and_b32 s26, s30, 1\ns_lshl_b32 s28, s30, 8\ns_lshl_b32 s29, s27, 7\ns_add_u32 s28, s28, s29")
    a("v_lshl_add_u32 v5, v1, 1, s28\ns_lshr_b32 s29, s30, 1\ns_lshl_b32 s29, s29, 2\ns_lshl_b32 s52, s26, 4\ns_sub_u32 s52, 16, s52")
    a("v_mov_b32 v13, 0x3fb8aa3b\nv_lshrrev_b32 v4, 4, v1\nv_and_b32 v10, 15, v1")
    srd_pre(a, 12, WS_USED)
    a("s_lshl_b32 s54, s27, 8\ns_mov_b32 m0, s54\ns_cmp_ge_u32 s3, 2")
    a("s_waitcnt lgkmcnt(0)")
    st(a, 1)
    a("s_load_dword s30, s[44:45], s29\ns_load_dword s31, s[46:47], s29")
    a("global_load_ushort v11, v5, s[32:33]\nglobal_load_ushort v12, v5, s[34:35]")
    a("s_cbranch_scc0 P1_KA")
    for i in range(2, 6): a(f"global_load_ushort v{16+i}, v5, s[{32+2*i}:{33+2*i}]")
    a("s_branch P1_KB\nP1_KA:")
    a(f"v_lshl_add_u32 v15, s27, 4, v10\nv_mul_u32_u24 v15, {RS}, v15\nv_lshl_add_u32 v46, v4, 4, v15")
    a(f"v_mul_u32_u24 v15, {RS}, v10\nv_lshl_add_u32 v15, v4, 4, v15\nv_add_u32 v47, {P1_TB}, v15")
    a(f"s_lshl_b32 s53, s2, 11\ns_lshl_b32 s54, s27, 10\ns_add_u32 s53, s53, s54\ns_add_u32 s53, s53, {KC_OFF}")
    a("v_mov_b32 v20, 1.0\nv_mov_b32 v21, 0\nv_cmp_eq_u32 vcc, 0, v1")
    def dt_calc():
        a("s_waitcnt lgkmcnt(0)")
        a("s_lshl_b32 s30, s30, s52\ns_and_b32 s30, s30, 0xffff0000\nv_mul_f32 v14, s30, v13\nv_exp_f32 v14, v14")
        a("v_cvt_pk_bf16_f32 v14, v14, v14\nv_and_b32 v14, 0xffff0000, v14")
    dt_calc()
    a("s_lshl_b32 s31, s31, s52\ns_and_b32 s31, s31, 0xffff0000\ns_cmp_eq_u32 s27, 0\ns_cselect_b32 s31, s31, 0")
    a("v_mov_b32 v15, s31\nv_cndmask_b32 v45, 0, v15, vcc\nv_mul_f32 v13, v14, v13\nv_mul_f32 v14, 0.15915494, v14")
    a("s_waitcnt vmcnt(0)")
    st(a, 2)
    a("v_lshlrev_b32 v11, 16, v11\nv_lshlrev_b32 v12, 16, v12\nv_mul_f32 v11, v13, v11\nv_mul_f32 v12, v14, v12")
    zpow(a, [(22, "0x41000000", 30), (28, "0x42000000", 32)], 11, 12)
    cmul_seq(a, [(24, 22, 22, 30)]); cmul_seq(a, [(26, 24, 22, 30)])
    for it in range(8):
        for c in range(4): a(f"v_cvt_pk_bf16_f32 v{16+c}, v{20+2*c}, v{21+2*c}")
        for c in range(4):
            if it < 7: pk1(a, 20+2*c, 28, 30+2*c)
            a(f"ds_write_addtid_b32 v{16+c} offset:{RS*(4*it+c)}")
        if it < 7:
            for c in range(4): pk2(a, 20+2*c, 20+2*c, 28, 30+2*c)
    a("s_waitcnt lgkmcnt(0)")
    st(a, 3)
    a("s_barrier")
    def rd(ks):
        b = 48 + 12 * (ks % 4)
        a(f"ds_read_b128 {q(b)}, v46 offset:{64*ks}\nds_read_b128 {q(b+4)}, v47 offset:{64*ks}\nds_read_b128 {q(b+8)}, v47 offset:{64*ks + 16*RS}")
    for ks in range(4): rd(ks)
    for ks in range(8):
        b = 48 + 12 * (ks % 4)
        a(f"s_waitcnt lgkmcnt({3 * (min(ks + 3, 7) - ks)})")
        c0 = "0" if ks == 0 else q(16); c1 = "0" if ks == 0 else q(20)
        a(f"{MF32} {q(16)}, {q(b)}, {q(b+4)}, {c0}\n{MF32} {q(20)}, {q(b)}, {q(b+8)}, {c1}")
        if ks + 4 < 8: rd(ks + 4)
    a("v_add_f32 v16, v45, v16")
    for i in range(4): a(f"v_cvt_pk_bf16_f32 v{24+i}, v{16+2*i}, v{17+2*i}")
    a("buffer_store_dwordx4 v[24:27], v2, s[12:15], s53 offen")
    st(a, 4)
    end(a, 0)
    a("P1_KB:")
    a(f"s_add_u32 m0, s54, {P1_TB}")
    dt_calc()
    a("v_mul_f32 v13, v14, v13\nv_mul_f32 v15, 0.15915494, v14")
    a("s_waitcnt vmcnt(0)")
    st(a, 2)
    a("v_lshlrev_b32 v11, 16, v11\nv_lshlrev_b32 v12, 16, v12")
    for i in range(2, 6): a(f"v_lshlrev_b32 v{16+i}, 16, v{16+i}")
    a("v_mul_f32 v11, v13, v11\nv_mul_f32 v12, v15, v12")
    a(f"v_pk_mul_f32 {p(18)}, {p(18)}, {p(14)} op_sel_hi:[1,0]")
    zpow(a, [(22, None, 30), (24, "0x43800000", 32)], 11, 12)
    Z1, Z256, Z2, Z4, C0 = 22, 24, 26, 28, 34
    cmul_seq(a, [(C0, 20, 18, 30), (Z2, Z1, Z1, 32)])
    wr = [0]
    def put(row, src):
        t = 60 + (wr[0] % 4); wr[0] += 1
        a(f"v_cvt_pk_bf16_f32 v{t}, v{src}, -v{src+1}\nds_write_addtid_b32 v{t} offset:{RS*row}")
    cmul_seq(a, [(38, C0, Z1, 30), (40, C0, Z256, 32), (36, C0, Z2, 44), (Z4, Z2, Z2, 46)])
    put(0, C0); put(1, 38); put(8, 40); put(2, 36)
    cmul_seq(a, [(42, 40, Z2, 30), (48, 40, Z4, 32), (40, 40, Z256, 44), (38, 38, Z2, 46), (36, 36, Z2, 50)])
    put(9, 42); put(10, 48); put(12, 40); put(3, 38); put(4, 36)
    cmul_seq(a, [(42, 48, Z2, 30), (48, 40, Z4, 32), (40, 40, Z256, 44), (38, 38, Z2, 46), (36, 36, Z2, 50)])
    put(11, 42); put(13, 48); put(14, 40); put(5, 38); put(6, 36)
    cmul_seq(a, [(48, 40, Z4, 32), (40, 40, Z256, 44), (38, 38, Z2, 46), (52, Z256, Z256, 50)])
    put(15, 48); put(16, 40); put(7, 38)
    cmul_seq(a, [(42, 40, Z256, 30), (48, 40, 52, 32)])
    put(17, 42); put(18, 48)
    cmul_seq(a, [(42, 42, 52, 30), (48, 48, 52, 32)])
    put(19, 42); put(20, 48)
    a("s_waitcnt lgkmcnt(0)")
    st(a, 3)
    a("s_barrier")
    a("s_cmpk_ge_u32 s2, 256\ns_cbranch_scc1 P1_DONE")
    a("s_and_b32 s22, s2, 7\ns_lshr_b32 s23, s2, 3\ns_cmp_eq_u32 s3, 3\ns_cbranch_scc1 P1_PF")
    a("s_lshl_b32 s22, s22, 5\ns_add_u32 s22, s22, s23\nv_and_b32 v3, 7, v1\nv_lshl_add_u32 v3, s22, 3, v3\nv_mul_u32_u24 v4, 514, v3")
    a("global_load_ushort v6, v4, s[48:49] offset:512\nglobal_load_ushort v7, v4, s[50:51] offset:512")
    a(f"v_lshlrev_b32 v3, 1, v3\ns_mov_b32 s22, {WN_OFF}\ns_mov_b32 s23, {WN_OFF + 4096}")
    a("s_waitcnt vmcnt(1)\nbuffer_store_short v6, v3, s[12:15], s22 offen\ns_waitcnt vmcnt(1)\nbuffer_store_short v7, v3, s[12:15], s23 offen")
    a("P1_DONE:")
    end(a, 0)
    a("P1_PF:")
    if cfg.prefetch_code:
        table_base(a, 20, "P2_CODE"); table_base(a, 24, "P2_TAB")
        a("s_lshl_b32 s26, s23, 10\nv_add_u32 v3, s26, v2")
        a("v_min_u32 v5, CODE_END-P2_CODE-16, v3\nglobal_load_dwordx4 v[20:23], v5, s[20:21] offset:-4096")
        a("v_min_u32 v5, TAB_END-P2_TAB-16, v3\nglobal_load_dwordx4 v[24:27], v5, s[24:25] offset:-4096")
    if cfg.prefetch_w:
        a("s_lshl_b32 s23, s23, 6\ns_add_u32 s22, s22, s23\ns_mul_i32 s22, s22, 514")
        a("v_lshrrev_b32 v5, 3, v1\nv_mul_u32_u24 v5, 4112, v5\nv_and_b32 v6, 7, v1\nv_mul_u32_u24 v6, 73, v6\nv_add3_u32 v5, v5, v6, s22")
        a("global_load_ubyte v16, v5, s[48:49]\nglobal_load_ubyte v17, v5, s[50:51]")
    end(a, 0)
    a("P1_R:")
    a("v_bfe_u32 v3, v1, 1, 3\nv_lshl_add_u32 v5, v4, 9, s52\nv_mul_u32_u24 v5, v3, v5")
    a("v_and_b32 v6, 1, v1\nv_lshl_add_u32 v5, v6, 9, v5\nv_lshl_add_u32 v6, v3, 8, v5")
    a("v_cvt_f32_u32 v5, v5\nv_cvt_f32_u32 v6, v6\nv_mul_f32 v5, 0x3a000000, v5\nv_mul_f32 v6, 0x3a000000, v6")
    a("v_cos_f32 v7, v5\nv_sin_f32 v5, v5\nv_cos_f32 v8, v6\nv_sin_f32 v6, v6")
    a("v_cvt_pk_bf16_f32 v48, v7, v5\nv_cvt_pk_bf16_f32 v49, v8, v6")
    lane_base(a, 9, 1, 10, 11)
    a(f"s_mul_i32 s25, s3, {P1_EXS}\ns_add_u32 s25, s25, {P1_EX}")
    a("v_lshl_add_u32 v9, v9, 3, s25\nv_cndmask_b32 v50, 0, -1, vcc")
    a("s_mov_b32 s26, 0xffff\ns_cmp_eq_u32 s3, 0\ns_cselect_b32 s26, s26, -1\nv_mov_b32 v11, s26\nv_cndmask_b32 v51, -1, v11, vcc")
    a(f"v_mul_u32_u24 v14, {P1_EXS}, v4\ns_lshl_b32 s26, s3, 9\nv_add_u32 v14, {P1_EX}, v14\nv_lshl_add_u32 v11, v10, 5, v14\nv_add_u32 v11, s26, v11")
    a("v_lshlrev_b32 v12, 11, v4\nv_lshl_add_u32 v12, v10, 4, v12")
    a("s_lshl_b32 s27, s52, 13\ns_lshl_b32 s26, s3, 8\ns_add_u32 s27, s27, s26")
    a("v_lshl_add_u32 v13, v1, 3, s24\nv_lshlrev_b32 v15, 3, v1")
    a("v_bfe_u32 v7, v1, 2, 2\nv_and_b32 v8, 1, v4\nv_lshl_or_b32 v8, v8, 2, v7\ns_lshl_b32 s25, s3, 1\nv_xor_b32 v8, s25, v8")
    a(f"v_lshl_add_u32 v7, v4, 3, v7\nv_lshlrev_b32 v7, 8, v7\nv_lshl_add_u32 v7, v8, 5, v7\nv_and_b32 v8, 3, v1\nv_lshl_add_u32 v7, v8, 3, v7\nv_xor_b32 v8, 32, v7")
    a("v_lshlrev_b32 v5, 6, v10\nv_lshl_add_u32 v5, v4, 4, v5\nv_lshlrev_b32 v6, 3, v4")
    a(f"s_lshl_b32 s55, s31, 13\ns_add_u32 s54, s54, s55\ns_add_u32 s54, s54, s24\ns_add_u32 s54, s54, {UT_OFF}")
    a(f"s_lshl_b32 s55, s52, 5\ns_add_u32 s56, s55, {XN_OFF}\ns_lshl_b32 s57, s3, 3\ns_add_u32 s55, s55, s57\ns_add_u32 s55, s55, {G_OFF}")
    a("s_waitcnt vmcnt(3)")
    st(a, 2)
    a("ds_read_b64_tr_b16 v[52:53], v13\nds_read_b64_tr_b16 v[54:55], v13 offset:512")
    a("ds_read_b64_tr_b16 v[56:57], v13 offset:1024\nds_read_b64_tr_b16 v[58:59], v13 offset:1536")
    a("s_waitcnt lgkmcnt(2)")
    a(f"{MF32} {q(60)}, {q(52)}, {q(16)}, 0\n{MF32} {q(64)}, {q(52)}, {q(20)}, 0")
    a("s_waitcnt lgkmcnt(0)")
    a(f"{MF32} {q(68)}, {q(56)}, {q(16)}, 0\n{MF32} {q(72)}, {q(56)}, {q(20)}, 0")
    for e in range(2):
        re, im = 60 + 8*e, 64 + 8*e
        twiddle(a, re, im, 24, 28, 76, 80)
        B, Bm = (84, 88) if e else (16, 20)
        for r in range(4): a(f"v_cvt_pk_bf16_f32 v{B+r}, v{76+r}, v{80+r}")
        for r in range(4): a(f"v_and_b32 v{Bm+r}, v50, v{B+r}")
        a(f"{MF32} {q(re)}, {q(32)}, {q(B)}, 0\n{MF32} {q(im)}, {q(36)}, {q(B)}, 0")
        a(f"{MF32} {q(re)}, {q(40)}, {q(Bm)}, {q(re)}\n{MF32} {q(im)}, {q(44)}, {q(Bm)}, {q(im)}")
    for e in range(2):
        for r in range(4): a(f"v_cvt_pk_bf16_f32 v{92+2*r+e}, v{60+8*e+r}, v{64+8*e+r}")
    for r in range(4): a(f"ds_write_b64 v9, {p(92+2*r)} offset:{256*r}")
    a("s_waitcnt lgkmcnt(0)")
    st(a, 3)
    a("s_barrier")
    a("ds_read_b128 v[16:19], v11\nds_read_b128 v[20:23], v11 offset:16\nds_read_b64 v[24:25], v14")
    a("s_waitcnt lgkmcnt(2)")
    a("v_and_b32 v16, v51, v16\nv_and_b32 v17, v51, v17")
    a(f"{MF16} {q(64)}, {p(48)}, {p(18)}, 0")
    a("s_waitcnt lgkmcnt(0)")
    a(f"{MF16} {q(60)}, {p(48)}, {p(16)}, 0")
    a("v_lshrrev_b32 v24, 16, v24\nv_lshrrev_b32 v25, 16, v25")
    a(f"{MF16} {q(68)}, {p(48)}, {p(20)}, 0\n{MF16} {q(72)}, {p(48)}, {p(22)}, 0\n{MF16} {q(40)}, {p(48)}, {p(24)}, 0")
    a("s_waitcnt vmcnt(0)\ns_barrier")
    a(f"ds_read_b64_tr_b16 v[28:29], v7 offset:{P1_UX}\nds_read_b64_tr_b16 v[30:31], v7 offset:{P1_UX+1024}")
    a(f"ds_read_b64_tr_b16 v[32:33], v8 offset:{P1_UX}\nds_read_b64_tr_b16 v[34:35], v8 offset:{P1_UX+1024}")
    a(f"ds_read_b64_tr_b16 v[36:37], v15 offset:{P1_GW}\nds_read_b64_tr_b16 v[38:39], v15 offset:{P1_GW+512}")
    for t in (1, 0, 2, 3):
        a(f"v_cvt_pk_bf16_f32 v{76+t}, v{60+4*t}, v{61+4*t}\nv_cvt_pk_bf16_f32 v{80+t}, v{62+4*t}, v{63+4*t}")
    a(f"buffer_store_dwordx4 {q(76)}, v12, s[12:15], s27 offen\nbuffer_store_dwordx4 {q(80)}, v12, s[12:15], s27 offen offset:{X1_ROW}")
    a("s_waitcnt lgkmcnt(4)\nbuffer_store_dwordx4 v[28:31], v5, s[12:15], s54 offen")
    a("s_waitcnt lgkmcnt(2)\nbuffer_store_dwordx4 v[32:35], v5, s[12:15], s54 offen offset:1024")
    a("v_cvt_pk_bf16_f32 v44, v40, v41\nv_cvt_pk_bf16_f32 v45, v42, v43")
    a("s_waitcnt lgkmcnt(0)")
    st(a, 4)
    for i in range(4):
        for e in range(2): a(f"v_dot2_f32_bf16 v{60+e}, v{52+4*e+i}, v{36+i}, " + ("0" if i == 0 else f"v{60+e}"))
    a("s_cmp_lg_u32 s3, 0\ns_cbranch_scc1 P1_NONYQ\nbuffer_store_dwordx2 v[44:45], v6, s[12:15], s56 offen\nP1_NONYQ:")
    for sh in ("row_shr:1", "row_shr:2", "row_shr:4", "row_shr:8"):
        for e in range(2): a(f"v_add_f32_dpp v{60+e}, v{60+e}, v{60+e} {sh} row_mask:0xf bank_mask:0xf bound_ctrl:0")
    for e in range(2): a(f"v_add_f32_dpp v{60+e}, v{60+e}, v{60+e} row_bcast:15 row_mask:0xa bank_mask:0xf")
    for e in range(2): a(f"v_add_f32_dpp v{60+e}, v{60+e}, v{60+e} row_bcast:31 row_mask:0xc bank_mask:0xf")
    a("v_cvt_pk_bf16_f32 v60, v60, v61\nv_and_b32 v61, 0xffff0000, v60\nv_lshlrev_b32 v60, 16, v60")
    a("v_mul_f32 v60, 0xbfb8aa3b, v60\nv_mul_f32 v61, 0xbfb8aa3b, v61\nv_exp_f32 v60, v60\nv_exp_f32 v61, v61")
    a("v_add_f32 v60, 1.0, v60\nv_add_f32 v61, 1.0, v61\nv_rcp_f32 v60, v60\nv_rcp_f32 v61, v61")
    a("v_mov_b32 v62, 0\ns_mov_b32 exec_lo, 0\ns_mov_b32 exec_hi, 0x80000000")
    a("v_cvt_pk_bf16_f32 v60, v60, v61\nv_and_b32 v61, 0xffff0000, v60\nv_lshlrev_b32 v60, 16, v60")
    a("buffer_store_dwordx2 v[60:61], v62, s[12:15], s55 offen")
    end(a, 0)
    a("P1_EXIT:\ns_endpgm")
    T = p1_tables()
    tab = np.concatenate([T[k].reshape(-1) for k in ("Bre", "Bim", "Tc", "Ts", "Are", "Aim", "dre", "dim")])
    return a, table_text("P1_TAB", tab), 100

L_KS = 0; L_KSS = 4672; L_EB = 0; E_CH = 64 * 72 + 64
L_KB = 2 * L_KSS; K_CS = 4160; K_CH = 4 * K_CS
L_UB = (L_KB + 2 * K_CH + 255) // 256 * 256; U_P1 = 1280; U_P2 = 2592; U_CH = 5200
L_XB = L_UB + 2 * U_CH; L_FL = L_XB + 8192; L_WB = L_FL + 32
P2_LDS = L_WB + 8192

def expand_table():
    T = np.zeros((256, 8), np.uint32)
    for t in range(256):
        r1 = 2 if t < 64 else 0
        r2 = 4 if t < 128 else 0
        srcs = [(-4, 0), (-2, 0), (0, 0), (r1, r2), (r2, 8), (6, 8)]
        for k in range(6):
            s1, s0 = srcs[k]; sel = 0
            for h in range(2):
                l = 8 * t + 2 * (k - 2) + h
                pos = (lround(l) if l >= 0 else l) - 8 * t
                if pos in (s1, s1 + 1): b = 2 * (pos - s1)
                elif pos in (s0, s0 + 1): b = 4 + 2 * (pos - s0)
                else:
                    assert k == 0 and h == 0, (t, k, h, pos)
                    b = 0
                sel |= (b | ((b + 1) << 8)) << (16 * h)
            T[t, k] = sel
    return T

def gen_p2():
    a = Asm()
    st_begin(a)
    a("s_load_dwordx2 s[12:13], s[0:1], 120")
    a("v_readfirstlane_b32 s3, v0\nv_and_b32 v1, 63, v0\nv_lshlrev_b32 v2, 4, v1\ns_lshr_b32 s3, s3, 6")
    table_base(a, 20, "P2_TAB")
    srd_pre(a, 12, WS_USED)
    a("s_cmp_ge_u32 s3, 4\ns_cbranch_scc1 P2_F")
    a("s_cmpk_ge_u32 s2, 256\ns_cbranch_scc1 P2_EXIT")
    a("v_lshlrev_b32 v4, 5, v0")
    a("global_load_dwordx2 v[114:115], v2, s[20:21] offset:-4096")
    a("global_load_dwordx4 v[120:123], v4, s[20:21] offset:1024\nglobal_load_dwordx2 v[124:125], v4, s[20:21] offset:1040")
    a("v_lshrrev_b32 v6, 3, v1\nv_and_b32 v7, 7, v1\nv_lshlrev_b32 v8, 15, v6\nv_lshl_add_u32 v8, v7, 4, v8")
    a(f"s_lshl_b32 s28, s2, 7\ns_lshl_b32 s29, s3, 19\ns_add_u32 s28, s28, s29\ns_add_u32 s28, s28, {UT_OFF}\ns_add_u32 s29, s28, 0x40000")
    a(f"s_lshl_b32 s30, s2, 12\ns_lshl_b32 s31, s3, 10\ns_add_u32 s30, s30, s31\ns_add_u32 s30, s30, {KC_OFF}")
    a("s_waitcnt lgkmcnt(0)")
    st(a, 1)
    a("buffer_load_dwordx4 v[40:43], v2, s[12:15], s30 offen")
    a("buffer_load_dwordx4 v[96:99], v8, s[12:15], s28 offen\nbuffer_load_dwordx4 v[100:103], v8, s[12:15], s29 offen")
    a("v_lshrrev_b32 v4, 4, v1\nv_and_b32 v10, 15, v1\nv_mov_b32 v104, 0\nv_mov_b32 v105, 0\ns_lshr_b32 s26, s3, 1\ns_and_b32 s27, s3, 1")
    a(f"v_and_b32 v9, 1, v7\nv_mul_u32_u24 v9, {U_P2}, v9\nv_bfe_u32 v11, v7, 1, 1\nv_mul_u32_u24 v11, {U_P1}, v11\nv_lshrrev_b32 v7, 2, v7\nv_mul_u32_u24 v7, {U_CH}, v7")
    a(f"v_add3_u32 v9, v9, v11, v7\ns_lshl_b32 s22, s3, 8\ns_add_u32 s22, s22, {L_UB + 256}\nv_lshl_add_u32 v6, v6, 4, s22\nv_add_u32 v119, v6, v9")
    a(f"s_mul_i32 s22, s27, {U_P2}\ns_mul_i32 s23, s26, {U_CH}\ns_add_u32 s22, s22, s23\ns_add_u32 s22, s22, {L_UB}\nv_lshl_add_u32 v7, v1, 2, s22")
    a(f"ds_write_b32 v7, v104\nds_write_b32 v7, v104 offset:{U_P1}")
    a(f"s_mul_i32 s23, s3, {2*K_CS}\ns_add_u32 s23, s23, {L_KB}\nv_lshl_add_u32 v7, v10, 2, s23\nds_write_b32 v7, v104\nds_write_b32 v7, v104 offset:{K_CS}")
    a(f"ds_write_b64 v104, v[104:105] offset:8\nds_write_b64 v104, v[104:105] offset:{L_KSS + 8}")
    a(f"v_lshlrev_b32 v126, 4, v0\nv_add_u32 v127, {L_KB + 64}, v126")
    a("s_cmp_ge_u32 s3, 1\ns_cselect_b64 s[56:57], -1, 0\ns_cmp_ge_u32 s3, 2\ns_cselect_b64 s[58:59], -1, 0")
    a(f"s_mul_i32 s53, s26, {K_CH}\ns_lshl_b32 s54, s27, 5\ns_add_u32 s53, s53, s54\ns_add_u32 s53, s53, {L_KB + 56}")
    a(f"v_bfe_u32 v15, v1, 2, 2\nv_mul_u32_u24 v15, {K_CS}, v15\nv_and_b32 v16, 3, v1\nv_lshl_add_u32 v15, v16, 3, v15\nv_and_b32 v16, 16, v1\nv_lshlrev_b32 v16, 1, v16\nv_sub_u32 v15, v15, v16\nv_and_b32 v16, 32, v1\nv_lshrrev_b32 v16, 1, v16\nv_sub_u32 v15, v15, v16\nv_add_u32 v112, s53, v15")
    a(f"s_mul_i32 s53, s26, {U_CH}\ns_add_u32 s53, s53, {L_UB}\nv_and_b32 v15, 1, v4\nv_mul_u32_u24 v15, {U_P1}, v15\nv_lshrrev_b32 v16, 5, v1\nv_mul_u32_u24 v16, {U_P2}, v16")
    a("v_lshl_add_u32 v15, v10, 4, v15\nv_add3_u32 v113, v15, v16, s53")
    a(f"s_mul_i32 s53, s26, {E_CH}\ns_add_u32 s53, s53, s54")
    a("v_mul_u32_u24 v15, 72, v10\nv_lshl_add_u32 v15, v4, 3, v15\nv_add_u32 v116, s53, v15")
    a("v_and_b32 v5, 62, v0\nv_and_b32 v3, 1, v0\ns_mul_i32 s53, s3, 72")
    a(f"v_mul_u32_u24 v3, {2304+64}, v3\nv_add3_u32 v118, v3, v5, s53")
    a(f"s_lshl_b32 s53, s2, 13\ns_add_u32 s53, s53, {AT_OFF}\ns_add_u32 s55, s53, 4096\ns_mov_b32 s54, 0x05040100")
    ACC = 80
    for i in range(16): a(f"v_mov_b32 v{ACC+i}, 0")
    a(f"s_mul_i32 s31, s26, {L_KSS}\ns_lshl_b32 s30, s27, 8\ns_add_u32 s31, s31, s30\ns_add_u32 s31, s31, {L_KS + 16}\nv_lshl_add_u32 v15, v4, 6, s31")
    a("s_waitcnt vmcnt(3)\nv_add_u32 v114, v114, v15\nv_add_u32 v115, v115, v15")
    a("s_waitcnt vmcnt(2)")
    st(a, 2)
    for nt in range(2):
        for h in range(2):
            a(f"ds_write_b16 v{114+nt}, v{40+2*nt+h} offset:{32*h}\nds_write_b16_d16_hi v{114+nt}, v{40+2*nt+h} offset:{32*h+16}")
    a("s_waitcnt lgkmcnt(0)")
    st(a, 3)
    a("s_barrier")
    for c in range(2):
        b = 16 + 8*c; o = L_KSS * c
        a(f"ds_read_b128 {q(b)}, v126 offset:{o+16}\nds_read_b64 {p(b+4)}, v126 offset:{o+8}\nds_read_b32 v{b+6}, v126 offset:{o+32}")
    for c in range(2):
        b = 16 + 8*c; e = 32 + 16*c; o = K_CH * c
        a(f"s_waitcnt lgkmcnt({5 if c == 0 else 6})")
        a(f"v_cndmask_b32 v{b+1}, v{b+1}, v{b}, s[56:57]\nv_cndmask_b32 v{b+2}, v{b+2}, v{b}, s[58:59]")
        a(f"v_perm_b32 v{e}, v{b}, v{b}, v122\nv_perm_b32 v{e+1}, v{b+2}, v{b+1}, v123")
        a(f"s_waitcnt lgkmcnt({3 if c == 0 else 4})")
        a(f"v_perm_b32 v{e+2}, v{b+6}, v{b+2}, v124\nv_perm_b32 v{e+3}, v{b+6}, v{b+3}, v125\nv_perm_b32 v{e+4}, v{b}, v{b+5}, v121\nv_perm_b32 v{b+7}, v{b}, v{b+4}, v120")
        a(f"ds_write_b128 v127, {q(e)} offset:{o}")
        a(f"v_mov_b32 v{e+5}, v{e}\nv_mov_b32 v{e+6}, v{e+1}\nv_mov_b32 v{e+7}, v{e+2}")
        a(f"ds_write_b128 v127, {q(e+4)} offset:{o + 2*K_CS}")
        a(f"v_alignbit_b32 v{e+8}, v{e}, v{e+4}, 16\nv_alignbit_b32 v{e+9}, v{e+1}, v{e}, 16\nv_alignbit_b32 v{e+10}, v{e+2}, v{e+1}, 16\nv_alignbit_b32 v{e+11}, v{e+3}, v{e+2}, 16")
        a(f"ds_write_b128 v127, {q(e+8)} offset:{o + K_CS}")
        a(f"v_alignbit_b32 v{e+12}, v{e+4}, v{b+7}, 16\nv_mov_b32 v{e+13}, v{e+8}\nv_mov_b32 v{e+14}, v{e+9}\nv_mov_b32 v{e+15}, v{e+10}")
        a(f"ds_write_b128 v127, {q(e+12)} offset:{o + 3*K_CS}")
    a("s_waitcnt vmcnt(1)\nds_write_b128 v119, v[96:99]\ns_waitcnt vmcnt(0)\nds_write_b128 v119, v[100:103] offset:128")
    a("s_waitcnt lgkmcnt(0)")
    st(a, 4)
    a("s_barrier")
    st(a, 5)
    SET = (16, 48)
    def ldA(s, e, d, half):
        a(f"ds_read_b64_tr_b16 {p(SET[s] + 4*e + 2*half)}, v112 offset:{64*d + 1024*e + (8 if half == 0 else 0)}")
    def ldG(s, c, d): a(f"ds_read_b128 {q(SET[s]+16+4*c)}, v113 offset:{16*(16-d) + 256*c}")
    def mm(s, e, cb): a(f"{MF32} {q(ACC+4*cb)}, {q(SET[s]+4*e)}, {q(SET[s]+16+4*(cb-e))}, {q(ACC+4*cb)}")
    ldA(0,0,0,0); ldA(0,0,0,1)
    for c in range(4): ldG(0, c, 0)
    for e in range(1, 4): ldA(0,e,0,0); ldA(0,e,0,1)
    W = lambda n: a(f"s_waitcnt lgkmcnt({n})")
    U = cfg.unroll
    if U < 16: a(f"s_mov_b32 s22, {16//U}\n.p2align 6\nP2_CL:")
    for d in range(U):
        P, Q = d & 1, 1 - (d & 1)
        if d < 15:
            n = d + 1
            W(9 if (d == 0 and U == 16) else 6); mm(P,0,0)
            if n == U:
                a(f"v_add_u32 v112, {64*U}, v112\nv_subrev_u32 v113, {16*U}, v113\ns_sub_u32 s22, s22, 1\ns_cmp_lg_u32 s22, 0"); n = 0
            ldA(Q,0,n,0); ldA(Q,0,n,1)
            if d == 0 and U == 16: W(8)
            mm(P,0,1); ldG(Q,0,n)
            mm(P,0,2); ldG(Q,1,n)
            mm(P,0,3); ldG(Q,2,n)
            W(7); mm(P,1,1); ldG(Q,3,n)
            mm(P,1,2); ldA(Q,1,n,0)
            mm(P,1,3); ldA(Q,1,n,1)
            mm(P,2,2); ldA(Q,2,n,0)
            mm(P,2,3); ldA(Q,2,n,1)
            W(10); mm(P,3,3); ldA(Q,3,n,0); ldA(Q,3,n,1)
        else:
            W(6); mm(P,0,0); mm(P,0,1); mm(P,0,2); mm(P,0,3); W(2); mm(P,1,1); mm(P,1,2); mm(P,1,3)
            mm(P,2,2); mm(P,2,3); W(0); mm(P,3,3)
    if U < 16: a("s_cbranch_scc1 P2_CL")
    st(a, 6)
    for cb in range(4):
        a(f"v_cvt_pk_bf16_f32 v{96+2*cb}, v{ACC+4*cb}, v{ACC+4*cb+1}\nv_cvt_pk_bf16_f32 v{97+2*cb}, v{ACC+4*cb+2}, v{ACC+4*cb+3}")
        a(f"ds_write_b64 v116, {p(96+2*cb)} offset:{1152*cb + (64 if cb >= 2 else 0)}")
    a("s_waitcnt lgkmcnt(0)")
    a("s_barrier")
    for j in range(2):
        for i in range(4): a(f"ds_read_u16 v{16+8*j+i}, v118 offset:{288*j + 576*i}\nds_read_u16 v{20+8*j+i}, v118 offset:{288*j + 576*i + E_CH}")
        if j == 0: a("s_waitcnt lgkmcnt(7)")
    for j in range(2):
        for i in range(4): a(f"s_waitcnt lgkmcnt({8*(1-j) + 6-2*i})\nv_perm_b32 v{32+4*j+i}, v{20+8*j+i}, v{16+8*j+i}, s54")
        a(f"buffer_store_dwordx4 {q(32+4*j)}, v126, s[12:15], s{53 + 2*j} offen")
    end(a, 1)
    a("P2_F:")
    a("s_cmpk_ge_u32 s2, 257\ns_cbranch_scc1 P2_EXIT")
    a("s_load_dwordx2 s[32:33], s[0:1], 80\ns_load_dwordx2 s[36:37], s[0:1], 88\ns_sub_u32 s7, s3, 4")
    if cfg.prio == 2: a("s_setprio 2")
    FRE, FIM, TC, TS = 96, 100, 104, 108
    for i in range(4): a(f"global_load_dwordx4 {q(96+4*i)}, v2, s[20:21] offset:{1024*i-3072}")
    srd_pre(a, 32, 2048 * 514); srd_pre(a, 36, 2048 * 514)
    a("s_and_b32 s60, s2, 7\ns_bfe_u32 s61, s2, 0x50003")
    a(f"s_lshl_b32 s4, s7, 19\ns_lshl_b32 s5, s60, 10\ns_add_u32 s4, s4, s5\ns_lshl_b32 s5, s61, 5\ns_add_u32 s4, s4, s5")
    a("s_lshl_b32 s8, s7, 9\ns_add_u32 s8, s8, s60\ns_mul_i32 s8, s8, 514\ns_lshl_b32 s9, s61, 4\ns_add_u32 s8, s8, s9")
    a(f"s_lshl_b32 s63, s60, 5\ns_add_u32 s63, s63, s61\ns_lshl_b32 s63, s63, 13\ns_add_u32 s63, s63, {Y1_OFF}")
    a(f"s_lshl_b32 s10, s7, 11\ns_lshl_b32 s11, s7, 10\ns_add_u32 s16, s10, {XN_OFF}\ns_add_u32 s17, s11, {WN_OFF}")
    a("s_cmpk_eq_u32 s2, 256")
    a(f"s_cselect_b32 s4, s16, s4\ns_cselect_b32 s8, s17, s8\ns_cselect_b32 s63, {YN_OFF}, s63\ns_cselect_b32 s16, 32, {X1_S0}\ns_cselect_b32 s17, 16, 4112\ns_cselect_b32 s18, 4096, 0")
    a("v_lshrrev_b32 v12, 1, v1\nv_and_b32 v13, 1, v1\nv_mul_lo_u32 v12, v12, s16\nv_lshl_add_u32 v12, v13, 4, v12\nv_mul_u32_u24 v13, s17, v1")
    a(f"s_lshl_b32 s5, s16, 5\ns_add_u32 s5, s5, s4\ns_add_u32 s9, s8, s18\ns_add_u32 s11, s11, {L_WB}\ns_add_u32 s10, s10, {L_XB}\ns_mov_b32 m0, s10")
    a("v_lshrrev_b32 v4, 4, v1\nv_and_b32 v10, 15, v1\nv_lshl_add_u32 v7, v4, 6, v10\ns_lshl_b32 s19, s7, 3\nv_lshl_add_u32 v114, v7, 5, s19")
    a(f"s_lshl_b32 s19, s7, 2\nv_mov_b32 v112, s19\ns_add_u32 s19, s19, {L_WB}\nv_lshl_add_u32 v116, v7, 4, s19\nv_mov_b32 v15, 0\nv_mov_b32 v113, 1")
    a(f"ds_write_b32 v112, v15 offset:{L_FL}\nds_write_b32 v112, v15 offset:{L_FL+16}\ns_mov_b32 s6, 0x100000\ns_cmpk_eq_u32 s2, 256")
    a("s_waitcnt lgkmcnt(0)")
    a(f"s_cselect_b64 s[32:33], s[12:13], s[32:33]\ns_cselect_b64 s[36:37], s[12:13], s[36:37]\ns_cselect_b32 s34, s14, s34\ns_cselect_b32 s38, s14, s38")
    st(a, 1)
    a("s_barrier")
    a("buffer_load_dwordx4 v12, s[12:15], s4 offen lds\ns_add_u32 m0, s10, 1024\ns_nop 0")
    a("buffer_load_dwordx4 v12, s[12:15], s5 offen lds\ns_mov_b32 m0, s11\ns_nop 0")
    a("buffer_load_dwordx4 v13, s[32:35], s8 offen lds\ns_add_u32 m0, s11, 4096\ns_nop 0")
    a("buffer_load_dwordx4 v13, s[36:39], s9 offen lds")
    st(a, 2)
    a("s_barrier")
    def sync4(k, off):
        a(f"ds_write_b32 v112, v113 offset:{off}\nP2_SP{k}:")
        a(f"ds_read_b128 v[80:83], v15 offset:{off}\ns_waitcnt lgkmcnt(0)\nv_and_b32 v80, v80, v81\nv_and_b32 v82, v82, v83\nv_and_b32 v80, v80, v82")
        a(f"v_readfirstlane_b32 s5, v80\ns_sub_u32 s6, s6, 1\ns_cselect_b32 s5, 1, s5\ns_cmp_eq_u32 s5, 0\ns_cbranch_scc1 P2_SP{k}")
    a("s_waitcnt vmcnt(2)")
    sync4(0, L_FL)
    st(a, 3)
    for j, r in enumerate((72, 76, 74, 78)): a(f"ds_read_b64 {p(r)}, v114 offset:{L_XB + 512*j}")
    a("s_waitcnt lgkmcnt(0)\nv_swap_b32 v73, v76\nv_swap_b32 v75, v78")
    def mf(t):
        if cfg.prio == 1: a("s_setprio 2")
        a(t)
        if cfg.prio == 1: a("s_setprio 0")
    if cfg.nofft: end(a, 1)
    col = (72, 76); D = ((16, 20), (24, 28)); T = ((32, 36), (40, 44))
    for c in range(2): mf(f"{MF32} {q(D[c][0])}, {q(col[c])}, {q(FRE)}, 0\n{MF32} {q(D[c][1])}, {q(col[c])}, {q(FIM)}, 0")
    for c in range(2):
        twiddle(a, D[c][0], D[c][1], TC, TS, T[c][0], T[c][1], packed=False)
        for r in range(4): a(f"v_cvt_pk_bf16_f32 v{col[c]+r}, v{T[c][0]+r}, v{T[c][1]+r}")
        mf(f"{MF32} {q(D[c][0])}, {q(FRE)}, {q(col[c])}, 0\n{MF32} {q(D[c][1])}, {q(FIM)}, {q(col[c])}, 0")
    a("s_waitcnt vmcnt(0)")
    sync4(1, L_FL + 16)
    st(a, 4)
    for arr in range(2):
        for r in (0, 2): a(f"ds_read2st64_b32 {p(80+4*arr+r)}, v116 offset0:{16*arr+r} offset1:{16*arr+r+1}")
    a("s_waitcnt lgkmcnt(0)")
    for r in range(4): a(f"v_lshlrev_b32 v{48+r}, 16, v{80+r}\nv_lshlrev_b32 v{52+r}, 16, v{84+r}")
    for r in range(4): a(f"v_and_b32 v{56+r}, 0xffff0000, v{80+r}\nv_and_b32 v{60+r}, 0xffff0000, v{84+r}")
    for c in range(2):
        twiddle(a, D[c][0], D[c][1], 48 + 8*c, 52 + 8*c, T[c][0], T[c][1], conj=True, packed=False)
        for r in range(4): a(f"v_cvt_pk_bf16_f32 v{col[c]+r}, v{T[c][1]+r}, v{T[c][0]+r}")
        mf(f"{MF32} {q(D[c][0])}, {q(col[c])}, {q(FRE)}, 0\n{MF32} {q(D[c][1])}, {q(col[c])}, {q(FIM)}, 0")
    for c in range(2):
        twiddle(a, D[c][0], D[c][1], TC, TS, T[c][0], T[c][1], packed=False)
        for r in range(4): a(f"v_cvt_pk_bf16_f32 v{col[c]+r}, v{T[c][0]+r}, v{T[c][1]+r}")
        mf(f"{MF32} {q(D[c][0])}, {q(FRE)}, {q(col[c])}, 0\n{MF32} {q(D[c][1])}, {q(FIM)}, {q(col[c])}, 0")
    for c in range(2):
        for r in range(4): a(f"v_cvt_pk_bf16_f32 v{48+2*r+c}, v{D[c][1]+r}, v{D[c][0]+r}")
    for r in range(4): a(f"buffer_store_dwordx2 {p(48+2*r)}, v114, s[12:15], s63 offen offset:{512*r}")
    st(a, 6)
    end(a, 1)
    a("P2_EXIT:\ns_endpgm")
    F = p2_fft_tables()
    stg = np.zeros((64, 4), np.uint32)
    for l in range(64):
        n = l & 15
        stg[l, 0] = 2 * BCOL[n]; stg[l, 1] = 2 * (BCOL[16 + n] if 16 + n < 21 else 2049)
    tab = np.concatenate([stg.reshape(-1)] + [F[k].reshape(-1) for k in ("Fre", "Fim", "Tc", "Ts")] + [expand_table().reshape(-1)])
    return a, table_text("P2_TAB", tab), 128

P3_PS = 2624; P3_AB = 4 * 2624; P3_LDS = P3_AB + 8192
def gen_p3():
    a = Asm()
    st_begin(a)
    a("s_load_dwordx2 s[12:13], s[0:1], 120\ns_load_dwordx2 s[8:9], s[0:1], 104")
    a("s_cmpk_ge_u32 s2, 256\ns_cbranch_scc1 P3_EXIT")
    a("v_readfirstlane_b32 s3, v0\nv_and_b32 v1, 63, v0\nv_lshlrev_b32 v2, 4, v1\ns_lshr_b32 s3, s3, 6")
    table_base(a, 22, "P3_TAB")
    for i in range(8): a(f"global_load_dwordx4 {q(16+4*i)}, v2, s[22:23] offset:{1024*i-4096}")
    a("s_and_b32 s20, s2, 7\ns_lshl_b32 s20, s20, 5\ns_lshr_b32 s21, s2, 3\ns_add_u32 s20, s20, s21")
    a("s_lshl_b32 s21, s20, 5")
    a("v_lshrrev_b32 v4, 4, v1\nv_bfe_u32 v3, v1, 1, 3\nv_and_b32 v10, 15, v1")
    srd_pre(a, 12, WS_USED)
    a(f"v_lshlrev_b32 v15, 2, v3\ns_add_u32 s30, s21, {G_OFF}\nv_lshlrev_b32 v9, 3, v4\ns_add_u32 s38, s21, {YN_OFF}")
    a("v_lshrrev_b32 v11, 1, v1\nv_and_b32 v12, 1, v1\nv_lshlrev_b32 v12, 4, v12\nv_lshl_add_u32 v13, v11, 16, v12\nv_lshl_add_u32 v11, v11, 13, v12")
    a(f"s_lshl_b32 s24, s3, 19\ns_add_u32 s24, s24, s21\ns_add_u32 s24, s24, {Y1_OFF}\ns_add_u32 s25, s24, {32*8192}")
    a(f"s_mul_i32 s26, s3, {P3_PS}")
    a(f"s_and_b32 s27, s3, 1\ns_lshl_b32 s27, s27, 2\ns_lshr_b32 s28, s3, 1\ns_add_u32 s27, s27, s28\ns_lshl_b32 s27, s27, 13\ns_add_u32 s27, s27, s21\ns_add_u32 s27, s27, {AT_OFF}\ns_add_u32 s28, s27, 16384")
    a(f"s_lshl_b32 s29, s3, 11\ns_add_u32 s29, s29, {P3_AB}\ns_lshl_b32 s31, s3, 3\ns_add_u32 s31, s31, s30")
    a("s_mov_b32 m0, s26")
    a("s_waitcnt lgkmcnt(0)")
    st(a, 1)
    a("buffer_load_dword v14, v15, s[12:15], s30 offen\nbuffer_load_dwordx2 v[104:105], v9, s[12:15], s38 offen")
    a("buffer_load_dwordx4 v11, s[12:15], s24 offen lds\ns_add_u32 m0, s26, 1280\ns_nop 0")
    a("buffer_load_dwordx4 v11, s[12:15], s25 offen lds\ns_mov_b32 m0, s29\ns_nop 0")
    a("buffer_load_dwordx4 v13, s[12:15], s27 offen lds\ns_add_u32 m0, s29, 1024\ns_load_dwordx2 s[32:33], s[12:13], s31")
    a("buffer_load_dwordx4 v13, s[12:15], s28 offen lds")
    srd_pre(a, 8, 2097152)
    a("v_lshl_add_u32 v5, v3, 8, s20\nv_mul_u32_u24 v6, v4, v5\nv_and_b32 v7, 1, v1\nv_lshlrev_b32 v7, 8, v7\nv_sub_u32 v6, v7, v6\nv_lshlrev_b32 v6, 1, v6\nv_sub_u32 v5, v6, v5")
    a("v_cvt_f32_i32 v6, v6\nv_cvt_f32_i32 v5, v5\nv_mul_f32 v6, 0x3a000000, v6\nv_mul_f32 v5, 0x3a000000, v5")
    a("v_cos_f32 v7, v6\nv_sin_f32 v6, v6\nv_cos_f32 v8, v5\nv_sin_f32 v5, v5")
    lane_base(a, 9, 1, 10, 11)
    a("v_lshl_add_u32 v9, v9, 2, s26\nv_cndmask_b32 v92, 0, -1, vcc\nv_add_u32 v50, 1280, v9\nv_mov_b32 v51, s26")
    a("v_mov_b32 v93, 0x03020100\nv_mov_b32 v11, 0x05040100\nv_cmp_eq_u32 vcc, 0, v1\nv_cndmask_b32 v93, v93, v11, vcc")
    a(f"v_mul_u32_u24 v15, {P3_PS}, v4\nv_lshl_add_u32 v15, v10, 2, v15\ns_lshl_b32 s31, s3, 6\nv_add_u32 v11, s31, v15")
    a(f"v_lshl_add_u32 v12, v4, 5, v10\nv_lshlrev_b32 v12, 5, v12\ns_lshl_b32 s31, s3, 3\ns_add_u32 s31, s31, {P3_AB}\nv_add_u32 v12, s31, v12")
    a("v_lshlrev_b32 v13, 5, v10\nv_lshl_add_u32 v13, v4, 3, v13")
    a("s_lshl_b32 s34, s20, 10\ns_lshl_b32 s35, s3, 19\ns_add_u32 s34, s34, s35\ns_add_u32 s35, s34, 0x40000")
    a("s_waitcnt vmcnt(5)")
    a("v_sub_f32 v14, 1.0, v14\nv_cvt_pk_bf16_f32 v14, v14, v14\nv_and_b32 v14, 0xffff0000, v14")
    a("v_mul_f32 v7, v14, v7\nv_mul_f32 v6, v14, v6\nv_mul_f32 v8, v14, v8\nv_mul_f32 v5, v14, v5")
    a("v_cvt_pk_bf16_f32 v48, v7, v6\nv_cvt_pk_bf16_f32 v49, v8, v5")
    a("s_waitcnt vmcnt(4) lgkmcnt(0)")
    a(f"{MF16} {q(60)}, {p(48)}, {p(104)}, 0")
    a("s_lshr_b32 s36, s32, 16\ns_lshr_b32 s37, s33, 16")
    a("v_cvt_pk_bf16_f32 v52, v60, v61\nv_cvt_pk_bf16_f32 v53, v62, v63")
    a("ds_write2st64_b32 v15, v52, v53 offset0:4 offset1:9")
    a("s_waitcnt vmcnt(2)")
    st(a, 2)
    a("s_barrier")
    for t in range(4): a(f"ds_read2st64_b32 {p(52+2*t)}, v11 offset0:{t} offset1:{t+5}")
    for t in range(4):
        a(f"s_waitcnt lgkmcnt({3-t})\n{MF16} {q(60+4*t)}, {p(48)}, {p(52+2*t)}, 0")
    for t in range(4):
        a(f"v_cvt_pk_bf16_f32 v{52+2*t}, v{60+4*t}, v{61+4*t}\nv_cvt_pk_bf16_f32 v{53+2*t}, v{62+4*t}, v{63+4*t}")
        a(f"ds_write2st64_b32 v11, v{52+2*t}, v{53+2*t} offset0:{t} offset1:{t+5}")
    a("s_waitcnt lgkmcnt(0)")
    st(a, 3)
    a("s_barrier")
    for e, ad in ((0, 9), (1, 50)):
        a(f"ds_read2_b32 {p(52+8*e)}, v{ad} offset1:32\nds_read2_b32 {p(54+8*e)}, v{ad} offset0:64 offset1:96\nds_read_b32 v{94+e}, v51 offset:{1024+1280*e}")
    for e in range(2):
        A, Am = 52 + 8*e, 56 + 8*e
        re, im = 68 + 8*e, 72 + 8*e
        a(f"s_waitcnt lgkmcnt({3-3*e})")
        a(f"v_perm_b32 v{A}, v{94+e}, v{A}, v93")
        for r in range(4): a(f"v_and_b32 v{Am+r}, v92, v{A+r}")
        a(f"{MF32} {q(re)}, {q(A)}, {q(16)}, 0\n{MF32} {q(im)}, {q(A)}, {q(20)}, 0")
        a(f"{MF32} {q(re)}, {q(Am)}, {q(24)}, {q(re)}\n{MF32} {q(im)}, {q(Am)}, {q(28)}, {q(im)}")
    a("s_waitcnt vmcnt(0)\ns_barrier")
    for i, (hb, e2) in enumerate(((0,0),(0,1),(1,0),(1,1))): a(f"ds_read_b64 {p(96+2*i)}, v12 offset:{4096*e2+512*hb}")
    for e in range(2):
        re, im = 68 + 8*e, 72 + 8*e
        twiddle(a, re, im, 32, 36, 84, 88, conj=True)
        for r in range(4): a(f"v_cvt_pk_bf16_f32 v{52+4*e+r}, v{84+r}, v{88+r}")
        a(f"{MF32} {q(re)}, {q(52+4*e)}, {q(40)}, 0\n{MF32} {q(im)}, {q(52+4*e)}, {q(44)}, 0")
    a("s_waitcnt lgkmcnt(0)")
    for e in range(2):
        for hb in range(2):
            D = 68 + 8*e + 4*hb
            for e2 in range(2):
                av = 96 + 2*(2*hb + e2) + e
                a(f"v_dot2_f32_bf16 v{D+2*e2}, v{av}, s{36+e}, v{D+2*e2}\nv_dot2_f32_bf16 v{D+2*e2+1}, v{av}, s{32+e}, v{D+2*e2+1}")
        for hb in range(2):
            D = 68 + 8*e + 4*hb; o = 60 + 4*e + 2*hb
            a(f"v_cvt_pk_bf16_f32 v{o}, v{D}, v{D+1}\nv_cvt_pk_bf16_f32 v{o+1}, v{D+2}, v{D+3}")
            a(f"buffer_store_dwordx2 {p(o)}, v13, s[8:11], s{34+e} offen offset:{512*hb}")
    st(a, 4)
    end(a, 2)
    a("P3_EXIT:\ns_endpgm")
    T = p3_tables()
    tab = np.concatenate([T[k].reshape(-1) for k in ("Bre", "Bim", "dre", "dim", "Tc", "Ts", "F0", "F1")])
    return a, table_text("P3_TAB", tab), 106

def build(path):
    a1, t1, v1 = gen_p1(); a2, t2, v2 = gen_p2(); a3, t3, v3 = gen_p3()
    txt = ""
    for lab, aa in (("p1_kernel", a1), ("p2_kernel", a2), ("p3_kernel", a3)):
        body, n = aa.finish()
        txt += kernel_begin(lab) + ("P2_CODE:\n" if lab == "p2_kernel" else "") + body
        print(lab, "instructions:", len(aa.lines), "nops inserted:", n, "bytes:", aa.nbytes, file=sys.stderr)
    txt += "CODE_END:\n"
    rod = t2 + t3 + "TAB_END:\n" + t1
    launches = [("p1_kernel", 768, 256, P1_LDS), ("p2_kernel", 257, 512, P2_LDS), ("p3_kernel", 256, 256, P3_LDS)]
    descs = [descriptor("p1_kernel", v1), descriptor("p2_kernel", v2), descriptor("p3_kernel", v3)]
    open(path, "w").write(make_file(launches, txt, descs) + rod)

if __name__ == "__main__":
    for o in sys.argv[2:]:
        k, v = o.split("="); setattr(cfg, k, int(v))
    build(sys.argv[1])
```

```python
import sys, numpy as np
from asmgen import *
from tables import *
import gen as G1
from gen import cfg, srd_pre, st, st_begin, end, pad_begin, table_base, lane_base, twiddle, q, p, MF32, MF16, pk1, pk2, cmul_seq, zpow, expand_table
from gen import X1_OFF, XN_OFF, WN_OFF, YN_OFF, UT_OFF, Y1_OFF, AT_OFF

FL_OFF = 0x230000; FL_SET = 0x4000; FL_REP = 1280
EP_OFF = 0x240000
WS_USED = 0xB00000
RS = 544
cfg.psleep = 4
cfg.gsleep = 1
cfg.afirst = 0
cfg.bfirst = 0
cfg.nrep = 8
cfg.outsc = 0

B_EX = 8192; B_EXS = 2064; B_UX = B_EX + 4 * B_EXS; B_GW = B_UX + 8192; B_WB = B_GW + 1024; B_GL = B_WB + 8192
B_XB = B_GL + 64; B_YB = B_XB + 8192; B_PS = 2624; B_AB = B_YB + 4 * B_PS
A_TAS = 32 * RS; A_TB = 2 * A_TAS; A_TBS = 21 * RS
A_KS = A_TB + 2 * A_TBS; A_KSS = 4672; E_CH = 64 * 72 + 64
A_KB = 0; K_CS = 4160; K_CH = 4 * K_CS
A_XB = 2 * K_CH; A_WB = A_XB + 8192
A_UB = (A_KS + 2 * A_KSS + 255) // 256 * 256; U_P1 = 1280; U_P2 = 2592; U_CH = 5200
LDS = A_UB + 2 * U_CH
SPIN = 0x10000

cfg.stB = "karg,rows,stores,drain,p0pass,ystaged"
cfg.stA = "karg,params,expand,pdrain,ustaged,convend"
def sn(a, role, name):
    l = (cfg.stB if role == "B" else cfg.stA).split(",")
    if name in l: st(a, l.index(name) + 1)
_u = [0]
def signal(a, fset):
    a(f"s_mov_b64 exec, {(1 << cfg.nrep) - 1}\nv_mul_u32_u24 v60, {FL_REP}, v1\nv_mov_b32 v61, s96\ns_add_u32 s5, s97, {FL_OFF + fset*FL_SET}")
    a("buffer_store_dword v61, v60, s[12:15], s5 offen sc0 sc1\ns_mov_b64 exec, -1")
def poll(a, fsets, first=0):
    _u[0] += 1; u = _u[0]
    a(f"s_and_b32 s5, s2, {cfg.nrep - 1}\ns_mul_i32 s5, s5, {FL_REP}\ns_mov_b32 s6, {SPIN}")
    for k, f in enumerate(fsets): a(f"s_add_u32 s{98+k}, s5, {FL_OFF + f*FL_SET}")
    if first: a(f"s_sleep {first}")
    a(f"LPOLL{u}:")
    for k, f in enumerate(fsets): a(f"buffer_load_dwordx4 {q(60+4*k)}, v2, s[12:15], s{98+k} offen sc1")
    a("s_waitcnt vmcnt(0)")
    n = 4 * len(fsets)
    for i in range(n): a(f"v_xor_b32 v{60+i}, s96, v{60+i}")
    for i in range(1, n - 1, 2): a(f"v_or3_b32 v60, v60, v{60+i}, v{61+i}")
    a(f"v_or_b32 v60, v60, v{60+n-1}\nv_cmp_ne_u32 vcc, 0, v60\ns_sub_u32 s6, s6, 1\ns_cbranch_scc1 LPOLX{u}\ns_cbranch_vccz LPOLX{u}")
    a(f"s_sleep {cfg.psleep}\ns_branch LPOLL{u}\nLPOLX{u}:")
def gather(a, loads, checks, issued=False):
    _u[0] += 1; u = _u[0]
    a(f"s_mov_b32 s6, {SPIN}")
    if issued: a(f"s_branch LGC{u}")
    a(f"LG{u}:")
    for l in loads: a(l)
    a(f"LGC{u}:\ns_waitcnt vmcnt(0)")
    c = list(checks)
    a(f"v_max_u32 v60, v{c[0]}, v{c[1]}")
    a(f"v_cmp_eq_u32 vcc, -1, v60\ns_sub_u32 s6, s6, 1\ns_cbranch_scc1 LGX{u}\ns_and_b64 exec, exec, vcc\ns_cbranch_scc0 LGX{u}")
    if cfg.gsleep: a(f"s_sleep {cfg.gsleep}")
    a(f"s_branch LG{u}\nLGX{u}:\ns_mov_b64 exec, -1")

def gen():
    a = Asm()
    st_begin(a); pad_begin(a, 0)
    a("s_load_dwordx2 s[12:13], s[0:1], 120\ns_load_dwordx2 s[8:9], s[0:1], 0\ns_load_dwordx2 s[16:17], s[0:1], 96")
    a("s_load_dwordx8 s[32:39], s[0:1], 8\ns_load_dwordx8 s[40:47], s[0:1], 40\ns_load_dwordx4 s[48:51], s[0:1], 80")
    a("v_readfirstlane_b32 s3, v0\nv_and_b32 v1, 63, v0\nv_lshlrev_b32 v2, 4, v1\ns_lshr_b32 s3, s3, 6")
    srd_pre(a, 12, WS_USED)
    a("v_lshrrev_b32 v4, 4, v1\nv_and_b32 v10, 15, v1\ns_and_b32 s97, s2, 0xff\ns_lshl_b32 s97, s97, 2")
    a("s_cmpk_ge_u32 s2, 256\ns_cbranch_scc1 A_IN")
    a("s_cmp_ge_u32 s3, 4\ns_cbranch_scc1 B_PF")
    table_base(a, 20, "P1_TAB")
    for i in range(8): a(f"global_load_dwordx4 {q(16+4*i)}, v2, s[20:21] offset:{1024*i-4096}")
    srd_pre(a, 8, 2097152); srd_pre(a, 16, 1024)
    a("s_and_b32 s60, s2, 7\ns_lshr_b32 s61, s2, 3\ns_lshl_b32 s52, s60, 5\ns_add_u32 s52, s52, s61")
    a("s_lshl_b32 s22, s52, 10\ns_lshl_b32 s23, s3, 19\ns_add_u32 s22, s22, s23\ns_lshl_b32 s24, s3, 11\ns_add_u32 s23, s22, 0x40000")
    a("s_mov_b32 m0, s24")
    a("s_waitcnt lgkmcnt(0)")
    sn(a, "B", "karg")
    a("buffer_load_dwordx4 v2, s[8:11], s22 offen lds\ns_add_u32 m0, s24, 1024\ns_nop 0")
    a(f"buffer_load_dwordx4 v2, s[8:11], s23 offen lds\ns_mov_b32 m0, {B_GW}\ns_mov_b32 s4, {EP_OFF}")
    a("buffer_load_dwordx4 v2, s[16:19], 0 offen lds\ns_load_dword s96, s[12:13], s4\ns_load_dwordx2 s[8:9], s[0:1], 104")
    a("s_mov_b32 s32, s48\ns_mov_b32 s33, s49\ns_mov_b32 s36, s50\ns_mov_b32 s37, s51")
    srd_pre(a, 32, 2048 * 514); srd_pre(a, 36, 2048 * 514)
    a("v_and_b32 v3, 7, v1\nv_lshl_add_u32 v3, s52, 3, v3\nv_mul_u32_u24 v13, 514, v3\nv_lshlrev_b32 v102, 1, v3")
    a("buffer_load_ushort v100, v13, s[32:35], 0 offen offset:512\nbuffer_load_ushort v101, v13, s[36:39], 0 offen offset:512")
    FRE, FIM, TC, TS = 112, 116, 120, 124
    a("v_bfe_u32 v3, v1, 1, 3\nv_lshl_add_u32 v5, v4, 9, s52\nv_mul_u32_u24 v5, v3, v5")
    a("v_and_b32 v6, 1, v1\nv_lshl_add_u32 v5, v6, 9, v5\nv_lshl_add_u32 v6, v3, 8, v5")
    a("v_cvt_f32_u32 v5, v5\nv_cvt_f32_u32 v6, v6\nv_mul_f32 v5, 0x3a000000, v5\nv_mul_f32 v6, 0x3a000000, v6")
    a("v_cos_f32 v7, v5\nv_sin_f32 v5, v5\nv_cos_f32 v8, v6\nv_sin_f32 v6, v6")
    a("v_cvt_pk_bf16_f32 v48, v7, v5\nv_cvt_pk_bf16_f32 v49, v8, v6")
    lane_base(a, 103, 1, 10, 11)
    a(f"s_mul_i32 s25, s3, {B_EXS}\ns_add_u32 s25, s25, {B_EX}")
    a("v_lshl_add_u32 v9, v103, 3, s25\nv_cndmask_b32 v50, 0, -1, vcc")
    a("s_mov_b32 s26, 0xffff\ns_cmp_eq_u32 s3, 0\ns_cselect_b32 s26, s26, -1\nv_mov_b32 v11, s26\nv_cndmask_b32 v51, -1, v11, vcc")
    a(f"v_mul_u32_u24 v14, {B_EXS}, v4\ns_lshl_b32 s26, s3, 9\nv_add_u32 v14, {B_EX}, v14\nv_lshl_add_u32 v11, v10, 5, v14\nv_add_u32 v11, s26, v11")
    a("v_lshlrev_b32 v12, 11, v4\nv_lshl_add_u32 v12, v10, 4, v12")
    a("s_lshl_b32 s27, s52, 13\ns_lshl_b32 s26, s3, 8\ns_add_u32 s27, s27, s26")
    a("v_lshl_add_u32 v13, v1, 3, s24\nv_lshlrev_b32 v15, 3, v1")
    a("v_lshlrev_b32 v6, 3, v4")
    a(f"s_lshl_b32 s53, s52, 5\ns_add_u32 s56, s53, {XN_OFF}")
    a("s_waitcnt vmcnt(3) lgkmcnt(0)")
    sn(a, "B", "rows")
    a("ds_read_b64_tr_b16 v[52:53], v13\nds_read_b64_tr_b16 v[54:55], v13 offset:512")
    a("ds_read_b64_tr_b16 v[56:57], v13 offset:1024\nds_read_b64_tr_b16 v[58:59], v13 offset:1536")
    a("s_waitcnt lgkmcnt(2)")
    a(f"{MF32} {q(60)}, {q(52)}, {q(16)}, 0\n{MF32} {q(64)}, {q(52)}, {q(20)}, 0")
    a("s_waitcnt lgkmcnt(0)")
    a(f"{MF32} {q(68)}, {q(56)}, {q(16)}, 0\n{MF32} {q(72)}, {q(56)}, {q(20)}, 0")
    a("s_add_u32 s96, s96, 1")
    for e in range(2):
        re, im = 60 + 8*e, 64 + 8*e
        twiddle(a, re, im, 24, 28, 76, 80)
        B, Bm = (84, 88) if e else (16, 20)
        for r in range(4): a(f"v_cvt_pk_bf16_f32 v{B+r}, v{76+r}, v{80+r}")
        for r in range(4): a(f"v_and_b32 v{Bm+r}, v50, v{B+r}")
        a(f"{MF32} {q(re)}, {q(32)}, {q(B)}, 0\n{MF32} {q(im)}, {q(36)}, {q(B)}, 0")
        a(f"{MF32} {q(re)}, {q(40)}, {q(Bm)}, {q(re)}\n{MF32} {q(im)}, {q(44)}, {q(Bm)}, {q(im)}")
    for e in range(2):
        for r in range(4): a(f"v_cvt_pk_bf16_f32 v{92+2*r+e}, v{60+8*e+r}, v{64+8*e+r}")
    for r in range(4): a(f"ds_write_b64 v9, {p(92+2*r)} offset:{256*r}")
    a("s_waitcnt vmcnt(2) lgkmcnt(0)")
    sn(a, "B", "exch")
    a("s_barrier")
    a("ds_read_b128 v[16:19], v11\nds_read_b128 v[20:23], v11 offset:16\nds_read_b64 v[24:25], v14")
    a(f"ds_read_b64_tr_b16 v[36:37], v15 offset:{B_GW}\nds_read_b64_tr_b16 v[38:39], v15 offset:{B_GW+512}")
    a("s_waitcnt lgkmcnt(4)")
    a("v_and_b32 v16, v51, v16\nv_and_b32 v17, v51, v17")
    a(f"{MF16} {q(64)}, {p(48)}, {p(18)}, 0")
    a("s_waitcnt lgkmcnt(2)")
    a(f"{MF16} {q(60)}, {p(48)}, {p(16)}, 0")
    a("v_lshrrev_b32 v24, 16, v24\nv_lshrrev_b32 v25, 16, v25")
    a(f"{MF16} {q(68)}, {p(48)}, {p(20)}, 0\n{MF16} {q(72)}, {p(48)}, {p(22)}, 0\n{MF16} {q(40)}, {p(48)}, {p(24)}, 0")
    for t in (1, 0, 2, 3):
        a(f"v_cvt_pk_bf16_f32 v{76+t}, v{60+4*t}, v{61+4*t}\nv_cvt_pk_bf16_f32 v{80+t}, v{62+4*t}, v{63+4*t}")
    a(f"buffer_store_dwordx4 {q(76)}, v12, s[12:15], s27 offen sc1\nbuffer_store_dwordx4 {q(80)}, v12, s[12:15], s27 offen offset:1024 sc1")
    a("v_cvt_pk_bf16_f32 v44, v40, v41\nv_cvt_pk_bf16_f32 v45, v42, v43")
    a("s_cmp_lg_u32 s3, 0\ns_cbranch_scc1 B_NONYQ")
    a("s_mov_b32 exec_lo, 0x10001\ns_mov_b32 exec_hi, 0x10001\nbuffer_store_dwordx2 v[44:45], v6, s[12:15], s56 offen sc1")
    a(f"s_mov_b64 exec, 0xff\ns_mov_b32 s4, {WN_OFF}\ns_mov_b32 s5, {WN_OFF + 4096}\ns_waitcnt vmcnt(3)")
    a("buffer_store_short v100, v102, s[12:15], s4 offen sc1\nbuffer_store_short v101, v102, s[12:15], s5 offen sc1\ns_mov_b64 exec, -1")
    a("B_NONYQ:")
    sn(a, "B", "stores")
    a("s_waitcnt lgkmcnt(0)")
    for i in range(4):
        for e in range(2): a(f"v_dot2_f32_bf16 v{60+e}, v{52+4*e+i}, v{36+i}, " + ("0" if i == 0 else f"v{60+e}"))
    for sh in ("row_shr:1", "row_shr:2", "row_shr:4", "row_shr:8"):
        for e in range(2): a(f"v_add_f32_dpp v{60+e}, v{60+e}, v{60+e} {sh} row_mask:0xf bank_mask:0xf bound_ctrl:0")
    for e in range(2): a(f"v_add_f32_dpp v{60+e}, v{60+e}, v{60+e} row_bcast:15 row_mask:0xa bank_mask:0xf")
    for e in range(2): a(f"v_add_f32_dpp v{60+e}, v{60+e}, v{60+e} row_bcast:31 row_mask:0xc bank_mask:0xf")
    a("v_cvt_pk_bf16_f32 v60, v60, v61\nv_and_b32 v61, 0xffff0000, v60\nv_lshlrev_b32 v60, 16, v60")
    a("v_mul_f32 v60, 0xbfb8aa3b, v60\nv_mul_f32 v61, 0xbfb8aa3b, v61\nv_exp_f32 v60, v60\nv_exp_f32 v61, v61")
    a("v_add_f32 v60, 1.0, v60\nv_add_f32 v61, 1.0, v61\nv_rcp_f32 v60, v60\nv_rcp_f32 v61, v61")
    a(f"s_lshl_b32 s4, s3, 3\ns_add_u32 s4, s4, {B_GL}\nv_mov_b32 v62, s4")
    a("v_cvt_pk_bf16_f32 v60, v60, v61\nv_and_b32 v61, 0xffff0000, v60\nv_lshlrev_b32 v60, 16, v60")
    a("s_mov_b32 exec_lo, 0\ns_mov_b32 exec_hi, 0x80000000\nds_write_b64 v62, v[60:61]\ns_mov_b64 exec, -1")
    a("v_readlane_b32 s40, v60, 63\nv_readlane_b32 s41, v61, 63")
    a("v_lshrrev_b32 v12, 1, v1\nv_and_b32 v13, 1, v1\nv_lshlrev_b32 v13, 4, v13\nv_lshl_add_u32 v104, v12, 16, v13\nv_lshl_add_u32 v12, v12, 13, v13")
    a(f"s_lshl_b32 s4, s3, 19\ns_lshl_b32 s5, s60, 10\ns_add_u32 s4, s4, s5\ns_lshl_b32 s5, s61, 5\ns_add_u32 s22, s4, s5\ns_add_u32 s23, s22, {32*8192}")
    a(f"s_lshl_b32 s63, s60, 5\ns_add_u32 s63, s63, s61\ns_lshl_b32 s63, s63, 13\ns_add_u32 s63, s63, {Y1_OFF}\ns_add_u32 s62, s63, s24")
    a(f"v_add_u32 v13, s24, v2\nv_lshl_add_u32 v7, v4, 6, v10\ns_lshl_b32 s4, s3, 3\nv_lshl_add_u32 v110, v7, 5, s4\nv_add_u32 v111, {B_XB}, v110")
    a(f"s_lshl_b32 s4, s3, 2\ns_add_u32 s4, s4, {B_WB}\nv_lshl_add_u32 v109, v7, 4, s4")
    a("s_mov_b32 s7, 0\ns_lshr_b32 s42, s40, 16\ns_lshr_b32 s43, s41, 16")
    a("s_waitcnt vmcnt(0) lgkmcnt(0)")
    sn(a, "B", "drain")
    a("s_barrier")
    a("s_cmp_lg_u32 s3, 0\ns_cbranch_scc1 B_S1")
    signal(a, 0)
    a("B_S1:")
    a("s_lshl_b32 s26, s3, 9\ns_add_u32 s26, s26, s60\ns_mul_i32 s26, s26, 514\ns_lshl_b32 s27, s61, 4\ns_add_u32 s26, s26, s27\nv_mul_u32_u24 v14, 4112, v1")
    a(f"s_lshl_b32 s27, s3, 10\ns_add_u32 s27, s27, {B_WB}\ns_mov_b32 m0, s27")
    a("buffer_load_dwordx4 v14, s[32:35], s26 offen lds\ns_add_u32 m0, s27, 4096\ns_nop 0\nbuffer_load_dwordx4 v14, s[36:39], s26 offen lds")
    table_base(a, 20, "P2_TAB")
    for i in range(4): a(f"global_load_dwordx4 {q(112+4*i)}, v2, s[20:21] offset:{1024*i-3072}")
    a("s_cmp_lg_u32 s3, 0\ns_cbranch_scc1 B_S3")
    poll(a, [0], cfg.bfirst)
    a("B_S3:\ns_barrier")
    sn(a, "B", "p0pass")
    a("buffer_load_dwordx4 v[16:19], v12, s[12:15], s22 offen sc1\nbuffer_load_dwordx4 v[20:23], v12, s[12:15], s23 offen sc1")
    a(f"s_waitcnt vmcnt(1)\nds_write_b128 v13, v[16:19] offset:{B_XB}\ns_waitcnt vmcnt(0)\nds_write_b128 v13, v[20:23] offset:{B_XB+1024}")
    a("s_waitcnt lgkmcnt(0)")
    sn(a, "B", "xstaged")
    a("s_barrier")
    if cfg.prio: a("s_setprio 2")
    for j, r in enumerate((72, 76, 74, 78)): a(f"ds_read_b64 {p(r)}, v111 offset:{512*j}")
    for arr in range(2):
        for r in (0, 2): a(f"ds_read2st64_b32 {p(80+4*arr+r)}, v109 offset0:{16*arr+r} offset1:{16*arr+r+1}")
    a("s_waitcnt lgkmcnt(4)\nB_FFT:\nv_swap_b32 v73, v76\nv_swap_b32 v75, v78")
    col = (72, 76); D = ((16, 20), (24, 28)); T = ((32, 36), (40, 44))
    for c in range(2): a(f"{MF32} {q(D[c][0])}, {q(col[c])}, {q(FRE)}, 0\n{MF32} {q(D[c][1])}, {q(col[c])}, {q(FIM)}, 0")
    a("s_waitcnt lgkmcnt(0)")
    for r in range(4): a(f"v_lshlrev_b32 v{48+r}, 16, v{80+r}\nv_lshlrev_b32 v{52+r}, 16, v{84+r}")
    for c in range(2):
        twiddle(a, D[c][0], D[c][1], TC, TS, T[c][0], T[c][1], packed=False)
        for r in range(4): a(f"v_cvt_pk_bf16_f32 v{col[c]+r}, v{T[c][0]+r}, v{T[c][1]+r}")
        a(f"{MF32} {q(D[c][0])}, {q(FRE)}, {q(col[c])}, 0\n{MF32} {q(D[c][1])}, {q(FIM)}, {q(col[c])}, 0")
    for r in range(4): a(f"v_and_b32 v{56+r}, 0xffff0000, v{80+r}\nv_and_b32 v{60+r}, 0xffff0000, v{84+r}")
    for c in range(2):
        twiddle(a, D[c][0], D[c][1], 48 + 8*c, 52 + 8*c, T[c][0], T[c][1], conj=True, packed=False)
        for r in range(4): a(f"v_cvt_pk_bf16_f32 v{col[c]+r}, v{T[c][1]+r}, v{T[c][0]+r}")
        a(f"{MF32} {q(D[c][0])}, {q(col[c])}, {q(FRE)}, 0\n{MF32} {q(D[c][1])}, {q(col[c])}, {q(FIM)}, 0")
    for c in range(2):
        twiddle(a, D[c][0], D[c][1], TC, TS, T[c][0], T[c][1], packed=False)
        for r in range(4): a(f"v_cvt_pk_bf16_f32 v{col[c]+r}, v{T[c][0]+r}, v{T[c][1]+r}")
        a(f"{MF32} {q(D[c][0])}, {q(FRE)}, {q(col[c])}, 0\n{MF32} {q(D[c][1])}, {q(FIM)}, {q(col[c])}, 0")
    for c in range(2):
        for r in range(4): a(f"v_cvt_pk_bf16_f32 v{48+2*r+c}, v{D[c][1]+r}, v{D[c][0]+r}")
    sn(a, "B", "fftdone")
    a("s_cmp_lg_u32 s7, 0\ns_cbranch_scc1 A_NYS")
    for r in range(4): a(f"ds_write_b64 v111, {p(48+2*r)} offset:{512*r}")
    a("s_waitcnt lgkmcnt(0)\ns_barrier")
    a(f"ds_read_b128 v[64:67], v13 offset:{B_XB}\nds_read_b128 v[68:71], v13 offset:{B_XB+1024}")
    a("s_waitcnt lgkmcnt(1)\nbuffer_store_dwordx4 v[64:67], v2, s[12:15], s62 offen sc1")
    a("s_waitcnt lgkmcnt(0)\nbuffer_store_dwordx4 v[68:71], v2, s[12:15], s62 offen offset:1024 sc1")
    table_base(a, 20, "P3_TAB")
    for i in range(8): a(f"global_load_dwordx4 {q(16+4*i)}, v2, s[20:21] offset:{1024*i-4096}")
    a(f"v_bfe_u32 v3, v1, 1, 3\nv_lshlrev_b32 v15, 2, v3\nds_read_b32 v14, v15 offset:{B_GL}")
    srd_pre(a, 8, 2097152)
    a("v_lshl_add_u32 v5, v3, 8, s52\nv_mul_u32_u24 v6, v4, v5\nv_and_b32 v7, 1, v1\nv_lshlrev_b32 v7, 8, v7\nv_sub_u32 v6, v7, v6\nv_lshlrev_b32 v6, 1, v6\nv_sub_u32 v5, v6, v5")
    a("v_cvt_f32_i32 v6, v6\nv_cvt_f32_i32 v5, v5\nv_mul_f32 v6, 0x3a000000, v6\nv_mul_f32 v5, 0x3a000000, v5")
    a("v_cos_f32 v7, v6\nv_sin_f32 v6, v6\nv_cos_f32 v8, v5\nv_sin_f32 v5, v5")
    a(f"s_mul_i32 s26, s3, {B_PS}\ns_add_u32 s26, s26, {B_YB}")
    a("v_cmp_eq_u32 vcc, 0, v10\nv_lshl_add_u32 v9, v103, 2, s26\nv_add_u32 v50, 1280, v9\nv_cndmask_b32 v92, 0, -1, vcc\nv_add_u32 v105, s26, v2")
    a("v_lshlrev_b32 v106, 3, v4\ns_lshl_b32 s39, s3, 4")
    a(f"v_mul_u32_u24 v15, {B_PS}, v4\nv_lshl_add_u32 v15, v10, 2, v15\nv_add_u32 v15, {B_YB}, v15\ns_lshl_b32 s31, s3, 6\nv_add_u32 v11, s31, v15")
    a(f"v_lshl_add_u32 v107, v4, 5, v10\nv_lshlrev_b32 v107, 5, v107\ns_lshl_b32 s31, s3, 3\ns_add_u32 s31, s31, {B_AB}\nv_add_u32 v107, s31, v107")
    a("v_lshlrev_b32 v108, 5, v10\nv_lshl_add_u32 v108, v4, 3, v108")
    a("s_lshl_b32 s34, s52, 10\ns_lshl_b32 s35, s3, 19\ns_add_u32 s34, s34, s35\ns_add_u32 s35, s34, 0x40000")
    a(f"s_lshl_b32 s24, s3, 19\ns_add_u32 s24, s24, s53\ns_add_u32 s24, s24, {Y1_OFF}\ns_add_u32 s25, s24, {32*8192}\ns_add_u32 s38, s53, {YN_OFF}")
    a(f"s_and_b32 s27, s3, 1\ns_lshl_b32 s27, s27, 2\ns_lshr_b32 s28, s3, 1\ns_add_u32 s27, s27, s28\ns_lshl_b32 s27, s27, 13\ns_add_u32 s27, s27, s53\ns_add_u32 s27, s27, {AT_OFF}\ns_add_u32 s28, s27, 16384")
    a("s_waitcnt lgkmcnt(0)")
    a("v_sub_f32 v14, 1.0, v14\nv_cvt_pk_bf16_f32 v14, v14, v14\nv_and_b32 v14, 0xffff0000, v14")
    a("v_mul_f32 v7, v14, v7\nv_mul_f32 v6, v14, v6\nv_mul_f32 v8, v14, v8\nv_mul_f32 v5, v14, v5")
    a("v_cvt_pk_bf16_f32 v48, v7, v6\nv_cvt_pk_bf16_f32 v49, v8, v5")
    a("s_cmp_lg_u32 s3, 0\ns_cbranch_scc1 B_S4")
    poll(a, [1])
    a("B_S4:\ns_waitcnt vmcnt(0)")
    sn(a, "B", "ydrain")
    a("s_barrier")
    gather(a, ["buffer_load_dwordx4 v[64:67], v12, s[12:15], s24 offen sc1", "buffer_load_dwordx4 v[68:71], v12, s[12:15], s25 offen sc1"], [64, 68])
    a("ds_write_b128 v105, v[64:67]\nds_write_b128 v105, v[68:71] offset:1280")
    a("s_waitcnt lgkmcnt(0)")
    sn(a, "B", "ystaged")
    a("s_barrier")
    for t in range(4): a(f"ds_read2st64_b32 {p(52+2*t)}, v11 offset0:{t} offset1:{t+5}")
    for t in range(4):
        a(f"s_waitcnt lgkmcnt({3-t})\n{MF16} {q(60+4*t)}, {p(48)}, {p(52+2*t)}, 0")
    for t in range(4):
        a(f"v_cvt_pk_bf16_f32 v{52+2*t}, v{60+4*t}, v{61+4*t}\nv_cvt_pk_bf16_f32 v{53+2*t}, v{62+4*t}, v{63+4*t}")
        a(f"ds_write2st64_b32 v11, v{52+2*t}, v{53+2*t} offset0:{t} offset1:{t+5}")
    a("s_waitcnt lgkmcnt(0)\ns_barrier")
    for e, ad in ((0, 9), (1, 50)):
        a(f"ds_read2_b32 {p(52+8*e)}, v{ad} offset1:32\nds_read2_b32 {p(54+8*e)}, v{ad} offset0:64 offset1:96")
    for e in range(2):
        A, Am = 52 + 8*e, 56 + 8*e
        re, im = 68 + 8*e, 72 + 8*e
        a(f"s_waitcnt lgkmcnt({2-2*e})")
        for r in range(4): a(f"v_and_b32 v{Am+r}, v92, v{A+r}")
        a(f"{MF32} {q(re)}, {q(A)}, {q(16)}, 0\n{MF32} {q(im)}, {q(A)}, {q(20)}, 0")
        a(f"{MF32} {q(re)}, {q(Am)}, {q(24)}, {q(re)}\n{MF32} {q(im)}, {q(Am)}, {q(28)}, {q(im)}")
    for e in range(2):
        re, im = 68 + 8*e, 72 + 8*e
        twiddle(a, re, im, 32, 36, 84, 88, conj=True, packed=False)
        for r in range(4): a(f"v_cvt_pk_bf16_f32 v{52+4*e+r}, v{84+r}, v{88+r}")
        a(f"{MF32} {q(re)}, {q(52+4*e)}, {q(40)}, 0\n{MF32} {q(im)}, {q(52+4*e)}, {q(44)}, 0")
    sn(a, "B", "bdone")
    a("s_cmp_lg_u32 s3, 0\ns_cbranch_scc1 B_S5")
    poll(a, [2])
    a("B_S5:\ns_barrier")
    gather(a, ["buffer_load_dwordx2 v[24:25], v106, s[12:15], s38 offen sc1"], [24, 24])
    a(f"{MF16} {q(28)}, {p(48)}, {p(24)}, 0")
    a("v_mul_f32 v28, 0x35800000, v28\nv_mul_f32 v30, 0x35800000, v30\nv_readlane_b32 s44, v28, s39\nv_readlane_b32 s45, v30, s39")
    for e in range(2):
        for hb in range(2):
            D_ = 68 + 8*e + 4*hb
            a(f"v_add_f32 v{D_}, s{44+e}, v{D_}\nv_subrev_f32 v{D_+1}, s{44+e}, v{D_+1}\nv_add_f32 v{D_+2}, s{44+e}, v{D_+2}\nv_subrev_f32 v{D_+3}, s{44+e}, v{D_+3}")
    sn(a, "B", "ngot")
    gather(a, ["buffer_load_dwordx4 v[16:19], v104, s[12:15], s27 offen sc1", "buffer_load_dwordx4 v[20:23], v104, s[12:15], s28 offen sc1"], [16, 20])
    sn(a, "B", "agot")
    a(f"ds_write_b128 v13, v[16:19] offset:{B_AB}\nds_write_b128 v13, v[20:23] offset:{B_AB+1024}")
    a("s_waitcnt lgkmcnt(0)\ns_barrier")
    for i, (hb, e2) in enumerate(((0,0),(0,1),(1,0),(1,1))): a(f"ds_read_b64 {p(96+2*i)}, v107 offset:{4096*e2+512*hb}")
    osc = " sc1" if cfg.outsc == 1 else (" nt" if cfg.outsc == 2 else "")
    for hb in range(2):
        a(f"s_waitcnt lgkmcnt({2-2*hb})")
        for e in range(2):
            D_ = 68 + 8*e + 4*hb
            for e2 in range(2):
                av = 96 + 2*(2*hb + e2) + e
                a(f"v_dot2_f32_bf16 v{D_+2*e2}, v{av}, s{42+e}, v{D_+2*e2}\nv_dot2_f32_bf16 v{D_+2*e2+1}, v{av}, s{40+e}, v{D_+2*e2+1}")
        for e in range(2):
            D_ = 68 + 8*e + 4*hb; o = 60 + 4*e + 2*hb
            a(f"v_cvt_pk_bf16_f32 v{o}, v{D_}, v{D_+1}\nv_cvt_pk_bf16_f32 v{o+1}, v{D_+2}, v{D_+3}")
            a(f"buffer_store_dwordx2 {p(o)}, v108, s[8:11], s{34+e} offen offset:{512*hb}{osc}")
    a("s_or_b32 s4, s2, s3\ns_cmp_lg_u32 s4, 0\ns_cbranch_scc1 L_END")
    a(f"s_mov_b64 exec, 1\nv_mov_b32 v60, 0\nv_mov_b32 v61, s96\ns_mov_b32 s4, {EP_OFF}\nbuffer_store_dword v61, v60, s[12:15], s4 offen sc1")
    a("L_END:")
    end(a, 0)
    a("A_IN:")
    a("s_cmpk_ge_u32 s2, 512\ns_cbranch_scc1 L_EXIT")
    a("s_sub_u32 s58, s2, 256\ns_and_b32 s27, s3, 1\ns_bfe_u32 s26, s3, 0x10001\ns_lshl_b32 s28, s58, 9\ns_lshl_b32 s29, s26, 8\ns_add_u32 s28, s28, s29\ns_lshl_b32 s29, s27, 7\ns_add_u32 s28, s28, s29")
    a("v_lshl_add_u32 v5, v1, 1, s28\ns_lshl_b32 s29, s58, 2\ns_lshl_b32 s52, s26, 4\ns_sub_u32 s52, 16, s52\nv_mov_b32 v13, 0x3fb8aa3b")
    table_base(a, 20, "P2_TAB")
    a(f"s_mov_b32 s4, {EP_OFF}\ns_lshl_b32 s54, s27, 8\ns_cmp_ge_u32 s3, 4")
    a("s_waitcnt lgkmcnt(0)")
    sn(a, "A", "karg")
    a("s_load_dword s30, s[44:45], s29\ns_load_dword s31, s[46:47], s29\ns_load_dword s96, s[12:13], s4")
    a("global_load_ushort v11, v5, s[32:33]\nglobal_load_ushort v12, v5, s[34:35]")
    a("s_cbranch_scc0 A_P")
    for i in range(2, 6): a(f"global_load_ushort v{16+i}, v5, s[{32+2*i}:{33+2*i}]")
    a("A_P:")
    a("v_and_b32 v3, 0xff, v0\nv_lshlrev_b32 v6, 5, v3")
    a(f"s_lshr_b32 s24, s3, 2\ns_mul_i32 s25, s24, {A_KSS}\ns_add_u32 s25, s25, {A_KS}\nv_lshl_add_u32 v126, v3, 4, s25")
    a(f"s_mul_i32 s23, s24, {K_CH}\ns_add_u32 s23, s23, {A_KB + 64}\nv_lshl_add_u32 v127, v3, 4, s23")
    a("s_and_b32 s23, s3, 3\ns_cmp_ge_u32 s23, 1\ns_cselect_b64 s[56:57], -1, 0\ns_cmp_ge_u32 s23, 2\ns_cselect_b64 s[62:63], -1, 0")
    a("v_mov_b32 v104, 0\nv_mov_b32 v105, 0\nv_mov_b32 v7, s25\nds_write_b64 v7, v[104:105] offset:8")
    a(f"s_mul_i32 s22, s27, {U_P1}\ns_mul_i32 s23, s26, {U_P2}\ns_mul_i32 s25, s24, {U_CH}\ns_add_u32 s22, s22, s23\ns_add_u32 s22, s22, s25\ns_add_u32 s22, s22, {A_UB}")
    a(f"v_lshl_add_u32 v7, v1, 2, s22\nds_write_b32 v7, v104\ns_mul_i32 s23, s3, {K_CS}\nv_lshl_add_u32 v113, v10, 2, s23")
    a("s_waitcnt lgkmcnt(0)")
    a("s_lshl_b32 s30, s30, s52\ns_and_b32 s30, s30, 0xffff0000\nv_mul_f32 v14, s30, v13\nv_exp_f32 v14, v14\ns_add_u32 s96, s96, 1")
    a("v_cvt_pk_bf16_f32 v14, v14, v14\nv_and_b32 v14, 0xffff0000, v14\nv_mul_f32 v13, v14, v13\nv_mul_f32 v15, 0.15915494, v14")
    a("s_cmp_ge_u32 s3, 4\ns_cbranch_scc1 A_B")
    a("v_lshrrev_b32 v22, 3, v1\nv_and_b32 v7, 7, v1\nv_lshlrev_b32 v8, 15, v22\nv_lshl_add_u32 v8, v7, 4, v8")
    a(f"s_lshl_b32 s28, s58, 7\ns_lshl_b32 s29, s3, 19\ns_add_u32 s28, s28, s29\ns_add_u32 s28, s28, {UT_OFF}\ns_add_u32 s29, s28, 0x40000")
    a(f"v_and_b32 v9, 1, v7\nv_mul_u32_u24 v9, {U_P2}, v9\nv_bfe_u32 v19, v7, 1, 1\nv_mul_u32_u24 v19, {U_P1}, v19\nv_lshrrev_b32 v7, 2, v7\nv_mul_u32_u24 v7, {U_CH}, v7")
    a(f"v_add3_u32 v9, v9, v19, v7\ns_lshl_b32 s22, s3, 8\ns_add_u32 s22, s22, {A_UB + 256}\nv_lshl_add_u32 v22, v22, 4, s22\nv_add_u32 v119, v22, v9")
    a(f"s_mul_i32 s22, s26, {K_CH}\ns_lshl_b32 s59, s27, 5\ns_add_u32 s22, s22, s59\ns_add_u32 s22, s22, {A_KB + 56}")
    a(f"v_bfe_u32 v18, v1, 2, 2\nv_mul_u32_u24 v18, {K_CS}, v18\nv_and_b32 v17, 3, v1\nv_lshl_add_u32 v18, v17, 3, v18\nv_and_b32 v17, 16, v1\nv_lshlrev_b32 v17, 1, v17\nv_sub_u32 v18, v18, v17\nv_and_b32 v17, 32, v1\nv_lshrrev_b32 v17, 1, v17\nv_sub_u32 v18, v18, v17\nv_add_u32 v112, s22, v18")
    a(f"s_mul_i32 s22, s26, {U_CH}\ns_add_u32 s22, s22, {A_UB}\nv_and_b32 v18, 1, v4\nv_mul_u32_u24 v18, {U_P1}, v18\nv_lshrrev_b32 v17, 5, v1\nv_mul_u32_u24 v17, {U_P2}, v17")
    a("v_lshl_add_u32 v18, v10, 4, v18\nv_add3_u32 v117, v18, v17, s22")
    a(f"s_mul_i32 s22, s26, {E_CH}\ns_add_u32 s22, s22, s59\ns_add_u32 s22, s22, {A_KS}")
    a("v_mul_u32_u24 v18, 72, v10\nv_lshl_add_u32 v18, v4, 3, v18\nv_add_u32 v116, s22, v18")
    a(f"v_and_b32 v20, 62, v0\nv_and_b32 v21, 1, v0\ns_mul_i32 s22, s3, 72\ns_add_u32 s22, s22, {A_KS}")
    a(f"v_mul_u32_u24 v21, {2304+64}, v21\nv_add3_u32 v118, v21, v20, s22\ns_mov_b32 s59, 0x05040100")
    ACC = 80
    a(f"s_mul_i32 s53, s26, {A_TAS}\ns_add_u32 m0, s53, s54")
    a(f"v_lshl_add_u32 v16, s27, 4, v10\nv_mul_u32_u24 v16, {RS}, v16\nv_lshl_add_u32 v16, v4, 4, v16\nv_add_u32 v46, s53, v16")
    a(f"s_mul_i32 s53, s26, {A_TBS}\ns_add_u32 s53, s53, {A_TB}\nv_mul_u32_u24 v16, {RS}, v10\nv_lshl_add_u32 v16, v4, 4, v16\nv_add_u32 v47, s53, v16")
    a("s_lshl_b32 s31, s31, s52\ns_and_b32 s31, s31, 0xffff0000\ns_cmp_eq_u32 s27, 0\ns_cselect_b32 s31, s31, 0")
    a("v_cmp_eq_u32 vcc, 0, v1\nv_mov_b32 v16, s31\nv_mov_b32 v20, 1.0\nv_mov_b32 v21, 0\nv_cndmask_b32 v45, 0, v16, vcc")
    a("s_waitcnt vmcnt(0)")
    sn(a, "A", "params")
    a("global_load_dwordx4 v[120:123], v6, s[20:21] offset:1024\nglobal_load_dwordx2 v[124:125], v6, s[20:21] offset:1040")
    a("global_load_dwordx2 v[114:115], v2, s[20:21] offset:-4096")
    a("v_lshlrev_b32 v11, 16, v11\nv_lshlrev_b32 v12, 16, v12\nv_mul_f32 v11, v13, v11\nv_mul_f32 v12, v15, v12")
    zpow(a, [(22, "0x41000000", 30), (28, "0x42000000", 32)], 11, 12)
    cmul_seq(a, [(24, 22, 22, 30)]); cmul_seq(a, [(26, 24, 22, 30)])
    for it in range(8):
        for c in range(4): a(f"v_cvt_pk_bf16_f32 v{16+c}, v{20+2*c}, v{21+2*c}")
        for c in range(4):
            if it < 7: pk1(a, 20+2*c, 28, 30+2*c)
            a(f"ds_write_addtid_b32 v{16+c} offset:{RS*(4*it+c)}")
        if it < 7:
            for c in range(4): pk2(a, 20+2*c, 20+2*c, 28, 30+2*c)
    sn(a, "A", "tabiss")
    a(f"s_mul_i32 s31, s26, {A_KSS}\ns_add_u32 s31, s31, s54\ns_add_u32 s31, s31, {A_KS + 16}\nv_lshl_add_u32 v16, v4, 6, s31")
    a("s_waitcnt vmcnt(0)\nv_add_u32 v114, v114, v16\nv_add_u32 v115, v115, v16")
    a("s_waitcnt lgkmcnt(0)")
    sn(a, "A", "tables")
    a("s_barrier")
    def rd(ks):
        b = 48 + 12 * (ks % 4)
        a(f"ds_read_b128 {q(b)}, v46 offset:{64*ks}\nds_read_b128 {q(b+4)}, v47 offset:{64*ks}\nds_read_b128 {q(b+8)}, v47 offset:{64*ks + 16*RS}")
    for ks in range(4): rd(ks)
    for ks in range(8):
        b = 48 + 12 * (ks % 4)
        a(f"s_waitcnt lgkmcnt({3 * (min(ks + 3, 7) - ks)})")
        c0 = "0" if ks == 0 else q(16); c1 = "0" if ks == 0 else q(20)
        a(f"{MF32} {q(16)}, {q(b)}, {q(b+4)}, {c0}\n{MF32} {q(20)}, {q(b)}, {q(b+8)}, {c1}")
        if ks + 4 < 8: rd(ks + 4)
    a("v_add_f32 v16, v45, v16")
    for i in range(4): a(f"v_cvt_pk_bf16_f32 v{24+i}, v{16+2*i}, v{17+2*i}")
    for nt in range(2):
        for h in range(2):
            a(f"ds_write_b16 v{114+nt}, v{24+2*nt+h} offset:{32*h}\nds_write_b16_d16_hi v{114+nt}, v{24+2*nt+h} offset:{32*h+16}")
    def expand():
        a("s_waitcnt lgkmcnt(0)")
        sn(a, "A", "staged")
        a("s_barrier")
        a("ds_read_b128 v[16:19], v126 offset:16\nds_read_b64 v[20:21], v126 offset:8\nds_read_b32 v22, v126 offset:32\nds_write_b32 v113, v104")
        a("s_waitcnt lgkmcnt(3)")
        a("v_cndmask_b32 v17, v17, v16, s[56:57]\nv_cndmask_b32 v18, v18, v16, s[62:63]")
        a("v_perm_b32 v24, v16, v16, v122\nv_perm_b32 v25, v18, v17, v123")
        a("s_waitcnt lgkmcnt(1)")
        a("v_perm_b32 v26, v22, v18, v124\nv_perm_b32 v27, v22, v19, v125\nv_perm_b32 v28, v16, v21, v121\nv_perm_b32 v23, v16, v20, v120")
        a("ds_write_b128 v127, v[24:27]")
        a("v_mov_b32 v29, v24\nv_mov_b32 v30, v25\nv_mov_b32 v31, v26")
        a(f"ds_write_b128 v127, v[28:31] offset:{2*K_CS}")
        a("v_alignbit_b32 v32, v24, v28, 16\nv_alignbit_b32 v33, v25, v24, 16\nv_alignbit_b32 v34, v26, v25, 16\nv_alignbit_b32 v35, v27, v26, 16")
        a(f"ds_write_b128 v127, v[32:35] offset:{K_CS}")
        a("v_alignbit_b32 v36, v28, v23, 16\nv_mov_b32 v37, v32\nv_mov_b32 v38, v33\nv_mov_b32 v39, v34")
        a(f"ds_write_b128 v127, v[36:39] offset:{3*K_CS}")
        a(f"s_lshl_b32 s53, s58, 13\ns_add_u32 s53, s53, {AT_OFF}\nv_lshlrev_b32 v126, 4, v0")
    expand()
    sn(a, "A", "expand")
    sn(a, "A", "pdrain")
    a("s_cmp_lg_u32 s3, 0\ns_cbranch_scc1 A_S1")
    poll(a, [3], cfg.afirst)
    a("A_S1:\ns_barrier")
    sn(a, "A", "p0pass")
    a("buffer_load_dwordx4 v[96:99], v8, s[12:15], s28 offen sc1\nbuffer_load_dwordx4 v[100:103], v8, s[12:15], s29 offen sc1")
    a("s_waitcnt vmcnt(1)\nds_write_b128 v119, v[96:99]\ns_waitcnt vmcnt(0)\nds_write_b128 v119, v[100:103] offset:128")
    a("s_waitcnt lgkmcnt(0)\ns_barrier")
    sn(a, "A", "ustaged")
    SET = (16, 48)
    def ldA(s, e, d, half):
        a(f"ds_read_b64_tr_b16 {p(SET[s] + 4*e + 2*half)}, v112 offset:{64*d + 1024*e + (8 if half == 0 else 0)}")
    def ldG(s, c, d): a(f"ds_read_b128 {q(SET[s]+16+4*c)}, v117 offset:{16*(16-d) + 256*c}")
    fresh = set(range(4))
    def mm(s, e, cb):
        c = "0" if cb in fresh else q(ACC+4*cb); fresh.discard(cb)
        a(f"{MF32} {q(ACC+4*cb)}, {q(SET[s]+4*e)}, {q(SET[s]+16+4*(cb-e))}, {c}")
    ldA(0,0,0,0); ldA(0,0,0,1)
    for c in range(4): ldG(0, c, 0)
    for e in range(1, 4): ldA(0,e,0,0); ldA(0,e,0,1)
    W = lambda n: a(f"s_waitcnt lgkmcnt({n})")
    for d in range(16):
        P, Q = d & 1, 1 - (d & 1)
        if d < 15:
            n = d + 1
            W(9 if d == 0 else 6); mm(P,0,0); ldA(Q,0,n,0)
            if d == 0: W(7)
            mm(P,0,1); ldA(Q,0,n,1); ldG(Q,0,n)
            mm(P,0,2); ldG(Q,1,n)
            mm(P,0,3); ldG(Q,2,n)
            W(7); mm(P,1,1); ldG(Q,3,n)
            mm(P,1,2); ldA(Q,1,n,0); ldA(Q,1,n,1)
            mm(P,1,3); ldA(Q,2,n,0)
            mm(P,2,2); ldA(Q,2,n,1)
            mm(P,2,3); ldA(Q,3,n,0)
            W(11); mm(P,3,3); ldA(Q,3,n,1)
        else:
            W(6); mm(P,0,0); mm(P,0,1); mm(P,0,2); mm(P,0,3); W(2); mm(P,1,1); mm(P,1,2); mm(P,1,3)
            mm(P,2,2); mm(P,2,3); W(0); mm(P,3,3)
    sn(a, "A", "convend")
    a("s_add_u32 s55, s53, 4096")
    for cb in range(4):
        a(f"v_cvt_pk_bf16_f32 v{96+2*cb}, v{ACC+4*cb}, v{ACC+4*cb+1}\nv_cvt_pk_bf16_f32 v{97+2*cb}, v{ACC+4*cb+2}, v{ACC+4*cb+3}")
        a(f"ds_write_b64 v116, {p(96+2*cb)} offset:{1152*cb + (64 if cb >= 2 else 0)}")
    a("s_waitcnt lgkmcnt(0)\ns_barrier")
    for j in range(2):
        for i in range(4): a(f"ds_read_u16 v{16+8*j+i}, v118 offset:{288*j + 576*i}\nds_read_u16 v{20+8*j+i}, v118 offset:{288*j + 576*i + E_CH}")
        if j == 0: a("s_waitcnt lgkmcnt(7)")
    for j in range(2):
        for i in range(4): a(f"s_waitcnt lgkmcnt({8*(1-j) + 6-2*i})\nv_perm_b32 v{32+4*j+i}, v{20+8*j+i}, v{16+8*j+i}, s59")
        a(f"buffer_store_dwordx4 {q(32+4*j)}, v126, s[12:15], s{53 + 2*j} offen sc1")
    end(a, 0)
    a("A_B:")
    a(f"s_cmp_lg_u32 s58, 0\ns_cbranch_scc1 A_B1\ns_lshl_b32 s22, s3, 11\ns_add_u32 s22, s22, {YN_OFF - 8192}")
    for i in range(4): a(f"v_mov_b32 v{40+i}, -1")
    a("buffer_store_dwordx4 v[40:43], v2, s[12:15], s22 offen sc1\nbuffer_store_dwordx4 v[40:43], v2, s[12:15], s22 offen offset:1024 sc1\nA_B1:")
    a(f"s_mul_i32 s53, s26, {A_TBS}\ns_add_u32 s53, s53, s54\ns_add_u32 m0, s53, {A_TB}")
    a("s_waitcnt vmcnt(0)")
    sn(a, "A", "params")
    a("global_load_dwordx4 v[120:123], v6, s[20:21] offset:1024\nglobal_load_dwordx2 v[124:125], v6, s[20:21] offset:1040")
    a("v_lshlrev_b32 v11, 16, v11\nv_lshlrev_b32 v12, 16, v12")
    for i in range(2, 6): a(f"v_lshlrev_b32 v{16+i}, 16, v{16+i}")
    a("v_mul_f32 v11, v13, v11\nv_mul_f32 v12, v15, v12")
    a(f"v_pk_mul_f32 {p(18)}, {p(18)}, {p(14)} op_sel_hi:[1,0]")
    zpow(a, [(22, None, 30), (24, "0x43800000", 32)], 11, 12)
    Z1, Z256, Z2, Z4, C0 = 22, 24, 26, 28, 34
    cmul_seq(a, [(C0, 20, 18, 30), (Z2, Z1, Z1, 32)])
    wr = [0]
    def put(row, src):
        t = 60 + (wr[0] % 4); wr[0] += 1
        a(f"v_cvt_pk_bf16_f32 v{t}, v{src}, -v{src+1}\nds_write_addtid_b32 v{t} offset:{RS*row}")
    cmul_seq(a, [(38, C0, Z1, 30), (40, C0, Z256, 32), (36, C0, Z2, 44), (Z4, Z2, Z2, 46)])
    put(0, C0); put(1, 38); put(8, 40); put(2, 36)
    cmul_seq(a, [(42, 40, Z2, 30), (48, 40, Z4, 32), (40, 40, Z256, 44), (38, 38, Z2, 46), (36, 36, Z2, 50)])
    put(9, 42); put(10, 48); put(12, 40); put(3, 38); put(4, 36)
    cmul_seq(a, [(42, 48, Z2, 30), (48, 40, Z4, 32), (40, 40, Z256, 44), (38, 38, Z2, 46), (36, 36, Z2, 50)])
    put(11, 42); put(13, 48); put(14, 40); put(5, 38); put(6, 36)
    cmul_seq(a, [(48, 40, Z4, 32), (40, 40, Z256, 44), (38, 38, Z2, 46), (52, Z256, Z256, 50)])
    put(15, 48); put(16, 40); put(7, 38)
    cmul_seq(a, [(42, 40, Z256, 30), (48, 40, 52, 32)])
    put(17, 42); put(18, 48)
    cmul_seq(a, [(42, 42, 52, 30), (48, 48, 52, 32)])
    put(19, 42); put(20, 48)
    sn(a, "A", "tabiss")
    a("s_waitcnt vmcnt(0) lgkmcnt(0)")
    sn(a, "A", "tables")
    a("s_barrier")
    expand()
    sn(a, "A", "expand")
    a("s_waitcnt lgkmcnt(0)\ns_cmp_eq_u32 s58, 0\ns_cselect_b32 s4, 8, 5\ns_cmp_ge_u32 s3, s4\ns_cbranch_scc1 L_END")
    a("s_barrier\ns_barrier")
    a("s_cmp_lg_u32 s3, 4\ns_cbranch_scc1 A_S2")
    for i in range(4): a(f"v_mov_b32 v{40+i}, -1")
    a("s_add_u32 s55, s53, 4096")
    for i in range(8): a(f"buffer_store_dwordx4 v[40:43], v2, s[12:15], s{53 + 2*(i//4)} offen offset:{1024*(i%4)} sc1")
    a("s_waitcnt vmcnt(0)")
    sn(a, "A", "pdrain")
    signal(a, 2)
    a("s_cmp_lg_u32 s58, 0\ns_cbranch_scc1 L_END")
    a("A_S2:")
    for i in range(4): a(f"global_load_dwordx4 {q(112+4*i)}, v2, s[20:21] offset:{1024*i-3072}")
    a(f"s_sub_u32 s7, s3, 4\nv_lshl_add_u32 v7, v4, 6, v10\ns_lshl_b32 s4, s7, 3\nv_lshl_add_u32 v110, v7, 5, s4\ns_lshl_b32 s4, s7, 2\nv_lshl_add_u32 v109, v7, 4, s4")
    a(f"s_mov_b32 s23, {XN_OFF}\ns_mov_b32 s25, {WN_OFF}\ns_mov_b32 s28, {WN_OFF + 4096}\ns_mov_b32 s63, {YN_OFF}\ns_mov_b32 s7, 1")
    poll(a, [0])
    for j, r in enumerate((72, 76, 74, 78)): a(f"buffer_load_dwordx2 {p(r)}, v110, s[12:15], s23 offen offset:{512*j} sc1")
    for r in range(4): a(f"buffer_load_dword v{80+r}, v109, s[12:15], s25 offen offset:{256*r} sc1\nbuffer_load_dword v{84+r}, v109, s[12:15], s28 offen offset:{256*r} sc1")
    if cfg.prio: a("s_setprio 2")
    a("s_waitcnt vmcnt(0)\ns_branch B_FFT")
    a("A_NYS:")
    for r in range(4): a(f"buffer_store_dwordx2 {p(48+2*r)}, v110, s[12:15], s63 offen offset:{512*r} sc1")
    a("s_branch L_END")
    a("B_PF:")
    a("s_cmp_ge_u32 s3, 6\ns_cbranch_scc1 L_EXIT")
    a(f"s_and_b32 s60, s2, 7\ns_lshr_b32 s61, s2, 3\ns_mov_b32 s4, {EP_OFF}\ns_cmp_eq_u32 s3, 5\ns_cbranch_scc1 B_H")
    srd_pre(a, 8, 2097152)
    a("s_lshr_b32 s53, s61, 2\ns_lshl_b32 s53, s53, 3\ns_add_u32 s30, s60, s53\ns_and_b32 s31, s61, 3")
    a("v_lshlrev_b32 v6, 4, v10\nv_lshlrev_b32 v5, 5, v4\nv_xor_b32 v6, v5, v6\nv_lshl_add_u32 v6, v4, 10, v6\nv_xor_b32 v5, 128, v6")
    a(f"s_lshl_b32 s54, s30, 15\ns_lshl_b32 s56, s31, 8\ns_add_u32 s55, s54, s56\ns_mov_b32 m0, {B_UX}")
    a("s_waitcnt lgkmcnt(0)")
    sn(a, "B", "karg")
    for e in range(8):
        a(f"buffer_load_dwordx4 v{5 if (e >> 1) & 1 else 6}, s[8:11], s55 offen lds")
        if e < 7: a(f"s_add_u32 m0, m0, 1024\ns_add_u32 s55, s55, 4096")
    a("s_load_dword s96, s[12:13], s4")
    a("v_bfe_u32 v7, v1, 2, 2\nv_and_b32 v8, 1, v4\nv_lshl_or_b32 v8, v8, 2, v7")
    a("v_lshl_add_u32 v7, v4, 3, v7\nv_lshlrev_b32 v7, 8, v7\nv_lshl_add_u32 v7, v8, 5, v7\nv_and_b32 v8, 3, v1\nv_lshl_add_u32 v48, v8, 3, v7")
    for cg in range(1, 8): a(f"v_xor_b32 v{48+cg}, {32*cg}, v48")
    a("v_lshlrev_b32 v5, 6, v10\nv_lshl_add_u32 v5, v4, 4, v5")
    a(f"s_lshl_b32 s55, s31, 13\ns_add_u32 s54, s54, s55\ns_add_u32 s54, s54, {UT_OFF}\ns_add_u32 s55, s54, 4096")
    a("s_waitcnt vmcnt(0) lgkmcnt(0)")
    sn(a, "B", "rows")
    for cg in range(8):
        a(f"ds_read_b64_tr_b16 {p(16+4*cg)}, v{48+cg} offset:{B_UX}\nds_read_b64_tr_b16 {p(18+4*cg)}, v{48+cg} offset:{B_UX+1024}")
        if cg == 6: a("s_waitcnt lgkmcnt(12)")
    for cg in range(8):
        a(f"s_waitcnt lgkmcnt({14-2*cg})\nbuffer_store_dwordx4 {q(16+4*cg)}, v5, s[12:15], s{54 + cg//4} offen offset:{1024*(cg%4)} sc1")
    a("s_add_u32 s96, s96, 1")
    sn(a, "B", "stores")
    a("s_barrier\ns_waitcnt vmcnt(0)")
    sn(a, "B", "drain")
    signal(a, 3)
    a("s_branch L_END")
    a("B_H:")
    table_base(a, 20, "L_CODE"); table_base(a, 24, "P1_TAB")
    a("s_lshl_b32 s26, s61, 10\nv_add_u32 v3, s26, v2")
    a("v_min_u32 v5, L_CEND-L_CODE-16, v3\nglobal_load_dwordx4 v[20:23], v5, s[20:21] offset:-4096")
    a("v_min_u32 v5, TAB_END-P1_TAB-16, v3\nglobal_load_dwordx4 v[24:27], v5, s[24:25] offset:-4096")
    a("s_waitcnt lgkmcnt(0)\ns_load_dword s96, s[12:13], s4")
    a("s_mov_b32 s32, s48\ns_mov_b32 s33, s49\ns_mov_b32 s36, s50\ns_mov_b32 s37, s51")
    srd_pre(a, 32, 2048 * 514); srd_pre(a, 36, 2048 * 514)
    a("s_lshl_b32 s26, s61, 6\ns_add_u32 s26, s26, s60\ns_mul_i32 s26, s26, 514\nv_lshrrev_b32 v5, 3, v1\nv_mul_u32_u24 v5, 4112, v5\nv_and_b32 v6, 7, v1\nv_mul_u32_u24 v6, 73, v6\nv_add_u32 v5, v5, v6")
    for i in range(4): a(f"v_mov_b32 v{40+i}, -1")
    a(f"s_lshl_b32 s63, s60, 5\ns_add_u32 s63, s63, s61\ns_lshl_b32 s63, s63, 13\ns_add_u32 s62, s63, {Y1_OFF}\ns_add_u32 s63, s62, 4096")
    a("s_waitcnt vmcnt(0) lgkmcnt(0)")
    if cfg.prefetch_w: a("buffer_load_ubyte v16, v5, s[32:35], s26 offen\nbuffer_load_ubyte v17, v5, s[36:39], s26 offen")
    a("s_add_u32 s96, s96, 1\ns_barrier\ns_barrier\ns_barrier\ns_barrier")
    for i in range(8): a(f"buffer_store_dwordx4 v[40:43], v2, s[12:15], s{62 + i//4} offen offset:{1024*(i%4)} sc1")
    a("s_waitcnt vmcnt(0)")
    sn(a, "B", "poison")
    signal(a, 1)
    a("s_branch L_END")
    a("L_EXIT:\ns_endpgm")
    return a

def build(path):
    a = gen()
    _, t1, _ = G1.gen_p1(); _, t2, _ = G1.gen_p2(); T = p3_tables(nyq=False); t3 = table_text('P3_TAB', np.concatenate([T[k].reshape(-1) for k in ('Bre', 'Bim', 'dre', 'dim', 'Tc', 'Ts', 'F0', 'F1')]))
    body, n = a.finish()
    lab = NAME + "_kernel"
    print("instructions:", len(a.lines), "nops inserted:", n, "bytes:", a.nbytes, "lds:", LDS, file=sys.stderr)
    s = HEADER + f"; @launch grid=(512,1,1) block=(512,1,1) lds={LDS}\n" + '.amdgcn_target "amdgcn-amd-amdhsa--gfx950"\n.text\n'
    s += kernel_begin(lab) + "L_CODE:\n" + body + "L_CEND:\n" + '.section .rodata,"a"\n.p2align 6\n' + descriptor(lab, 128) + t1 + t2 + t3 + 'TAB_END:\n'
    open(path, "w").write(s)

if __name__ == "__main__":
    cfg.prio = 0; cfg.prefetch_w = 0
    for o in sys.argv[2:]:
        k, v = o.split("="); setattr(cfg, k, int(v) if v.lstrip("-").isdigit() else v)
    build(sys.argv[1])
```

```python
import sys, numpy as np
from asmgen import *
from tables import *

X1_OFF = 0x000000; X1_ROW = 1024; X1_S0 = 8192
XN_OFF = 0x200000
WN_OFF = 0x210000
YN_OFF = 0x218000
G_OFF  = 0x220000
UT_OFF = 0x300000
KC_OFF = 0x500000
Y1_OFF = 0x600000
AT_OFF = 0x900000
WS_USED = 0xB00000
STAMP = 0x8000000

class Cfg:
    stamps = 0
    prefetch_w = 0
    prefetch_code = 1
    prio = 1
    nofft = 0
    padk = -1
    padt = 0
    unroll = 4
cfg = Cfg()

def srd(a, s, lo, size):
    a(f"s_mov_b32 s{s}, s{lo}\ns_mov_b32 s{s+1}, s{lo+1}\ns_mov_b32 s{s+2}, {size}\ns_mov_b32 s{s+3}, 0x20000")
def srd_pre(a, s, size):
    a(f"s_mov_b32 s{s+2}, {size}\ns_mov_b32 s{s+3}, 0x20000")
def st(a, i):
    if cfg.stamps: a(f"s_memtime s[{64+2*i}:{65+2*i}]")
_pu = [0]
def pad_begin(a, kidx):
    if cfg.padk < 0: return
    if kidx == 0:
        a("s_memrealtime s[84:85]")
def pad_end(a, kidx):
    if cfg.padk < 0: return
    _pu[0] += 1; u = _pu[0]
    a("s_waitcnt vmcnt(0) lgkmcnt(0)\ns_load_dwordx2 s[88:89], s[0:1], 120\ns_waitcnt lgkmcnt(0)")
    if kidx == 0:
        a(f"s_or_b32 s86, s2, s3\ns_cmp_lg_u32 s86, 0\ns_cbranch_scc1 LPD{u}")
        a("s_mov_b64 exec, 1\nv_mov_b32 v10, s84\nv_mov_b32 v11, s85\nv_mov_b32 v9, 0x7000000\nglobal_store_dwordx2 v9, v[10:11], s[88:89]")
        a(f"LPD{u}:")
    elif kidx == cfg.padk:
        a("s_mov_b32 s86, 0x7000000\ns_load_dwordx2 s[84:85], s[88:89], s86\ns_waitcnt lgkmcnt(0)")
    if kidx == cfg.padk:
        a(f"LPE{u}:\ns_memrealtime s[86:87]\ns_waitcnt lgkmcnt(0)\ns_sub_u32 s86, s86, s84\ns_cmp_lt_u32 s86, {cfg.padt*100}\ns_cbranch_scc1 LPE{u}")
def st_begin(a):
    if cfg.stamps:
        a("s_memrealtime s[80:81]\ns_memtime s[64:65]")
        for i in range(1, 8): a(f"s_mov_b64 s[{64+2*i}:{65+2*i}], 0")
def end(a, kidx, pad=True):
    if pad: pad_end(a, kidx)
    if not cfg.stamps:
        a("s_endpgm"); return
    a("s_waitcnt vmcnt(0) lgkmcnt(0)")
    a("s_memtime s[78:79]\ns_memrealtime s[82:83]")
    a("s_waitcnt lgkmcnt(0)")
    a(f"s_add_u32 s88, s12, {STAMP + kidx*0x200000}\ns_addc_u32 s89, s13, 0")
    a("s_mov_b32 s92, s88\ns_mov_b32 s93, s89\ns_mov_b32 s94, 0x200000\ns_mov_b32 s95, 0x20000")
    a("s_mov_b64 exec, 1")
    a("s_getreg_b32 s84, hwreg(HW_REG_HW_ID)\ns_getreg_b32 s85, hwreg(HW_REG_XCC_ID)")
    for i in range(24): a(f"v_mov_b32 v{10+i}, s{64+i}")
    a("s_lshl_b32 s90, s2, 3\ns_add_u32 s90, s90, s3\ns_lshl_b32 s90, s90, 7\nv_mov_b32 v9, s90")
    for i in range(6): a(f"buffer_store_dwordx4 v[{10+4*i}:{13+4*i}], v9, s[92:95], 0 offen offset:{16*i}")
    a("s_endpgm")

def table_base(a, s, label):
    a(f"s_getpc_b64 s[{s}:{s+1}]\ns_add_u32 s{s}, s{s}, {label}@rel32@lo+4100\ns_addc_u32 s{s+1}, s{s+1}, {label}@rel32@hi+4108")

def lane_base(a, vd, vl, vn, vt):
    a(f"v_and_b32 v{vd}, 16, v{vl}\nv_cmp_eq_u32 s[40:41], 0, v{vd}")
    a(f"v_cmp_eq_u32 vcc, 0, v{vn}\nv_sub_u32 v{vt}, 32, v{vn}\nv_lshrrev_b32 v{vd}, 5, v{vl}")
    a(f"v_cndmask_b32 v{vt}, v{vt}, 16, vcc\nv_cndmask_b32 v{vt}, v{vt}, v{vn}, s[40:41]")
    a(f"v_lshl_add_u32 v{vd}, v{vd}, 7, v{vt}")

def twiddle(a, re, im, c, s, ore, oim, conj=False, packed=True):
    if not packed:
        for r in range(4): a(f"v_mul_f32 v{ore+r}, v{re+r}, v{c+r}\nv_mul_f32 v{oim+r}, v{im+r}, v{c+r}")
        for r in range(4):
            if conj: a(f"v_fma_f32 v{ore+r}, -v{im+r}, v{s+r}, v{ore+r}\nv_fmac_f32 v{oim+r}, v{re+r}, v{s+r}")
            else: a(f"v_fmac_f32 v{ore+r}, v{im+r}, v{s+r}\nv_fma_f32 v{oim+r}, -v{re+r}, v{s+r}, v{oim+r}")
        return
    n1 = "" if not conj else " neg_lo:[1,0,0] neg_hi:[1,0,0]"
    n2 = " neg_lo:[1,0,0] neg_hi:[1,0,0]" if not conj else ""
    for h in (0, 2):
        a(f"v_pk_mul_f32 v[{ore+h}:{ore+h+1}], v[{re+h}:{re+h+1}], v[{c+h}:{c+h+1}]")
        a(f"v_pk_mul_f32 v[{oim+h}:{oim+h+1}], v[{im+h}:{im+h+1}], v[{c+h}:{c+h+1}]")
    for h in (0, 2):
        a(f"v_pk_fma_f32 v[{ore+h}:{ore+h+1}], v[{im+h}:{im+h+1}], v[{s+h}:{s+h+1}], v[{ore+h}:{ore+h+1}]{n1}")
        a(f"v_pk_fma_f32 v[{oim+h}:{oim+h+1}], v[{re+h}:{re+h+1}], v[{s+h}:{s+h+1}], v[{oim+h}:{oim+h+1}]{n2}")

def q(r): return f"v[{r}:{r+3}]"
def p(r): return f"v[{r}:{r+1}]"
MF32 = "v_mfma_f32_16x16x32_bf16"
MF16 = "v_mfma_f32_16x16x16_bf16"

def pk2(a, d, x, y, t): a(f"v_pk_fma_f32 {p(d)}, {p(x)}, {p(y)}, {p(t)} op_sel:[1,1,0] op_sel_hi:[1,0,1] neg_lo:[0,1,0]")
def pk1(a, x, y, t): a(f"v_pk_mul_f32 {p(t)}, {p(x)}, {p(y)} op_sel_hi:[0,1]")
def cmul_seq(a, items):
    for (d, x, y, t) in items: pk1(a, x, y, t)
    for (d, x, y, t) in items: pk2(a, d, x, y, t)
def zpow(a, items, ar, th):
    for (d, pw, t) in items:
        if pw is None: a(f"v_exp_f32 v{t}, v{ar}\nv_fract_f32 v{t+1}, v{th}")
        else: a(f"v_mul_f32 v{t}, {pw}, v{ar}\nv_mul_f32 v{t+1}, {pw}, v{th}")
    for (d, pw, t) in items:
        if pw is not None: a(f"v_exp_f32 v{t}, v{t}\nv_fract_f32 v{t+1}, v{t+1}")
    for (d, pw, t) in items: a(f"v_cos_f32 v{d}, v{t+1}\nv_sin_f32 v{d+1}, v{t+1}")
    for (d, pw, t) in items: a(f"v_pk_mul_f32 {p(d)}, {p(d)}, {p(t)} op_sel_hi:[1,0]")

RS = 544
P1_EX = 8192; P1_EXS = 2064; P1_UX = P1_EX + 4 * P1_EXS; P1_GW = P1_UX + 8192
P1_TB = 32 * RS
P1_LDS = 64 * RS
def gen_p1():
    a = Asm()
    st_begin(a)
    pad_begin(a, 0)
    a("s_load_dwordx2 s[12:13], s[0:1], 120\ns_load_dwordx2 s[8:9], s[0:1], 0\ns_load_dwordx2 s[16:17], s[0:1], 96")
    a("s_load_dwordx8 s[32:39], s[0:1], 8\ns_load_dwordx8 s[40:47], s[0:1], 40\ns_load_dwordx4 s[48:51], s[0:1], 80")
    a("v_readfirstlane_b32 s3, v0\nv_and_b32 v1, 63, v0\nv_lshlrev_b32 v2, 4, v1\ns_lshr_b32 s3, s3, 6")
    a("s_cmpk_lt_u32 s2, 512\ns_cbranch_scc1 P1_K")
    a("s_cmpk_ge_u32 s2, 768\ns_cbranch_scc1 P1_EXIT")
    table_base(a, 20, "P1_TAB")
    for i in range(8): a(f"global_load_dwordx4 {q(16+4*i)}, v2, s[20:21] offset:{1024*i-4096}")
    srd_pre(a, 8, 2097152); srd_pre(a, 12, WS_USED); srd_pre(a, 16, 1024)
    a("s_and_b32 s30, s2, 7\ns_bfe_u32 s31, s2, 0x50003\ns_lshl_b32 s52, s30, 5\ns_add_u32 s52, s52, s31\ns_lshr_b32 s53, s31, 2\ns_lshl_b32 s53, s53, 3\ns_add_u32 s30, s30, s53\ns_and_b32 s31, s31, 3")
    a("s_lshl_b32 s22, s52, 10\ns_lshl_b32 s23, s3, 19\ns_add_u32 s22, s22, s23\ns_lshl_b32 s24, s3, 11\ns_add_u32 s23, s22, 0x40000")
    a("v_lshrrev_b32 v4, 4, v1\nv_and_b32 v10, 15, v1")
    a("s_and_b32 s25, s3, 1\ns_lshl_b32 s25, s25, 2\nv_or_b32 v5, s25, v4\nv_lshlrev_b32 v6, 4, v10\nv_lshlrev_b32 v5, 5, v5\nv_xor_b32 v6, v5, v6\nv_lshl_add_u32 v6, v4, 10, v6")
    a("s_lshl_b32 s54, s30, 15\ns_lshl_b32 s55, s3, 13\ns_add_u32 s55, s54, s55\ns_lshl_b32 s56, s31, 8\ns_add_u32 s55, s55, s56\ns_add_u32 s56, s55, 4096")
    a(f"s_add_u32 s57, s24, {P1_UX}\ns_mov_b32 m0, s24")
    a("s_waitcnt lgkmcnt(0)")
    st(a, 1)
    a("buffer_load_dwordx4 v2, s[8:11], s22 offen lds\ns_add_u32 m0, s24, 1024\ns_nop 0")
    a("buffer_load_dwordx4 v2, s[8:11], s23 offen lds\ns_mov_b32 m0, s57\ns_nop 0")
    a("buffer_load_dwordx4 v6, s[8:11], s55 offen lds\ns_add_u32 m0, s57, 1024\ns_nop 0")
    a(f"buffer_load_dwordx4 v6, s[8:11], s56 offen lds\ns_mov_b32 m0, {P1_GW}\ns_nop 0")
    a("buffer_load_dwordx4 v2, s[16:19], 0 offen lds")
    a("s_branch P1_R")
    a("P1_K:")
    a("s_mov_b32 s30, s2\ns_and_b32 s27, s3, 1\ns_and_b32 s26, s30, 1\ns_lshl_b32 s28, s30, 8\ns_lshl_b32 s29, s27, 7\ns_add_u32 s28, s28, s29")
    a("v_lshl_add_u32 v5, v1, 1, s28\ns_lshr_b32 s29, s30, 1\ns_lshl_b32 s29, s29, 2\ns_lshl_b32 s52, s26, 4\ns_sub_u32 s52, 16, s52")
    a("v_mov_b32 v13, 0x3fb8aa3b\nv_lshrrev_b32 v4, 4, v1\nv_and_b32 v10, 15, v1")
    srd_pre(a, 12, WS_USED)
    a("s_lshl_b32 s54, s27, 8\ns_mov_b32 m0, s54\ns_cmp_ge_u32 s3, 2")
    a("s_waitcnt lgkmcnt(0)")
    st(a, 1)
    a("s_load_dword s30, s[44:45], s29\ns_load_dword s31, s[46:47], s29")
    a("global_load_ushort v11, v5, s[32:33]\nglobal_load_ushort v12, v5, s[34:35]")
    a("s_cbranch_scc0 P1_KA")
    for i in range(2, 6): a(f"global_load_ushort v{16+i}, v5, s[{32+2*i}:{33+2*i}]")
    a("s_branch P1_KB\nP1_KA:")
    a(f"v_lshl_add_u32 v15, s27, 4, v10\nv_mul_u32_u24 v15, {RS}, v15\nv_lshl_add_u32 v46, v4, 4, v15")
    a(f"v_mul_u32_u24 v15, {RS}, v10\nv_lshl_add_u32 v15, v4, 4, v15\nv_add_u32 v47, {P1_TB}, v15")
    a(f"s_lshl_b32 s53, s2, 11\ns_lshl_b32 s54, s27, 10\ns_add_u32 s53, s53, s54\ns_add_u32 s53, s53, {KC_OFF}")
    a("v_mov_b32 v20, 1.0\nv_mov_b32 v21, 0\nv_cmp_eq_u32 vcc, 0, v1")
    def dt_calc():
        a("s_waitcnt lgkmcnt(0)")
        a("s_lshl_b32 s30, s30, s52\ns_and_b32 s30, s30, 0xffff0000\nv_mul_f32 v14, s30, v13\nv_exp_f32 v14, v14")
        a("v_cvt_pk_bf16_f32 v14, v14, v14\nv_and_b32 v14, 0xffff0000, v14")
    dt_calc()
    a("s_lshl_b32 s31, s31, s52\ns_and_b32 s31, s31, 0xffff0000\ns_cmp_eq_u32 s27, 0\ns_cselect_b32 s31, s31, 0")
    a("v_mov_b32 v15, s31\nv_cndmask_b32 v45, 0, v15, vcc\nv_mul_f32 v13, v14, v13\nv_mul_f32 v14, 0.15915494, v14")
    a("s_waitcnt vmcnt(0)")
    st(a, 2)
    a("v_lshlrev_b32 v11, 16, v11\nv_lshlrev_b32 v12, 16, v12\nv_mul_f32 v11, v13, v11\nv_mul_f32 v12, v14, v12")
    zpow(a, [(22, "0x41000000", 30), (28, "0x42000000", 32)], 11, 12)
    cmul_seq(a, [(24, 22, 22, 30)]); cmul_seq(a, [(26, 24, 22, 30)])
    for it in range(8):
        for c in range(4): a(f"v_cvt_pk_bf16_f32 v{16+c}, v{20+2*c}, v{21+2*c}")
        for c in range(4):
            if it < 7: pk1(a, 20+2*c, 28, 30+2*c)
            a(f"ds_write_addtid_b32 v{16+c} offset:{RS*(4*it+c)}")
        if it < 7:
            for c in range(4): pk2(a, 20+2*c, 20+2*c, 28, 30+2*c)
    a("s_waitcnt lgkmcnt(0)")
    st(a, 3)
    a("s_barrier")
    def rd(ks):
        b = 48 + 12 * (ks % 4)
        a(f"ds_read_b128 {q(b)}, v46 offset:{64*ks}\nds_read_b128 {q(b+4)}, v47 offset:{64*ks}\nds_read_b128 {q(b+8)}, v47 offset:{64*ks + 16*RS}")
    for ks in range(4): rd(ks)
    for ks in range(8):
        b = 48 + 12 * (ks % 4)
        a(f"s_waitcnt lgkmcnt({3 * (min(ks + 3, 7) - ks)})")
        c0 = "0" if ks == 0 else q(16); c1 = "0" if ks == 0 else q(20)
        a(f"{MF32} {q(16)}, {q(b)}, {q(b+4)}, {c0}\n{MF32} {q(20)}, {q(b)}, {q(b+8)}, {c1}")
        if ks + 4 < 8: rd(ks + 4)
    a("v_add_f32 v16, v45, v16")
    for i in range(4): a(f"v_cvt_pk_bf16_f32 v{24+i}, v{16+2*i}, v{17+2*i}")
    a("buffer_store_dwordx4 v[24:27], v2, s[12:15], s53 offen")
    st(a, 4)
    end(a, 0)
    a("P1_KB:")
    a(f"s_add_u32 m0, s54, {P1_TB}")
    dt_calc()
    a("v_mul_f32 v13, v14, v13\nv_mul_f32 v15, 0.15915494, v14")
    a("s_waitcnt vmcnt(0)")
    st(a, 2)
    a("v_lshlrev_b32 v11, 16, v11\nv_lshlrev_b32 v12, 16, v12")
    for i in range(2, 6): a(f"v_lshlrev_b32 v{16+i}, 16, v{16+i}")
    a("v_mul_f32 v11, v13, v11\nv_mul_f32 v12, v15, v12")
    a(f"v_pk_mul_f32 {p(18)}, {p(18)}, {p(14)} op_sel_hi:[1,0]")
    zpow(a, [(22, None, 30), (24, "0x43800000", 32)], 11, 12)
    Z1, Z256, Z2, Z4, C0 = 22, 24, 26, 28, 34
    cmul_seq(a, [(C0, 20, 18, 30), (Z2, Z1, Z1, 32)])
    wr = [0]
    def put(row, src):
        t = 60 + (wr[0] % 4); wr[0] += 1
        a(f"v_cvt_pk_bf16_f32 v{t}, v{src}, -v{src+1}\nds_write_addtid_b32 v{t} offset:{RS*row}")
    cmul_seq(a, [(38, C0, Z1, 30), (40, C0, Z256, 32), (36, C0, Z2, 44), (Z4, Z2, Z2, 46)])
    put(0, C0); put(1, 38); put(8, 40); put(2, 36)
    cmul_seq(a, [(42, 40, Z2, 30), (48, 40, Z4, 32), (40, 40, Z256, 44), (38, 38, Z2, 46), (36, 36, Z2, 50)])
    put(9, 42); put(10, 48); put(12, 40); put(3, 38); put(4, 36)
    cmul_seq(a, [(42, 48, Z2, 30), (48, 40, Z4, 32), (40, 40, Z256, 44), (38, 38, Z2, 46), (36, 36, Z2, 50)])
    put(11, 42); put(13, 48); put(14, 40); put(5, 38); put(6, 36)
    cmul_seq(a, [(48, 40, Z4, 32), (40, 40, Z256, 44), (38, 38, Z2, 46), (52, Z256, Z256, 50)])
    put(15, 48); put(16, 40); put(7, 38)
    cmul_seq(a, [(42, 40, Z256, 30), (48, 40, 52, 32)])
    put(17, 42); put(18, 48)
    cmul_seq(a, [(42, 42, 52, 30), (48, 48, 52, 32)])
    put(19, 42); put(20, 48)
    a("s_waitcnt lgkmcnt(0)")
    st(a, 3)
    a("s_barrier")
    a("s_cmpk_ge_u32 s2, 256\ns_cbranch_scc1 P1_DONE")
    a("s_and_b32 s22, s2, 7\ns_lshr_b32 s23, s2, 3\ns_cmp_eq_u32 s3, 3\ns_cbranch_scc1 P1_PF")
    a("s_lshl_b32 s22, s22, 5\ns_add_u32 s22, s22, s23\nv_and_b32 v3, 7, v1\nv_lshl_add_u32 v3, s22, 3, v3\nv_mul_u32_u24 v4, 514, v3")
    a("global_load_ushort v6, v4, s[48:49] offset:512\nglobal_load_ushort v7, v4, s[50:51] offset:512")
    a(f"v_lshlrev_b32 v3, 1, v3\ns_mov_b32 s22, {WN_OFF}\ns_mov_b32 s23, {WN_OFF + 4096}")
    a("s_waitcnt vmcnt(1)\nbuffer_store_short v6, v3, s[12:15], s22 offen\ns_waitcnt vmcnt(1)\nbuffer_store_short v7, v3, s[12:15], s23 offen")
    a("P1_DONE:")
    end(a, 0)
    a("P1_PF:")
    if cfg.prefetch_code:
        table_base(a, 20, "P2_CODE"); table_base(a, 24, "P2_TAB")
        a("s_lshl_b32 s26, s23, 10\nv_add_u32 v3, s26, v2")
        a("v_min_u32 v5, CODE_END-P2_CODE-16, v3\nglobal_load_dwordx4 v[20:23], v5, s[20:21] offset:-4096")
        a("v_min_u32 v5, TAB_END-P2_TAB-16, v3\nglobal_load_dwordx4 v[24:27], v5, s[24:25] offset:-4096")
    if cfg.prefetch_w:
        a("s_lshl_b32 s23, s23, 6\ns_add_u32 s22, s22, s23\ns_mul_i32 s22, s22, 514")
        a("v_lshrrev_b32 v5, 3, v1\nv_mul_u32_u24 v5, 4112, v5\nv_and_b32 v6, 7, v1\nv_mul_u32_u24 v6, 73, v6\nv_add3_u32 v5, v5, v6, s22")
        a("global_load_ubyte v16, v5, s[48:49]\nglobal_load_ubyte v17, v5, s[50:51]")
    end(a, 0)
    a("P1_R:")
    a("v_bfe_u32 v3, v1, 1, 3\nv_lshl_add_u32 v5, v4, 9, s52\nv_mul_u32_u24 v5, v3, v5")
    a("v_and_b32 v6, 1, v1\nv_lshl_add_u32 v5, v6, 9, v5\nv_lshl_add_u32 v6, v3, 8, v5")
    a("v_cvt_f32_u32 v5, v5\nv_cvt_f32_u32 v6, v6\nv_mul_f32 v5, 0x3a000000, v5\nv_mul_f32 v6, 0x3a000000, v6")
    a("v_cos_f32 v7, v5\nv_sin_f32 v5, v5\nv_cos_f32 v8, v6\nv_sin_f32 v6, v6")
    a("v_cvt_pk_bf16_f32 v48, v7, v5\nv_cvt_pk_bf16_f32 v49, v8, v6")
    lane_base(a, 9, 1, 10, 11)
    a(f"s_mul_i32 s25, s3, {P1_EXS}\ns_add_u32 s25, s25, {P1_EX}")
    a("v_lshl_add_u32 v9, v9, 3, s25\nv_cndmask_b32 v50, 0, -1, vcc")
    a("s_mov_b32 s26, 0xffff\ns_cmp_eq_u32 s3, 0\ns_cselect_b32 s26, s26, -1\nv_mov_b32 v11, s26\nv_cndmask_b32 v51, -1, v11, vcc")
    a(f"v_mul_u32_u24 v14, {P1_EXS}, v4\ns_lshl_b32 s26, s3, 9\nv_add_u32 v14, {P1_EX}, v14\nv_lshl_add_u32 v11, v10, 5, v14\nv_add_u32 v11, s26, v11")
    a("v_lshlrev_b32 v12, 11, v4\nv_lshl_add_u32 v12, v10, 4, v12")
    a("s_lshl_b32 s27, s52, 13\ns_lshl_b32 s26, s3, 8\ns_add_u32 s27, s27, s26")
    a("v_lshl_add_u32 v13, v1, 3, s24\nv_lshlrev_b32 v15, 3, v1")
    a("v_bfe_u32 v7, v1, 2, 2\nv_and_b32 v8, 1, v4\nv_lshl_or_b32 v8, v8, 2, v7\ns_lshl_b32 s25, s3, 1\nv_xor_b32 v8, s25, v8")
    a(f"v_lshl_add_u32 v7, v4, 3, v7\nv_lshlrev_b32 v7, 8, v7\nv_lshl_add_u32 v7, v8, 5, v7\nv_and_b32 v8, 3, v1\nv_lshl_add_u32 v7, v8, 3, v7\nv_xor_b32 v8, 32, v7")
    a("v_lshlrev_b32 v5, 6, v10\nv_lshl_add_u32 v5, v4, 4, v5\nv_lshlrev_b32 v6, 3, v4")
    a(f"s_lshl_b32 s55, s31, 13\ns_add_u32 s54, s54, s55\ns_add_u32 s54, s54, s24\ns_add_u32 s54, s54, {UT_OFF}")
    a(f"s_lshl_b32 s55, s52, 5\ns_add_u32 s56, s55, {XN_OFF}\ns_lshl_b32 s57, s3, 3\ns_add_u32 s55, s55, s57\ns_add_u32 s55, s55, {G_OFF}")
    a("s_waitcnt vmcnt(3)")
    st(a, 2)
    a("ds_read_b64_tr_b16 v[52:53], v13\nds_read_b64_tr_b16 v[54:55], v13 offset:512")
    a("ds_read_b64_tr_b16 v[56:57], v13 offset:1024\nds_read_b64_tr_b16 v[58:59], v13 offset:1536")
    a("s_waitcnt lgkmcnt(2)")
    a(f"{MF32} {q(60)}, {q(52)}, {q(16)}, 0\n{MF32} {q(64)}, {q(52)}, {q(20)}, 0")
    a("s_waitcnt lgkmcnt(0)")
    a(f"{MF32} {q(68)}, {q(56)}, {q(16)}, 0\n{MF32} {q(72)}, {q(56)}, {q(20)}, 0")
    for e in range(2):
        re, im = 60 + 8*e, 64 + 8*e
        twiddle(a, re, im, 24, 28, 76, 80)
        B, Bm = (84, 88) if e else (16, 20)
        for r in range(4): a(f"v_cvt_pk_bf16_f32 v{B+r}, v{76+r}, v{80+r}")
        for r in range(4): a(f"v_and_b32 v{Bm+r}, v50, v{B+r}")
        a(f"{MF32} {q(re)}, {q(32)}, {q(B)}, 0\n{MF32} {q(im)}, {q(36)}, {q(B)}, 0")
        a(f"{MF32} {q(re)}, {q(40)}, {q(Bm)}, {q(re)}\n{MF32} {q(im)}, {q(44)}, {q(Bm)}, {q(im)}")
    for e in range(2):
        for r in range(4): a(f"v_cvt_pk_bf16_f32 v{92+2*r+e}, v{60+8*e+r}, v{64+8*e+r}")
    for r in range(4): a(f"ds_write_b64 v9, {p(92+2*r)} offset:{256*r}")
    a("s_waitcnt lgkmcnt(0)")
    st(a, 3)
    a("s_barrier")
    a("ds_read_b128 v[16:19], v11\nds_read_b128 v[20:23], v11 offset:16\nds_read_b64 v[24:25], v14")
    a("s_waitcnt lgkmcnt(2)")
    a("v_and_b32 v16, v51, v16\nv_and_b32 v17, v51, v17")
    a(f"{MF16} {q(64)}, {p(48)}, {p(18)}, 0")
    a("s_waitcnt lgkmcnt(0)")
    a(f"{MF16} {q(60)}, {p(48)}, {p(16)}, 0")
    a("v_lshrrev_b32 v24, 16, v24\nv_lshrrev_b32 v25, 16, v25")
    a(f"{MF16} {q(68)}, {p(48)}, {p(20)}, 0\n{MF16} {q(72)}, {p(48)}, {p(22)}, 0\n{MF16} {q(40)}, {p(48)}, {p(24)}, 0")
    a("s_waitcnt vmcnt(0)\ns_barrier")
    a(f"ds_read_b64_tr_b16 v[28:29], v7 offset:{P1_UX}\nds_read_b64_tr_b16 v[30:31], v7 offset:{P1_UX+1024}")
    a(f"ds_read_b64_tr_b16 v[32:33], v8 offset:{P1_UX}\nds_read_b64_tr_b16 v[34:35], v8 offset:{P1_UX+1024}")
    a(f"ds_read_b64_tr_b16 v[36:37], v15 offset:{P1_GW}\nds_read_b64_tr_b16 v[38:39], v15 offset:{P1_GW+512}")
    for t in (1, 0, 2, 3):
        a(f"v_cvt_pk_bf16_f32 v{76+t}, v{60+4*t}, v{61+4*t}\nv_cvt_pk_bf16_f32 v{80+t}, v{62+4*t}, v{63+4*t}")
    a(f"buffer_store_dwordx4 {q(76)}, v12, s[12:15], s27 offen\nbuffer_store_dwordx4 {q(80)}, v12, s[12:15], s27 offen offset:{X1_ROW}")
    a("s_waitcnt lgkmcnt(4)\nbuffer_store_dwordx4 v[28:31], v5, s[12:15], s54 offen")
    a("s_waitcnt lgkmcnt(2)\nbuffer_store_dwordx4 v[32:35], v5, s[12:15], s54 offen offset:1024")
    a("v_cvt_pk_bf16_f32 v44, v40, v41\nv_cvt_pk_bf16_f32 v45, v42, v43")
    a("s_waitcnt lgkmcnt(0)")
    st(a, 4)
    for i in range(4):
        for e in range(2): a(f"v_dot2_f32_bf16 v{60+e}, v{52+4*e+i}, v{36+i}, " + ("0" if i == 0 else f"v{60+e}"))
    a("s_cmp_lg_u32 s3, 0\ns_cbranch_scc1 P1_NONYQ\nbuffer_store_dwordx2 v[44:45], v6, s[12:15], s56 offen\nP1_NONYQ:")
    for sh in ("row_shr:1", "row_shr:2", "row_shr:4", "row_shr:8"):
        for e in range(2): a(f"v_add_f32_dpp v{60+e}, v{60+e}, v{60+e} {sh} row_mask:0xf bank_mask:0xf bound_ctrl:0")
    for e in range(2): a(f"v_add_f32_dpp v{60+e}, v{60+e}, v{60+e} row_bcast:15 row_mask:0xa bank_mask:0xf")
    for e in range(2): a(f"v_add_f32_dpp v{60+e}, v{60+e}, v{60+e} row_bcast:31 row_mask:0xc bank_mask:0xf")
    a("v_cvt_pk_bf16_f32 v60, v60, v61\nv_and_b32 v61, 0xffff0000, v60\nv_lshlrev_b32 v60, 16, v60")
    a("v_mul_f32 v60, 0xbfb8aa3b, v60\nv_mul_f32 v61, 0xbfb8aa3b, v61\nv_exp_f32 v60, v60\nv_exp_f32 v61, v61")
    a("v_add_f32 v60, 1.0, v60\nv_add_f32 v61, 1.0, v61\nv_rcp_f32 v60, v60\nv_rcp_f32 v61, v61")
    a("v_mov_b32 v62, 0\ns_mov_b32 exec_lo, 0\ns_mov_b32 exec_hi, 0x80000000")
    a("v_cvt_pk_bf16_f32 v60, v60, v61\nv_and_b32 v61, 0xffff0000, v60\nv_lshlrev_b32 v60, 16, v60")
    a("buffer_store_dwordx2 v[60:61], v62, s[12:15], s55 offen")
    end(a, 0)
    a("P1_EXIT:\ns_endpgm")
    T = p1_tables()
    tab = np.concatenate([T[k].reshape(-1) for k in ("Bre", "Bim", "Tc", "Ts", "Are", "Aim", "dre", "dim")])
    return a, table_text("P1_TAB", tab), 100

L_KS = 0; L_KSS = 4672; L_EB = 0; E_CH = 64 * 72 + 64
L_KB = 2 * L_KSS; K_CS = 4160; K_CH = 4 * K_CS
L_UB = (L_KB + 2 * K_CH + 255) // 256 * 256; U_P1 = 1280; U_P2 = 2592; U_CH = 5200
L_XB = L_UB + 2 * U_CH; L_FL = L_XB + 8192; L_WB = L_FL + 32
P2_LDS = L_WB + 8192

def expand_table():
    T = np.zeros((256, 8), np.uint32)
    for t in range(256):
        r1 = 2 if t < 64 else 0
        r2 = 4 if t < 128 else 0
        srcs = [(-4, 0), (-2, 0), (0, 0), (r1, r2), (r2, 8), (6, 8)]
        for k in range(6):
            s1, s0 = srcs[k]; sel = 0
            for h in range(2):
                l = 8 * t + 2 * (k - 2) + h
                pos = (lround(l) if l >= 0 else l) - 8 * t
                if pos in (s1, s1 + 1): b = 2 * (pos - s1)
                elif pos in (s0, s0 + 1): b = 4 + 2 * (pos - s0)
                else:
                    assert k == 0 and h == 0, (t, k, h, pos)
                    b = 0
                sel |= (b | ((b + 1) << 8)) << (16 * h)
            T[t, k] = sel
    return T

def gen_p2():
    a = Asm()
    st_begin(a)
    a("s_load_dwordx2 s[12:13], s[0:1], 120")
    a("v_readfirstlane_b32 s3, v0\nv_and_b32 v1, 63, v0\nv_lshlrev_b32 v2, 4, v1\ns_lshr_b32 s3, s3, 6")
    table_base(a, 20, "P2_TAB")
    srd_pre(a, 12, WS_USED)
    a("s_cmp_ge_u32 s3, 4\ns_cbranch_scc1 P2_F")
    a("s_cmpk_ge_u32 s2, 256\ns_cbranch_scc1 P2_EXIT")
    a("v_lshlrev_b32 v4, 5, v0")
    a("global_load_dwordx2 v[114:115], v2, s[20:21] offset:-4096")
    a("global_load_dwordx4 v[120:123], v4, s[20:21] offset:1024\nglobal_load_dwordx2 v[124:125], v4, s[20:21] offset:1040")
    a("v_lshrrev_b32 v6, 3, v1\nv_and_b32 v7, 7, v1\nv_lshlrev_b32 v8, 15, v6\nv_lshl_add_u32 v8, v7, 4, v8")
    a(f"s_lshl_b32 s28, s2, 7\ns_lshl_b32 s29, s3, 19\ns_add_u32 s28, s28, s29\ns_add_u32 s28, s28, {UT_OFF}\ns_add_u32 s29, s28, 0x40000")
    a(f"s_lshl_b32 s30, s2, 12\ns_lshl_b32 s31, s3, 10\ns_add_u32 s30, s30, s31\ns_add_u32 s30, s30, {KC_OFF}")
    a("s_waitcnt lgkmcnt(0)")
    st(a, 1)
    a("buffer_load_dwordx4 v[40:43], v2, s[12:15], s30 offen")
    a("buffer_load_dwordx4 v[96:99], v8, s[12:15], s28 offen\nbuffer_load_dwordx4 v[100:103], v8, s[12:15], s29 offen")
    a("v_lshrrev_b32 v4, 4, v1\nv_and_b32 v10, 15, v1\nv_mov_b32 v104, 0\nv_mov_b32 v105, 0\ns_lshr_b32 s26, s3, 1\ns_and_b32 s27, s3, 1")
    a(f"v_and_b32 v9, 1, v7\nv_mul_u32_u24 v9, {U_P2}, v9\nv_bfe_u32 v11, v7, 1, 1\nv_mul_u32_u24 v11, {U_P1}, v11\nv_lshrrev_b32 v7, 2, v7\nv_mul_u32_u24 v7, {U_CH}, v7")
    a(f"v_add3_u32 v9, v9, v11, v7\ns_lshl_b32 s22, s3, 8\ns_add_u32 s22, s22, {L_UB + 256}\nv_lshl_add_u32 v6, v6, 4, s22\nv_add_u32 v119, v6, v9")
    a(f"s_mul_i32 s22, s27, {U_P2}\ns_mul_i32 s23, s26, {U_CH}\ns_add_u32 s22, s22, s23\ns_add_u32 s22, s22, {L_UB}\nv_lshl_add_u32 v7, v1, 2, s22")
    a(f"ds_write_b32 v7, v104\nds_write_b32 v7, v104 offset:{U_P1}")
    a(f"s_mul_i32 s23, s3, {2*K_CS}\ns_add_u32 s23, s23, {L_KB}\nv_lshl_add_u32 v7, v10, 2, s23\nds_write_b32 v7, v104\nds_write_b32 v7, v104 offset:{K_CS}")
    a(f"ds_write_b64 v104, v[104:105] offset:8\nds_write_b64 v104, v[104:105] offset:{L_KSS + 8}")
    a(f"v_lshlrev_b32 v126, 4, v0\nv_add_u32 v127, {L_KB + 64}, v126")
    a("s_cmp_ge_u32 s3, 1\ns_cselect_b64 s[56:57], -1, 0\ns_cmp_ge_u32 s3, 2\ns_cselect_b64 s[58:59], -1, 0")
    a(f"s_mul_i32 s53, s26, {K_CH}\ns_lshl_b32 s54, s27, 5\ns_add_u32 s53, s53, s54\ns_add_u32 s53, s53, {L_KB + 56}")
    a(f"v_bfe_u32 v15, v1, 2, 2\nv_mul_u32_u24 v15, {K_CS}, v15\nv_and_b32 v16, 3, v1\nv_lshl_add_u32 v15, v16, 3, v15\nv_and_b32 v16, 16, v1\nv_lshlrev_b32 v16, 1, v16\nv_sub_u32 v15, v15, v16\nv_and_b32 v16, 32, v1\nv_lshrrev_b32 v16, 1, v16\nv_sub_u32 v15, v15, v16\nv_add_u32 v112, s53, v15")
    a(f"s_mul_i32 s53, s26, {U_CH}\ns_add_u32 s53, s53, {L_UB}\nv_and_b32 v15, 1, v4\nv_mul_u32_u24 v15, {U_P1}, v15\nv_lshrrev_b32 v16, 5, v1\nv_mul_u32_u24 v16, {U_P2}, v16")
    a("v_lshl_add_u32 v15, v10, 4, v15\nv_add3_u32 v113, v15, v16, s53")
    a(f"s_mul_i32 s53, s26, {E_CH}\ns_add_u32 s53, s53, s54")
    a("v_mul_u32_u24 v15, 72, v10\nv_lshl_add_u32 v15, v4, 3, v15\nv_add_u32 v116, s53, v15")
    a("v_and_b32 v5, 62, v0\nv_and_b32 v3, 1, v0\ns_mul_i32 s53, s3, 72")
    a(f"v_mul_u32_u24 v3, {2304+64}, v3\nv_add3_u32 v118, v3, v5, s53")
    a(f"s_lshl_b32 s53, s2, 13\ns_add_u32 s53, s53, {AT_OFF}\ns_add_u32 s55, s53, 4096\ns_mov_b32 s54, 0x05040100")
    ACC = 80
    for i in range(16): a(f"v_mov_b32 v{ACC+i}, 0")
    a(f"s_mul_i32 s31, s26, {L_KSS}\ns_lshl_b32 s30, s27, 8\ns_add_u32 s31, s31, s30\ns_add_u32 s31, s31, {L_KS + 16}\nv_lshl_add_u32 v15, v4, 6, s31")
    a("s_waitcnt vmcnt(3)\nv_add_u32 v114, v114, v15\nv_add_u32 v115, v115, v15")
    a("s_waitcnt vmcnt(2)")
    st(a, 2)
    for nt in range(2):
        for h in range(2):
            a(f"ds_write_b16 v{114+nt}, v{40+2*nt+h} offset:{32*h}\nds_write_b16_d16_hi v{114+nt}, v{40+2*nt+h} offset:{32*h+16}")
    a("s_waitcnt lgkmcnt(0)")
    st(a, 3)
    a("s_barrier")
    for c in range(2):
        b = 16 + 8*c; o = L_KSS * c
        a(f"ds_read_b128 {q(b)}, v126 offset:{o+16}\nds_read_b64 {p(b+4)}, v126 offset:{o+8}\nds_read_b32 v{b+6}, v126 offset:{o+32}")
    for c in range(2):
        b = 16 + 8*c; e = 32 + 16*c; o = K_CH * c
        a(f"s_waitcnt lgkmcnt({5 if c == 0 else 6})")
        a(f"v_cndmask_b32 v{b+1}, v{b+1}, v{b}, s[56:57]\nv_cndmask_b32 v{b+2}, v{b+2}, v{b}, s[58:59]")
        a(f"v_perm_b32 v{e}, v{b}, v{b}, v122\nv_perm_b32 v{e+1}, v{b+2}, v{b+1}, v123")
        a(f"s_waitcnt lgkmcnt({3 if c == 0 else 4})")
        a(f"v_perm_b32 v{e+2}, v{b+6}, v{b+2}, v124\nv_perm_b32 v{e+3}, v{b+6}, v{b+3}, v125\nv_perm_b32 v{e+4}, v{b}, v{b+5}, v121\nv_perm_b32 v{b+7}, v{b}, v{b+4}, v120")
        a(f"ds_write_b128 v127, {q(e)} offset:{o}")
        a(f"v_mov_b32 v{e+5}, v{e}\nv_mov_b32 v{e+6}, v{e+1}\nv_mov_b32 v{e+7}, v{e+2}")
        a(f"ds_write_b128 v127, {q(e+4)} offset:{o + 2*K_CS}")
        a(f"v_alignbit_b32 v{e+8}, v{e}, v{e+4}, 16\nv_alignbit_b32 v{e+9}, v{e+1}, v{e}, 16\nv_alignbit_b32 v{e+10}, v{e+2}, v{e+1}, 16\nv_alignbit_b32 v{e+11}, v{e+3}, v{e+2}, 16")
        a(f"ds_write_b128 v127, {q(e+8)} offset:{o + K_CS}")
        a(f"v_alignbit_b32 v{e+12}, v{e+4}, v{b+7}, 16\nv_mov_b32 v{e+13}, v{e+8}\nv_mov_b32 v{e+14}, v{e+9}\nv_mov_b32 v{e+15}, v{e+10}")
        a(f"ds_write_b128 v127, {q(e+12)} offset:{o + 3*K_CS}")
    a("s_waitcnt vmcnt(1)\nds_write_b128 v119, v[96:99]\ns_waitcnt vmcnt(0)\nds_write_b128 v119, v[100:103] offset:128")
    a("s_waitcnt lgkmcnt(0)")
    st(a, 4)
    a("s_barrier")
    st(a, 5)
    SET = (16, 48)
    def ldA(s, e, d, half):
        a(f"ds_read_b64_tr_b16 {p(SET[s] + 4*e + 2*half)}, v112 offset:{64*d + 1024*e + (8 if half == 0 else 0)}")
    def ldG(s, c, d): a(f"ds_read_b128 {q(SET[s]+16+4*c)}, v113 offset:{16*(16-d) + 256*c}")
    def mm(s, e, cb): a(f"{MF32} {q(ACC+4*cb)}, {q(SET[s]+4*e)}, {q(SET[s]+16+4*(cb-e))}, {q(ACC+4*cb)}")
    ldA(0,0,0,0); ldA(0,0,0,1)
    for c in range(4): ldG(0, c, 0)
    for e in range(1, 4): ldA(0,e,0,0); ldA(0,e,0,1)
    W = lambda n: a(f"s_waitcnt lgkmcnt({n})")
    U = cfg.unroll
    if U < 16: a(f"s_mov_b32 s22, {16//U}\n.p2align 6\nP2_CL:")
    for d in range(U):
        P, Q = d & 1, 1 - (d & 1)
        if d < 15:
            n = d + 1
            W(9 if (d == 0 and U == 16) else 6); mm(P,0,0)
            if n == U:
                a(f"v_add_u32 v112, {64*U}, v112\nv_subrev_u32 v113, {16*U}, v113\ns_sub_u32 s22, s22, 1\ns_cmp_lg_u32 s22, 0"); n = 0
            ldA(Q,0,n,0); ldA(Q,0,n,1)
            if d == 0 and U == 16: W(8)
            mm(P,0,1); ldG(Q,0,n)
            mm(P,0,2); ldG(Q,1,n)
            mm(P,0,3); ldG(Q,2,n)
            W(7); mm(P,1,1); ldG(Q,3,n)
            mm(P,1,2); ldA(Q,1,n,0)
            mm(P,1,3); ldA(Q,1,n,1)
            mm(P,2,2); ldA(Q,2,n,0)
            mm(P,2,3); ldA(Q,2,n,1)
            W(10); mm(P,3,3); ldA(Q,3,n,0); ldA(Q,3,n,1)
        else:
            W(6); mm(P,0,0); mm(P,0,1); mm(P,0,2); mm(P,0,3); W(2); mm(P,1,1); mm(P,1,2); mm(P,1,3)
            mm(P,2,2); mm(P,2,3); W(0); mm(P,3,3)
    if U < 16: a("s_cbranch_scc1 P2_CL")
    st(a, 6)
    for cb in range(4):
        a(f"v_cvt_pk_bf16_f32 v{96+2*cb}, v{ACC+4*cb}, v{ACC+4*cb+1}\nv_cvt_pk_bf16_f32 v{97+2*cb}, v{ACC+4*cb+2}, v{ACC+4*cb+3}")
        a(f"ds_write_b64 v116, {p(96+2*cb)} offset:{1152*cb + (64 if cb >= 2 else 0)}")
    a("s_waitcnt lgkmcnt(0)")
    a("s_barrier")
    for j in range(2):
        for i in range(4): a(f"ds_read_u16 v{16+8*j+i}, v118 offset:{288*j + 576*i}\nds_read_u16 v{20+8*j+i}, v118 offset:{288*j + 576*i + E_CH}")
        if j == 0: a("s_waitcnt lgkmcnt(7)")
    for j in range(2):
        for i in range(4): a(f"s_waitcnt lgkmcnt({8*(1-j) + 6-2*i})\nv_perm_b32 v{32+4*j+i}, v{20+8*j+i}, v{16+8*j+i}, s54")
        a(f"buffer_store_dwordx4 {q(32+4*j)}, v126, s[12:15], s{53 + 2*j} offen")
    end(a, 1)
    a("P2_F:")
    a("s_cmpk_ge_u32 s2, 257\ns_cbranch_scc1 P2_EXIT")
    a("s_load_dwordx2 s[32:33], s[0:1], 80\ns_load_dwordx2 s[36:37], s[0:1], 88\ns_sub_u32 s7, s3, 4")
    if cfg.prio == 2: a("s_setprio 2")
    FRE, FIM, TC, TS = 96, 100, 104, 108
    for i in range(4): a(f"global_load_dwordx4 {q(96+4*i)}, v2, s[20:21] offset:{1024*i-3072}")
    srd_pre(a, 32, 2048 * 514); srd_pre(a, 36, 2048 * 514)
    a("s_and_b32 s60, s2, 7\ns_bfe_u32 s61, s2, 0x50003")
    a(f"s_lshl_b32 s4, s7, 19\ns_lshl_b32 s5, s60, 10\ns_add_u32 s4, s4, s5\ns_lshl_b32 s5, s61, 5\ns_add_u32 s4, s4, s5")
    a("s_lshl_b32 s8, s7, 9\ns_add_u32 s8, s8, s60\ns_mul_i32 s8, s8, 514\ns_lshl_b32 s9, s61, 4\ns_add_u32 s8, s8, s9")
    a(f"s_lshl_b32 s63, s60, 5\ns_add_u32 s63, s63, s61\ns_lshl_b32 s63, s63, 13\ns_add_u32 s63, s63, {Y1_OFF}")
    a(f"s_lshl_b32 s10, s7, 11\ns_lshl_b32 s11, s7, 10\ns_add_u32 s16, s10, {XN_OFF}\ns_add_u32 s17, s11, {WN_OFF}")
    a("s_cmpk_eq_u32 s2, 256")
    a(f"s_cselect_b32 s4, s16, s4\ns_cselect_b32 s8, s17, s8\ns_cselect_b32 s63, {YN_OFF}, s63\ns_cselect_b32 s16, 32, {X1_S0}\ns_cselect_b32 s17, 16, 4112\ns_cselect_b32 s18, 4096, 0")
    a("v_lshrrev_b32 v12, 1, v1\nv_and_b32 v13, 1, v1\nv_mul_lo_u32 v12, v12, s16\nv_lshl_add_u32 v12, v13, 4, v12\nv_mul_u32_u24 v13, s17, v1")
    a(f"s_lshl_b32 s5, s16, 5\ns_add_u32 s5, s5, s4\ns_add_u32 s9, s8, s18\ns_add_u32 s11, s11, {L_WB}\ns_add_u32 s10, s10, {L_XB}\ns_mov_b32 m0, s10")
    a("v_lshrrev_b32 v4, 4, v1\nv_and_b32 v10, 15, v1\nv_lshl_add_u32 v7, v4, 6, v10\ns_lshl_b32 s19, s7, 3\nv_lshl_add_u32 v114, v7, 5, s19")
    a(f"s_lshl_b32 s19, s7, 2\nv_mov_b32 v112, s19\ns_add_u32 s19, s19, {L_WB}\nv_lshl_add_u32 v116, v7, 4, s19\nv_mov_b32 v15, 0\nv_mov_b32 v113, 1")
    a(f"ds_write_b32 v112, v15 offset:{L_FL}\nds_write_b32 v112, v15 offset:{L_FL+16}\ns_mov_b32 s6, 0x100000\ns_cmpk_eq_u32 s2, 256")
    a("s_waitcnt lgkmcnt(0)")
    a(f"s_cselect_b64 s[32:33], s[12:13], s[32:33]\ns_cselect_b64 s[36:37], s[12:13], s[36:37]\ns_cselect_b32 s34, s14, s34\ns_cselect_b32 s38, s14, s38")
    st(a, 1)
    a("s_barrier")
    a("buffer_load_dwordx4 v12, s[12:15], s4 offen lds\ns_add_u32 m0, s10, 1024\ns_nop 0")
    a("buffer_load_dwordx4 v12, s[12:15], s5 offen lds\ns_mov_b32 m0, s11\ns_nop 0")
    a("buffer_load_dwordx4 v13, s[32:35], s8 offen lds\ns_add_u32 m0, s11, 4096\ns_nop 0")
    a("buffer_load_dwordx4 v13, s[36:39], s9 offen lds")
    st(a, 2)
    a("s_barrier")
    def sync4(k, off):
        a(f"ds_write_b32 v112, v113 offset:{off}\nP2_SP{k}:")
        a(f"ds_read_b128 v[80:83], v15 offset:{off}\ns_waitcnt lgkmcnt(0)\nv_and_b32 v80, v80, v81\nv_and_b32 v82, v82, v83\nv_and_b32 v80, v80, v82")
        a(f"v_readfirstlane_b32 s5, v80\ns_sub_u32 s6, s6, 1\ns_cselect_b32 s5, 1, s5\ns_cmp_eq_u32 s5, 0\ns_cbranch_scc1 P2_SP{k}")
    a("s_waitcnt vmcnt(2)")
    sync4(0, L_FL)
    st(a, 3)
    for j, r in enumerate((72, 76, 74, 78)): a(f"ds_read_b64 {p(r)}, v114 offset:{L_XB + 512*j}")
    a("s_waitcnt lgkmcnt(0)\nv_swap_b32 v73, v76\nv_swap_b32 v75, v78")
    def mf(t):
        if cfg.prio == 1: a("s_setprio 2")
        a(t)
        if cfg.prio == 1: a("s_setprio 0")
    if cfg.nofft: end(a, 1)
    col = (72, 76); D = ((16, 20), (24, 28)); T = ((32, 36), (40, 44))
    for c in range(2): mf(f"{MF32} {q(D[c][0])}, {q(col[c])}, {q(FRE)}, 0\n{MF32} {q(D[c][1])}, {q(col[c])}, {q(FIM)}, 0")
    for c in range(2):
        twiddle(a, D[c][0], D[c][1], TC, TS, T[c][0], T[c][1], packed=False)
        for r in range(4): a(f"v_cvt_pk_bf16_f32 v{col[c]+r}, v{T[c][0]+r}, v{T[c][1]+r}")
        mf(f"{MF32} {q(D[c][0])}, {q(FRE)}, {q(col[c])}, 0\n{MF32} {q(D[c][1])}, {q(FIM)}, {q(col[c])}, 0")
    a("s_waitcnt vmcnt(0)")
    sync4(1, L_FL + 16)
    st(a, 4)
    for arr in range(2):
        for r in (0, 2): a(f"ds_read2st64_b32 {p(80+4*arr+r)}, v116 offset0:{16*arr+r} offset1:{16*arr+r+1}")
    a("s_waitcnt lgkmcnt(0)")
    for r in range(4): a(f"v_lshlrev_b32 v{48+r}, 16, v{80+r}\nv_lshlrev_b32 v{52+r}, 16, v{84+r}")
    for r in range(4): a(f"v_and_b32 v{56+r}, 0xffff0000, v{80+r}\nv_and_b32 v{60+r}, 0xffff0000, v{84+r}")
    for c in range(2):
        twiddle(a, D[c][0], D[c][1], 48 + 8*c, 52 + 8*c, T[c][0], T[c][1], conj=True, packed=False)
        for r in range(4): a(f"v_cvt_pk_bf16_f32 v{col[c]+r}, v{T[c][1]+r}, v{T[c][0]+r}")
        mf(f"{MF32} {q(D[c][0])}, {q(col[c])}, {q(FRE)}, 0\n{MF32} {q(D[c][1])}, {q(col[c])}, {q(FIM)}, 0")
    for c in range(2):
        twiddle(a, D[c][0], D[c][1], TC, TS, T[c][0], T[c][1], packed=False)
        for r in range(4): a(f"v_cvt_pk_bf16_f32 v{col[c]+r}, v{T[c][0]+r}, v{T[c][1]+r}")
        mf(f"{MF32} {q(D[c][0])}, {q(FRE)}, {q(col[c])}, 0\n{MF32} {q(D[c][1])}, {q(FIM)}, {q(col[c])}, 0")
    for c in range(2):
        for r in range(4): a(f"v_cvt_pk_bf16_f32 v{48+2*r+c}, v{D[c][1]+r}, v{D[c][0]+r}")
    for r in range(4): a(f"buffer_store_dwordx2 {p(48+2*r)}, v114, s[12:15], s63 offen offset:{512*r}")
    st(a, 6)
    end(a, 1)
    a("P2_EXIT:\ns_endpgm")
    F = p2_fft_tables()
    stg = np.zeros((64, 4), np.uint32)
    for l in range(64):
        n = l & 15
        stg[l, 0] = 2 * BCOL[n]; stg[l, 1] = 2 * (BCOL[16 + n] if 16 + n < 21 else 2049)
    tab = np.concatenate([stg.reshape(-1)] + [F[k].reshape(-1) for k in ("Fre", "Fim", "Tc", "Ts")] + [expand_table().reshape(-1)])
    return a, table_text("P2_TAB", tab), 128

P3_PS = 2624; P3_AB = 4 * 2624; P3_LDS = P3_AB + 8192
def gen_p3():
    a = Asm()
    st_begin(a)
    a("s_load_dwordx2 s[12:13], s[0:1], 120\ns_load_dwordx2 s[8:9], s[0:1], 104")
    a("s_cmpk_ge_u32 s2, 256\ns_cbranch_scc1 P3_EXIT")
    a("v_readfirstlane_b32 s3, v0\nv_and_b32 v1, 63, v0\nv_lshlrev_b32 v2, 4, v1\ns_lshr_b32 s3, s3, 6")
    table_base(a, 22, "P3_TAB")
    for i in range(8): a(f"global_load_dwordx4 {q(16+4*i)}, v2, s[22:23] offset:{1024*i-4096}")
    a("s_and_b32 s20, s2, 7\ns_lshl_b32 s20, s20, 5\ns_lshr_b32 s21, s2, 3\ns_add_u32 s20, s20, s21")
    a("s_lshl_b32 s21, s20, 5")
    a("v_lshrrev_b32 v4, 4, v1\nv_bfe_u32 v3, v1, 1, 3\nv_and_b32 v10, 15, v1")
    srd_pre(a, 12, WS_USED)
    a(f"v_lshlrev_b32 v15, 2, v3\ns_add_u32 s30, s21, {G_OFF}\nv_lshlrev_b32 v9, 3, v4\ns_add_u32 s38, s21, {YN_OFF}")
    a("v_lshrrev_b32 v11, 1, v1\nv_and_b32 v12, 1, v1\nv_lshlrev_b32 v12, 4, v12\nv_lshl_add_u32 v13, v11, 16, v12\nv_lshl_add_u32 v11, v11, 13, v12")
    a(f"s_lshl_b32 s24, s3, 19\ns_add_u32 s24, s24, s21\ns_add_u32 s24, s24, {Y1_OFF}\ns_add_u32 s25, s24, {32*8192}")
    a(f"s_mul_i32 s26, s3, {P3_PS}")
    a(f"s_and_b32 s27, s3, 1\ns_lshl_b32 s27, s27, 2\ns_lshr_b32 s28, s3, 1\ns_add_u32 s27, s27, s28\ns_lshl_b32 s27, s27, 13\ns_add_u32 s27, s27, s21\ns_add_u32 s27, s27, {AT_OFF}\ns_add_u32 s28, s27, 16384")
    a(f"s_lshl_b32 s29, s3, 11\ns_add_u32 s29, s29, {P3_AB}\ns_lshl_b32 s31, s3, 3\ns_add_u32 s31, s31, s30")
    a("s_mov_b32 m0, s26")
    a("s_waitcnt lgkmcnt(0)")
    st(a, 1)
    a("buffer_load_dword v14, v15, s[12:15], s30 offen\nbuffer_load_dwordx2 v[104:105], v9, s[12:15], s38 offen")
    a("buffer_load_dwordx4 v11, s[12:15], s24 offen lds\ns_add_u32 m0, s26, 1280\ns_nop 0")
    a("buffer_load_dwordx4 v11, s[12:15], s25 offen lds\ns_mov_b32 m0, s29\ns_nop 0")
    a("buffer_load_dwordx4 v13, s[12:15], s27 offen lds\ns_add_u32 m0, s29, 1024\ns_load_dwordx2 s[32:33], s[12:13], s31")
    a("buffer_load_dwordx4 v13, s[12:15], s28 offen lds")
    srd_pre(a, 8, 2097152)
    a("v_lshl_add_u32 v5, v3, 8, s20\nv_mul_u32_u24 v6, v4, v5\nv_and_b32 v7, 1, v1\nv_lshlrev_b32 v7, 8, v7\nv_sub_u32 v6, v7, v6\nv_lshlrev_b32 v6, 1, v6\nv_sub_u32 v5, v6, v5")
    a("v_cvt_f32_i32 v6, v6\nv_cvt_f32_i32 v5, v5\nv_mul_f32 v6, 0x3a000000, v6\nv_mul_f32 v5, 0x3a000000, v5")
    a("v_cos_f32 v7, v6\nv_sin_f32 v6, v6\nv_cos_f32 v8, v5\nv_sin_f32 v5, v5")
    lane_base(a, 9, 1, 10, 11)
    a("v_lshl_add_u32 v9, v9, 2, s26\nv_cndmask_b32 v92, 0, -1, vcc\nv_add_u32 v50, 1280, v9\nv_mov_b32 v51, s26")
    a("v_mov_b32 v93, 0x03020100\nv_mov_b32 v11, 0x05040100\nv_cmp_eq_u32 vcc, 0, v1\nv_cndmask_b32 v93, v93, v11, vcc")
    a(f"v_mul_u32_u24 v15, {P3_PS}, v4\nv_lshl_add_u32 v15, v10, 2, v15\ns_lshl_b32 s31, s3, 6\nv_add_u32 v11, s31, v15")
    a(f"v_lshl_add_u32 v12, v4, 5, v10\nv_lshlrev_b32 v12, 5, v12\ns_lshl_b32 s31, s3, 3\ns_add_u32 s31, s31, {P3_AB}\nv_add_u32 v12, s31, v12")
    a("v_lshlrev_b32 v13, 5, v10\nv_lshl_add_u32 v13, v4, 3, v13")
    a("s_lshl_b32 s34, s20, 10\ns_lshl_b32 s35, s3, 19\ns_add_u32 s34, s34, s35\ns_add_u32 s35, s34, 0x40000")
    a("s_waitcnt vmcnt(5)")
    a("v_sub_f32 v14, 1.0, v14\nv_cvt_pk_bf16_f32 v14, v14, v14\nv_and_b32 v14, 0xffff0000, v14")
    a("v_mul_f32 v7, v14, v7\nv_mul_f32 v6, v14, v6\nv_mul_f32 v8, v14, v8\nv_mul_f32 v5, v14, v5")
    a("v_cvt_pk_bf16_f32 v48, v7, v6\nv_cvt_pk_bf16_f32 v49, v8, v5")
    a("s_waitcnt vmcnt(4) lgkmcnt(0)")
    a(f"{MF16} {q(60)}, {p(48)}, {p(104)}, 0")
    a("s_lshr_b32 s36, s32, 16\ns_lshr_b32 s37, s33, 16")
    a("v_cvt_pk_bf16_f32 v52, v60, v61\nv_cvt_pk_bf16_f32 v53, v62, v63")
    a("ds_write2st64_b32 v15, v52, v53 offset0:4 offset1:9")
    a("s_waitcnt vmcnt(2)")
    st(a, 2)
    a("s_barrier")
    for t in range(4): a(f"ds_read2st64_b32 {p(52+2*t)}, v11 offset0:{t} offset1:{t+5}")
    for t in range(4):
        a(f"s_waitcnt lgkmcnt({3-t})\n{MF16} {q(60+4*t)}, {p(48)}, {p(52+2*t)}, 0")
    for t in range(4):
        a(f"v_cvt_pk_bf16_f32 v{52+2*t}, v{60+4*t}, v{61+4*t}\nv_cvt_pk_bf16_f32 v{53+2*t}, v{62+4*t}, v{63+4*t}")
        a(f"ds_write2st64_b32 v11, v{52+2*t}, v{53+2*t} offset0:{t} offset1:{t+5}")
    a("s_waitcnt lgkmcnt(0)")
    st(a, 3)
    a("s_barrier")
    for e, ad in ((0, 9), (1, 50)):
        a(f"ds_read2_b32 {p(52+8*e)}, v{ad} offset1:32\nds_read2_b32 {p(54+8*e)}, v{ad} offset0:64 offset1:96\nds_read_b32 v{94+e}, v51 offset:{1024+1280*e}")
    for e in range(2):
        A, Am = 52 + 8*e, 56 + 8*e
        re, im = 68 + 8*e, 72 + 8*e
        a(f"s_waitcnt lgkmcnt({3-3*e})")
        a(f"v_perm_b32 v{A}, v{94+e}, v{A}, v93")
        for r in range(4): a(f"v_and_b32 v{Am+r}, v92, v{A+r}")
        a(f"{MF32} {q(re)}, {q(A)}, {q(16)}, 0\n{MF32} {q(im)}, {q(A)}, {q(20)}, 0")
        a(f"{MF32} {q(re)}, {q(Am)}, {q(24)}, {q(re)}\n{MF32} {q(im)}, {q(Am)}, {q(28)}, {q(im)}")
    a("s_waitcnt vmcnt(0)\ns_barrier")
    for i, (hb, e2) in enumerate(((0,0),(0,1),(1,0),(1,1))): a(f"ds_read_b64 {p(96+2*i)}, v12 offset:{4096*e2+512*hb}")
    for e in range(2):
        re, im = 68 + 8*e, 72 + 8*e
        twiddle(a, re, im, 32, 36, 84, 88, conj=True)
        for r in range(4): a(f"v_cvt_pk_bf16_f32 v{52+4*e+r}, v{84+r}, v{88+r}")
        a(f"{MF32} {q(re)}, {q(52+4*e)}, {q(40)}, 0\n{MF32} {q(im)}, {q(52+4*e)}, {q(44)}, 0")
    a("s_waitcnt lgkmcnt(0)")
    for e in range(2):
        for hb in range(2):
            D = 68 + 8*e + 4*hb
            for e2 in range(2):
                av = 96 + 2*(2*hb + e2) + e
                a(f"v_dot2_f32_bf16 v{D+2*e2}, v{av}, s{36+e}, v{D+2*e2}\nv_dot2_f32_bf16 v{D+2*e2+1}, v{av}, s{32+e}, v{D+2*e2+1}")
        for hb in range(2):
            D = 68 + 8*e + 4*hb; o = 60 + 4*e + 2*hb
            a(f"v_cvt_pk_bf16_f32 v{o}, v{D}, v{D+1}\nv_cvt_pk_bf16_f32 v{o+1}, v{D+2}, v{D+3}")
            a(f"buffer_store_dwordx2 {p(o)}, v13, s[8:11], s{34+e} offen offset:{512*hb}")
    st(a, 4)
    end(a, 2)
    a("P3_EXIT:\ns_endpgm")
    T = p3_tables()
    tab = np.concatenate([T[k].reshape(-1) for k in ("Bre", "Bim", "dre", "dim", "Tc", "Ts", "F0", "F1")])
    return a, table_text("P3_TAB", tab), 106

def build(path):
    a1, t1, v1 = gen_p1(); a2, t2, v2 = gen_p2(); a3, t3, v3 = gen_p3()
    txt = ""
    for lab, aa in (("p1_kernel", a1), ("p2_kernel", a2), ("p3_kernel", a3)):
        body, n = aa.finish()
        txt += kernel_begin(lab) + ("P2_CODE:\n" if lab == "p2_kernel" else "") + body
        print(lab, "instructions:", len(aa.lines), "nops inserted:", n, "bytes:", aa.nbytes, file=sys.stderr)
    txt += "CODE_END:\n"
    rod = t2 + t3 + "TAB_END:\n" + t1
    launches = [("p1_kernel", 768, 256, P1_LDS), ("p2_kernel", 257, 512, P2_LDS), ("p3_kernel", 256, 256, P3_LDS)]
    descs = [descriptor("p1_kernel", v1), descriptor("p2_kernel", v2), descriptor("p3_kernel", v3)]
    open(path, "w").write(make_file(launches, txt, descs) + rod)

if __name__ == "__main__":
    for o in sys.argv[2:]:
        k, v = o.split("="); setattr(cfg, k, int(v))
    build(sys.argv[1])
```

```python
import sys, numpy as np
from asmgen import *
from tables import *
import gen as G1
from gen import cfg, srd_pre, st, st_begin, end, pad_begin, table_base, lane_base, twiddle, q, p, MF32, MF16, pk1, pk2, cmul_seq, zpow, expand_table
from gen import X1_OFF, XN_OFF, WN_OFF, YN_OFF, UT_OFF, Y1_OFF, AT_OFF

FL_OFF = 0x230000; FL_SET = 0x4000; FL_REP = 1280
EP_OFF = 0x250000
WS_USED = 0xB00000
RS = 544
cfg.psleep = 4
cfg.gsleep = 1
cfg.afirst = 0
cfg.bfirst = 8
cfg.nrep = 8
cfg.hpoll = 1
cfg.ywait = 1
cfg.aearly = 1
cfg.ypace = 0
cfg.ylate = 0
cfg.wby = 0
cfg.touch = 1
cfg.outsc = 1

B_EX = 8192; B_EXS = 2064; B_UX = B_EX + 4 * B_EXS; B_GW = B_UX + 8192; B_WB = B_GW + 1024; B_GL = B_WB + 8192
B_XB = B_GL + 64; B_YB = B_XB + 8192; B_PS = 2624; B_AB = B_YB + 4 * B_PS
A_TAS = 32 * RS; A_TB = 2 * A_TAS; A_TBS = 21 * RS
A_KS = A_TB + 2 * A_TBS; A_KSS = 4672; E_CH = 64 * 72 + 64
A_KB = 0; K_CS = 4160; K_CH = 4 * K_CS
A_XB = 2 * K_CH; A_WB = A_XB + 8192
A_UB = (A_KS + 2 * A_KSS + 255) // 256 * 256; U_P1 = 1280; U_P2 = 2592; U_CH = 5200
LDS = A_UB + 2 * U_CH
SPIN = 0x10000

cfg.stB = "karg,rows,stores,drain,p0pass,ystaged"
cfg.stA = "karg,params,expand,pdrain,ustaged,convend"
cfg.ev = ""
def evend(a, role):
    if cfg.ev.startswith(role):
        a(f"s_waitcnt vmcnt(0) lgkmcnt(0)\nLEV{role}:\ns_memrealtime s[86:87]\ns_waitcnt lgkmcnt(0)\ns_sub_u32 s86, s86, s84\ns_cmp_lt_u32 s86, 2000\ns_cbranch_scc1 LEV{role}\ns_endpgm")
def sn(a, role, name):
    if cfg.ev == role + ":" + name: a("s_memrealtime s[84:85]")
    l = (cfg.stB if role == "B" else cfg.stA).split(",")
    if name in l: st(a, l.index(name) + 1)
_u = [0]
def signal(a, fset):
    a(f"s_mov_b64 exec, {(1 << cfg.nrep) - 1}\nv_mul_u32_u24 v60, {FL_REP}, v1\nv_mov_b32 v61, s96\ns_add_u32 s5, s97, {FL_OFF + fset*FL_SET}")
    a("buffer_store_dword v61, v60, s[12:15], s5 offen sc0 sc1\ns_mov_b64 exec, -1")
def poll(a, fsets, first=0):
    _u[0] += 1; u = _u[0]
    a(f"s_and_b32 s5, s2, {cfg.nrep - 1}\ns_mul_i32 s5, s5, {FL_REP}\ns_mov_b32 s6, {SPIN}")
    for k, f in enumerate(fsets): a(f"s_add_u32 s{98+k}, s5, {FL_OFF + f*FL_SET}")
    if first: a(f"s_sleep {first}")
    a(f"LPOLL{u}:")
    for k, f in enumerate(fsets): a(f"buffer_load_dwordx4 {q(60+4*k)}, v2, s[12:15], s{98+k} offen sc1")
    a("s_waitcnt vmcnt(0)")
    n = 4 * len(fsets)
    for i in range(n): a(f"v_xor_b32 v{60+i}, s96, v{60+i}")
    for i in range(1, n - 1, 2): a(f"v_or3_b32 v60, v60, v{60+i}, v{61+i}")
    a(f"v_or_b32 v60, v60, v{60+n-1}\nv_cmp_ne_u32 vcc, 0, v60\ns_sub_u32 s6, s6, 1\ns_cbranch_scc1 LPOLX{u}\ns_cbranch_vccz LPOLX{u}")
    a(f"s_sleep {cfg.psleep}\ns_branch LPOLL{u}\nLPOLX{u}:")
def gather(a, loads, checks, issued=False):
    _u[0] += 1; u = _u[0]
    a(f"s_mov_b32 s6, {SPIN}")
    if issued: a(f"s_branch LGC{u}")
    a(f"LG{u}:")
    for l in loads: a(l)
    a(f"LGC{u}:\ns_waitcnt vmcnt(0)")
    c = list(checks)
    a(f"v_max_u32 v60, v{c[0]}, v{c[1]}" if len(c) == 2 else f"v_max3_u32 v60, v{c[0]}, v{c[1]}, v{c[2]}")
    a(f"v_cmp_eq_u32 vcc, -1, v60\ns_sub_u32 s6, s6, 1\ns_cbranch_scc1 LGX{u}\ns_and_b64 exec, exec, vcc\ns_cbranch_scc0 LGX{u}")
    if cfg.gsleep: a(f"s_sleep {cfg.gsleep}")
    a(f"s_branch LG{u}\nLGX{u}:\ns_mov_b64 exec, -1")

def gen():
    a = Asm()
    st_begin(a); pad_begin(a, 0)
    sn(a, "B", "start"); sn(a, "A", "start")
    a("s_load_dwordx2 s[12:13], s[0:1], 120\ns_load_dwordx2 s[8:9], s[0:1], 0\ns_load_dwordx2 s[16:17], s[0:1], 96")
    a("s_load_dwordx8 s[32:39], s[0:1], 8\ns_load_dwordx8 s[40:47], s[0:1], 40\ns_load_dwordx4 s[48:51], s[0:1], 80")
    a("v_readfirstlane_b32 s3, v0\nv_and_b32 v1, 63, v0\nv_lshlrev_b32 v2, 4, v1\ns_lshr_b32 s3, s3, 6")
    srd_pre(a, 12, WS_USED)
    a("v_lshrrev_b32 v4, 4, v1\nv_and_b32 v10, 15, v1\ns_and_b32 s97, s2, 0xff\ns_lshl_b32 s97, s97, 2")
    a("s_cmpk_ge_u32 s2, 256\ns_cbranch_scc1 A_IN")
    a("s_cmp_ge_u32 s3, 4\ns_cbranch_scc1 B_PF")
    table_base(a, 20, "P1_TAB")
    for i in range(8): a(f"global_load_dwordx4 {q(16+4*i)}, v2, s[20:21] offset:{1024*i-4096}")
    srd_pre(a, 8, 2097152); srd_pre(a, 16, 1024)
    a("s_and_b32 s60, s2, 7\ns_lshr_b32 s61, s2, 3\ns_lshl_b32 s52, s60, 5\ns_add_u32 s52, s52, s61")
    a("s_lshl_b32 s22, s52, 10\ns_lshl_b32 s23, s3, 19\ns_add_u32 s22, s22, s23\ns_lshl_b32 s24, s3, 11\ns_add_u32 s23, s22, 0x40000")
    a("s_mov_b32 m0, s24")
    a("s_waitcnt lgkmcnt(0)")
    sn(a, "B", "karg")
    a("buffer_load_dwordx4 v2, s[8:11], s22 offen lds\ns_add_u32 m0, s24, 1024\ns_nop 0")
    a(f"buffer_load_dwordx4 v2, s[8:11], s23 offen lds\ns_mov_b32 m0, {B_GW}\ns_mov_b32 s4, {EP_OFF}")
    a("buffer_load_dwordx4 v2, s[16:19], 0 offen lds\ns_load_dword s96, s[12:13], s4\ns_load_dwordx2 s[8:9], s[0:1], 104")
    FRE, FIM, TC, TS = 112, 116, 120, 124
    a("v_bfe_u32 v3, v1, 1, 3\nv_lshl_add_u32 v5, v4, 9, s52\nv_mul_u32_u24 v5, v3, v5")
    a("v_and_b32 v6, 1, v1\nv_lshl_add_u32 v5, v6, 9, v5\nv_lshl_add_u32 v6, v3, 8, v5")
    a("v_cvt_f32_u32 v5, v5\nv_cvt_f32_u32 v6, v6\nv_mul_f32 v5, 0x3a000000, v5\nv_mul_f32 v6, 0x3a000000, v6")
    a("v_cos_f32 v7, v5\nv_sin_f32 v5, v5\nv_cos_f32 v8, v6\nv_sin_f32 v6, v6")
    a("v_cvt_pk_bf16_f32 v48, v7, v5\nv_cvt_pk_bf16_f32 v49, v8, v6")
    lane_base(a, 103, 1, 10, 11)
    a(f"s_mul_i32 s25, s3, {B_EXS}\ns_add_u32 s25, s25, {B_EX}")
    a("v_lshl_add_u32 v9, v103, 3, s25\nv_cndmask_b32 v50, 0, -1, vcc")
    a("s_mov_b32 s26, 0xffff\ns_cmp_eq_u32 s3, 0\ns_cselect_b32 s26, s26, -1\nv_mov_b32 v11, s26\nv_cndmask_b32 v51, -1, v11, vcc")
    a(f"v_mul_u32_u24 v14, {B_EXS}, v4\ns_lshl_b32 s26, s3, 9\nv_add_u32 v14, {B_EX}, v14\nv_lshl_add_u32 v11, v10, 5, v14\nv_add_u32 v11, s26, v11")
    a("v_lshlrev_b32 v12, 11, v4\nv_lshl_add_u32 v12, v10, 4, v12")
    a("s_lshl_b32 s27, s52, 13\ns_lshl_b32 s26, s3, 8\ns_add_u32 s27, s27, s26")
    a("v_lshl_add_u32 v13, v1, 3, s24\nv_lshlrev_b32 v15, 3, v1")
    a("v_lshlrev_b32 v6, 3, v4")
    a(f"s_lshl_b32 s53, s52, 5\ns_add_u32 s56, s53, {XN_OFF}")
    a("s_waitcnt vmcnt(1) lgkmcnt(0)")
    sn(a, "B", "rows")
    a("ds_read_b64_tr_b16 v[52:53], v13\nds_read_b64_tr_b16 v[54:55], v13 offset:512")
    a("ds_read_b64_tr_b16 v[56:57], v13 offset:1024\nds_read_b64_tr_b16 v[58:59], v13 offset:1536")
    a("s_waitcnt lgkmcnt(2)")
    a(f"{MF32} {q(60)}, {q(52)}, {q(16)}, 0\n{MF32} {q(64)}, {q(52)}, {q(20)}, 0")
    a("s_waitcnt lgkmcnt(0)")
    a(f"{MF32} {q(68)}, {q(56)}, {q(16)}, 0\n{MF32} {q(72)}, {q(56)}, {q(20)}, 0")
    a("s_add_u32 s96, s96, 1")
    for e in range(2):
        re, im = 60 + 8*e, 64 + 8*e
        twiddle(a, re, im, 24, 28, 76, 80)
        B, Bm = (84, 88) if e else (16, 20)
        for r in range(4): a(f"v_cvt_pk_bf16_f32 v{B+r}, v{76+r}, v{80+r}")
        for r in range(4): a(f"v_and_b32 v{Bm+r}, v50, v{B+r}")
        a(f"{MF32} {q(re)}, {q(32)}, {q(B)}, 0\n{MF32} {q(im)}, {q(36)}, {q(B)}, 0")
        a(f"{MF32} {q(re)}, {q(40)}, {q(Bm)}, {q(re)}\n{MF32} {q(im)}, {q(44)}, {q(Bm)}, {q(im)}")
    for e in range(2):
        for r in range(4): a(f"v_cvt_pk_bf16_f32 v{92+2*r+e}, v{60+8*e+r}, v{64+8*e+r}")
    for r in range(4): a(f"ds_write_b64 v9, {p(92+2*r)} offset:{256*r}")
    a("s_waitcnt vmcnt(0) lgkmcnt(0)")
    sn(a, "B", "exch")
    a("s_barrier")
    a("ds_read_b128 v[16:19], v11\nds_read_b128 v[20:23], v11 offset:16\nds_read_b64 v[24:25], v14")
    a(f"ds_read_b64_tr_b16 v[36:37], v15 offset:{B_GW}\nds_read_b64_tr_b16 v[38:39], v15 offset:{B_GW+512}")
    a("s_waitcnt lgkmcnt(4)")
    a("v_and_b32 v16, v51, v16\nv_and_b32 v17, v51, v17")
    a(f"{MF16} {q(64)}, {p(48)}, {p(18)}, 0")
    a("s_waitcnt lgkmcnt(2)")
    a(f"{MF16} {q(60)}, {p(48)}, {p(16)}, 0")
    a("v_lshrrev_b32 v24, 16, v24\nv_lshrrev_b32 v25, 16, v25")
    a(f"{MF16} {q(68)}, {p(48)}, {p(20)}, 0\n{MF16} {q(72)}, {p(48)}, {p(22)}, 0\n{MF16} {q(40)}, {p(48)}, {p(24)}, 0")
    for t in (1, 0, 2, 3):
        a(f"v_cvt_pk_bf16_f32 v{76+t}, v{60+4*t}, v{61+4*t}\nv_cvt_pk_bf16_f32 v{80+t}, v{62+4*t}, v{63+4*t}")
    a(f"buffer_store_dwordx4 {q(76)}, v12, s[12:15], s27 offen sc1\nbuffer_store_dwordx4 {q(80)}, v12, s[12:15], s27 offen offset:1024 sc1")
    a("v_cvt_pk_bf16_f32 v44, v40, v41\nv_cvt_pk_bf16_f32 v45, v42, v43")
    a("s_cmp_lg_u32 s3, 0\ns_cbranch_scc1 B_NONYQ")
    a("s_mov_b32 exec_lo, 0x10001\ns_mov_b32 exec_hi, 0x10001\nbuffer_store_dwordx2 v[44:45], v6, s[12:15], s56 offen sc1")
    a("s_mov_b64 exec, -1")
    a("B_NONYQ:")
    sn(a, "B", "stores")
    a("s_waitcnt lgkmcnt(0)")
    for i in range(4):
        for e in range(2): a(f"v_dot2_f32_bf16 v{60+e}, v{52+4*e+i}, v{36+i}, " + ("0" if i == 0 else f"v{60+e}"))
    for sh in ("row_shr:1", "row_shr:2", "row_shr:4", "row_shr:8"):
        for e in range(2): a(f"v_add_f32_dpp v{60+e}, v{60+e}, v{60+e} {sh} row_mask:0xf bank_mask:0xf bound_ctrl:0")
    for e in range(2): a(f"v_add_f32_dpp v{60+e}, v{60+e}, v{60+e} row_bcast:15 row_mask:0xa bank_mask:0xf")
    for e in range(2): a(f"v_add_f32_dpp v{60+e}, v{60+e}, v{60+e} row_bcast:31 row_mask:0xc bank_mask:0xf")
    a("v_cvt_pk_bf16_f32 v60, v60, v61\nv_and_b32 v61, 0xffff0000, v60\nv_lshlrev_b32 v60, 16, v60")
    a("v_mul_f32 v60, 0xbfb8aa3b, v60\nv_mul_f32 v61, 0xbfb8aa3b, v61\nv_exp_f32 v60, v60\nv_exp_f32 v61, v61")
    a("v_add_f32 v60, 1.0, v60\nv_add_f32 v61, 1.0, v61\nv_rcp_f32 v60, v60\nv_rcp_f32 v61, v61")
    a(f"s_lshl_b32 s4, s3, 3\ns_add_u32 s4, s4, {B_GL}\nv_mov_b32 v62, s4")
    a("v_cvt_pk_bf16_f32 v60, v60, v61\nv_and_b32 v61, 0xffff0000, v60\nv_lshlrev_b32 v60, 16, v60")
    a("s_mov_b32 exec_lo, 0\ns_mov_b32 exec_hi, 0x80000000\nds_write_b64 v62, v[60:61]\ns_mov_b64 exec, -1")
    a("v_readlane_b32 s40, v60, 63\nv_readlane_b32 s41, v61, 63")
    a("v_lshrrev_b32 v12, 1, v1\nv_and_b32 v13, 1, v1\nv_lshlrev_b32 v13, 4, v13\nv_lshl_add_u32 v104, v12, 16, v13\nv_lshl_add_u32 v12, v12, 13, v13")
    a(f"s_lshl_b32 s4, s3, 19\ns_lshl_b32 s5, s60, 10\ns_add_u32 s4, s4, s5\ns_lshl_b32 s5, s61, 5\ns_add_u32 s22, s4, s5\ns_add_u32 s23, s22, {32*8192}")
    a(f"s_lshl_b32 s63, s60, 5\ns_add_u32 s63, s63, s61\ns_lshl_b32 s63, s63, 13\ns_add_u32 s63, s63, {Y1_OFF}\ns_add_u32 s62, s63, s24")
    a(f"v_add_u32 v13, s24, v2\nv_lshl_add_u32 v7, v4, 6, v10\ns_lshl_b32 s4, s3, 3\nv_lshl_add_u32 v110, v7, 5, s4\nv_add_u32 v111, {B_XB}, v110")
    a(f"s_lshl_b32 s4, s3, 2\ns_add_u32 s4, s4, {B_WB}\nv_lshl_add_u32 v109, v7, 4, s4")
    a("s_mov_b32 s7, 0\ns_lshr_b32 s42, s40, 16\ns_lshr_b32 s43, s41, 16")
    a("s_waitcnt vmcnt(0) lgkmcnt(0)")
    sn(a, "B", "drain")
    a("s_barrier")
    a("s_cmp_lg_u32 s3, 0\ns_cbranch_scc1 B_S1")
    signal(a, 0)
    a("B_S1:")
    if cfg.wby:
        a("s_mov_b32 s32, s48\ns_mov_b32 s33, s49\ns_mov_b32 s36, s50\ns_mov_b32 s37, s51")
        srd_pre(a, 32, 2048 * 514); srd_pre(a, 36, 2048 * 514)
        a("s_lshl_b32 s26, s3, 9\ns_add_u32 s26, s26, s60\ns_mul_i32 s26, s26, 514\ns_lshl_b32 s27, s61, 4\ns_add_u32 s26, s26, s27\nv_mul_u32_u24 v14, 4112, v1")
        a(f"s_lshl_b32 s27, s3, 10\ns_add_u32 s27, s27, {B_WB}\ns_mov_b32 m0, s27")
    if cfg.wby == 1:
        a("s_nop 0\nbuffer_load_dwordx4 v14, s[32:35], s26 offen lds\ns_add_u32 m0, s27, 4096\ns_nop 0\nbuffer_load_dwordx4 v14, s[36:39], s26 offen lds")
    if cfg.wby == 2:
        a("buffer_load_dwordx2 v[24:25], v14, s[32:35], s26 offen\nbuffer_load_dwordx2 v[26:27], v14, s[32:35], s26 offen offset:8")
        a("buffer_load_dwordx2 v[28:29], v14, s[36:39], s26 offen\nbuffer_load_dwordx2 v[30:31], v14, s[36:39], s26 offen offset:8\nv_add_u32 v14, s27, v2")
    table_base(a, 20, "P2_TAB")
    for i in range(4): a(f"global_load_dwordx4 {q(112+4*i)}, v2, s[20:21] offset:{1024*i-3072}")
    if cfg.wby == 2: a("s_waitcnt vmcnt(6)\nds_write_b128 v14, v[24:27]\ns_waitcnt vmcnt(4)\nds_write_b128 v14, v[28:31] offset:4096")
    if cfg.wby: a("s_waitcnt vmcnt(0)"); sn(a, "B", "wgot")
    if not cfg.hpoll:
        a("s_cmp_lg_u32 s3, 0\ns_cbranch_scc1 B_S3")
        poll(a, [0], cfg.bfirst)
    a("B_S3:\ns_barrier")
    sn(a, "B", "p0pass")
    a("buffer_load_dwordx4 v[16:19], v12, s[12:15], s22 offen sc1\nbuffer_load_dwordx4 v[20:23], v12, s[12:15], s23 offen sc1")
    a(f"s_waitcnt vmcnt(1)\nds_write_b128 v13, v[16:19] offset:{B_XB}\ns_waitcnt vmcnt(0)\nds_write_b128 v13, v[20:23] offset:{B_XB+1024}")
    a("s_waitcnt lgkmcnt(0)")
    sn(a, "B", "xstaged")
    a("s_barrier")
    if cfg.prio: a("s_setprio 2")
    for j, r in enumerate((72, 76, 74, 78)): a(f"ds_read_b64 {p(r)}, v111 offset:{512*j}")
    for arr in range(2):
        for r in (0, 2): a(f"ds_read2st64_b32 {p(80+4*arr+r)}, v109 offset0:{16*arr+r} offset1:{16*arr+r+1}")
    a("s_waitcnt lgkmcnt(4)\nB_FFT:\nv_swap_b32 v73, v76\nv_swap_b32 v75, v78")
    col = (72, 76); D = ((16, 20), (24, 28)); T = ((32, 36), (40, 44))
    for c in range(2): a(f"{MF32} {q(D[c][0])}, {q(col[c])}, {q(FRE)}, 0\n{MF32} {q(D[c][1])}, {q(col[c])}, {q(FIM)}, 0")
    a("s_waitcnt lgkmcnt(0)")
    for r in range(4): a(f"v_lshlrev_b32 v{48+r}, 16, v{80+r}\nv_lshlrev_b32 v{52+r}, 16, v{84+r}")
    for c in range(2):
        twiddle(a, D[c][0], D[c][1], TC, TS, T[c][0], T[c][1], packed=False)
        for r in range(4): a(f"v_cvt_pk_bf16_f32 v{col[c]+r}, v{T[c][0]+r}, v{T[c][1]+r}")
        a(f"{MF32} {q(D[c][0])}, {q(FRE)}, {q(col[c])}, 0\n{MF32} {q(D[c][1])}, {q(FIM)}, {q(col[c])}, 0")
    for r in range(4): a(f"v_and_b32 v{56+r}, 0xffff0000, v{80+r}\nv_and_b32 v{60+r}, 0xffff0000, v{84+r}")
    for c in range(2):
        twiddle(a, D[c][0], D[c][1], 48 + 8*c, 52 + 8*c, T[c][0], T[c][1], conj=True, packed=False)
        for r in range(4): a(f"v_cvt_pk_bf16_f32 v{col[c]+r}, v{T[c][1]+r}, v{T[c][0]+r}")
        a(f"{MF32} {q(D[c][0])}, {q(col[c])}, {q(FRE)}, 0\n{MF32} {q(D[c][1])}, {q(col[c])}, {q(FIM)}, 0")
    for c in range(2):
        twiddle(a, D[c][0], D[c][1], TC, TS, T[c][0], T[c][1], packed=False)
        for r in range(4): a(f"v_cvt_pk_bf16_f32 v{col[c]+r}, v{T[c][0]+r}, v{T[c][1]+r}")
        a(f"{MF32} {q(D[c][0])}, {q(FRE)}, {q(col[c])}, 0\n{MF32} {q(D[c][1])}, {q(FIM)}, {q(col[c])}, 0")
    for c in range(2):
        for r in range(4): a(f"v_cvt_pk_bf16_f32 v{48+2*r+c}, v{D[c][1]+r}, v{D[c][0]+r}")
    sn(a, "B", "fftdone")
    a("s_cmp_lg_u32 s7, 0\ns_cbranch_scc1 A_NYS")
    for r in range(4): a(f"ds_write_b64 v111, {p(48+2*r)} offset:{512*r}")
    a("s_waitcnt lgkmcnt(0)\ns_barrier")
    a(f"ds_read_b128 v[64:67], v13 offset:{B_XB}\nds_read_b128 v[68:71], v13 offset:{B_XB+1024}")
    a("s_waitcnt lgkmcnt(1)\nbuffer_store_dwordx4 v[64:67], v2, s[12:15], s62 offen sc1")
    a("s_waitcnt lgkmcnt(0)\nbuffer_store_dwordx4 v[68:71], v2, s[12:15], s62 offen offset:1024 sc1")
    table_base(a, 20, "P3_TAB")
    for i in range(8): a(f"global_load_dwordx4 {q(16+4*i)}, v2, s[20:21] offset:{1024*i-4096}")
    a(f"v_bfe_u32 v3, v1, 1, 3\nv_lshlrev_b32 v15, 2, v3\nds_read_b32 v14, v15 offset:{B_GL}")
    srd_pre(a, 8, 2097152)
    a("v_lshl_add_u32 v5, v3, 8, s52\nv_mul_u32_u24 v6, v4, v5\nv_and_b32 v7, 1, v1\nv_lshlrev_b32 v7, 8, v7\nv_sub_u32 v6, v7, v6\nv_lshlrev_b32 v6, 1, v6\nv_sub_u32 v5, v6, v5")
    a("v_cvt_f32_i32 v6, v6\nv_cvt_f32_i32 v5, v5\nv_mul_f32 v6, 0x3a000000, v6\nv_mul_f32 v5, 0x3a000000, v5")
    a("v_cos_f32 v7, v6\nv_sin_f32 v6, v6\nv_cos_f32 v8, v5\nv_sin_f32 v5, v5")
    a(f"s_mul_i32 s26, s3, {B_PS}\ns_add_u32 s26, s26, {B_YB}")
    a("v_cmp_eq_u32 vcc, 0, v10\nv_lshl_add_u32 v9, v103, 2, s26\nv_add_u32 v50, 1280, v9\nv_cndmask_b32 v92, 0, -1, vcc\nv_add_u32 v105, s26, v2")
    a("v_lshlrev_b32 v106, 3, v4\ns_lshl_b32 s39, s3, 4")
    a(f"v_mul_u32_u24 v15, {B_PS}, v4\nv_lshl_add_u32 v15, v10, 2, v15\nv_add_u32 v15, {B_YB}, v15\ns_lshl_b32 s31, s3, 6\nv_add_u32 v11, s31, v15")
    a(f"v_lshl_add_u32 v107, v4, 5, v10\nv_lshlrev_b32 v107, 5, v107\ns_lshl_b32 s31, s3, 3\ns_add_u32 s31, s31, {B_AB}\nv_add_u32 v107, s31, v107")
    a("v_lshlrev_b32 v108, 5, v10\nv_lshl_add_u32 v108, v4, 3, v108")
    a("s_lshl_b32 s34, s52, 10\ns_lshl_b32 s35, s3, 19\ns_add_u32 s34, s34, s35\ns_add_u32 s35, s34, 0x40000")
    a(f"s_lshl_b32 s24, s3, 19\ns_add_u32 s24, s24, s53\ns_add_u32 s24, s24, {Y1_OFF}\ns_add_u32 s25, s24, {32*8192}\ns_add_u32 s38, s53, {YN_OFF}")
    a(f"s_and_b32 s27, s3, 1\ns_lshl_b32 s27, s27, 2\ns_lshr_b32 s28, s3, 1\ns_add_u32 s27, s27, s28\ns_lshl_b32 s27, s27, 13\ns_add_u32 s27, s27, s53\ns_add_u32 s27, s27, {AT_OFF}\ns_add_u32 s28, s27, 16384")
    a("s_waitcnt lgkmcnt(0)")
    a("v_sub_f32 v14, 1.0, v14\nv_cvt_pk_bf16_f32 v14, v14, v14\nv_and_b32 v14, 0xffff0000, v14")
    a("v_mul_f32 v7, v14, v7\nv_mul_f32 v6, v14, v6\nv_mul_f32 v8, v14, v8\nv_mul_f32 v5, v14, v5")
    a("v_cvt_pk_bf16_f32 v48, v7, v6\nv_cvt_pk_bf16_f32 v49, v8, v5")
    if cfg.ywait: a("s_waitcnt vmcnt(0)")
    sn(a, "B", "ydrain")
    a("s_barrier")
    gather(a, ["buffer_load_dwordx4 v[64:67], v12, s[12:15], s24 offen sc1", "buffer_load_dwordx4 v[68:71], v12, s[12:15], s25 offen sc1"], [64, 68])
    a("ds_write_b128 v105, v[64:67]\nds_write_b128 v105, v[68:71] offset:1280")
    a("s_waitcnt lgkmcnt(0)")
    sn(a, "B", "ystaged")
    a("s_barrier")
    al = ["buffer_load_dwordx4 v[112:115], v104, s[12:15], s27 offen sc1", "buffer_load_dwordx4 v[116:119], v104, s[12:15], s28 offen sc1",
          "buffer_load_dwordx2 v[120:121], v106, s[12:15], s38 offen sc1"]
    if cfg.aearly:
        for l in al: a(l)
    for t in range(4): a(f"ds_read2st64_b32 {p(52+2*t)}, v11 offset0:{t} offset1:{t+5}")
    for t in range(4):
        a(f"s_waitcnt lgkmcnt({3-t})\n{MF16} {q(60+4*t)}, {p(48)}, {p(52+2*t)}, 0")
    for t in range(4):
        a(f"v_cvt_pk_bf16_f32 v{52+2*t}, v{60+4*t}, v{61+4*t}\nv_cvt_pk_bf16_f32 v{53+2*t}, v{62+4*t}, v{63+4*t}")
        a(f"ds_write2st64_b32 v11, v{52+2*t}, v{53+2*t} offset0:{t} offset1:{t+5}")
    a("s_waitcnt lgkmcnt(0)\ns_barrier")
    for e, ad in ((0, 9), (1, 50)):
        a(f"ds_read2_b32 {p(52+8*e)}, v{ad} offset1:32\nds_read2_b32 {p(54+8*e)}, v{ad} offset0:64 offset1:96")
    for e in range(2):
        A, Am = 52 + 8*e, 56 + 8*e
        re, im = 68 + 8*e, 72 + 8*e
        a(f"s_waitcnt lgkmcnt({2-2*e})")
        for r in range(4): a(f"v_and_b32 v{Am+r}, v92, v{A+r}")
        a(f"{MF32} {q(re)}, {q(A)}, {q(16)}, 0\n{MF32} {q(im)}, {q(A)}, {q(20)}, 0")
        a(f"{MF32} {q(re)}, {q(Am)}, {q(24)}, {q(re)}\n{MF32} {q(im)}, {q(Am)}, {q(28)}, {q(im)}")
    for e in range(2):
        re, im = 68 + 8*e, 72 + 8*e
        twiddle(a, re, im, 32, 36, 84, 88, conj=True, packed=False)
        for r in range(4): a(f"v_cvt_pk_bf16_f32 v{52+4*e+r}, v{84+r}, v{88+r}")
        a(f"{MF32} {q(re)}, {q(52+4*e)}, {q(40)}, 0\n{MF32} {q(im)}, {q(52+4*e)}, {q(44)}, 0")
    sn(a, "B", "bdone")
    gather(a, al, [112, 116, 120], issued=cfg.aearly)
    sn(a, "B", "agot")
    a(f"ds_write_b128 v13, v[112:115] offset:{B_AB}\nds_write_b128 v13, v[116:119] offset:{B_AB+1024}")
    a(f"{MF16} {q(28)}, {p(48)}, {p(120)}, 0")
    a("v_mul_f32 v28, 0x35800000, v28\nv_mul_f32 v30, 0x35800000, v30\nv_readlane_b32 s44, v28, s39\nv_readlane_b32 s45, v30, s39")
    for e in range(2):
        for hb in range(2):
            D_ = 68 + 8*e + 4*hb
            a(f"v_add_f32 v{D_}, s{44+e}, v{D_}\nv_subrev_f32 v{D_+1}, s{44+e}, v{D_+1}\nv_add_f32 v{D_+2}, s{44+e}, v{D_+2}\nv_subrev_f32 v{D_+3}, s{44+e}, v{D_+3}")
    a("s_waitcnt lgkmcnt(0)\ns_barrier")
    for i, (hb, e2) in enumerate(((0,0),(0,1),(1,0),(1,1))): a(f"ds_read_b64 {p(96+2*i)}, v107 offset:{4096*e2+512*hb}")
    osc = " sc1" if cfg.outsc == 1 else (" nt" if cfg.outsc == 2 else "")
    for hb in range(2):
        a(f"s_waitcnt lgkmcnt({2-2*hb})")
        for e in range(2):
            D_ = 68 + 8*e + 4*hb
            for e2 in range(2):
                av = 96 + 2*(2*hb + e2) + e
                a(f"v_dot2_f32_bf16 v{D_+2*e2}, v{av}, s{42+e}, v{D_+2*e2}\nv_dot2_f32_bf16 v{D_+2*e2+1}, v{av}, s{40+e}, v{D_+2*e2+1}")
        for e in range(2):
            D_ = 68 + 8*e + 4*hb; o = 60 + 4*e + 2*hb
            a(f"v_cvt_pk_bf16_f32 v{o}, v{D_}, v{D_+1}\nv_cvt_pk_bf16_f32 v{o+1}, v{D_+2}, v{D_+3}")
            a(f"buffer_store_dwordx2 {p(o)}, v108, s[8:11], s{34+e} offen offset:{512*hb}{osc}")
    a("s_or_b32 s4, s2, s3\ns_cmp_lg_u32 s4, 0\ns_cbranch_scc1 L_END0")
    a(f"s_mov_b64 exec, 1\nv_mov_b32 v60, 0\nv_mov_b32 v61, s96\ns_mov_b32 s4, {EP_OFF}\nbuffer_store_dword v61, v60, s[12:15], s4 offen sc1")
    a("L_END0:")
    sn(a, "B", "end")
    evend(a, "B")
    if cfg.padk >= 0: end(a, 0)
    a("L_END:")
    end(a, 0, pad=False)
    a("A_IN:")
    a("s_cmpk_ge_u32 s2, 512\ns_cbranch_scc1 L_EXIT")
    a("s_sub_u32 s58, s2, 256\ns_and_b32 s27, s3, 1\ns_bfe_u32 s26, s3, 0x10001\ns_lshl_b32 s28, s58, 9\ns_lshl_b32 s29, s26, 8\ns_add_u32 s28, s28, s29\ns_lshl_b32 s29, s27, 7\ns_add_u32 s28, s28, s29")
    a("v_lshl_add_u32 v5, v1, 1, s28\ns_lshl_b32 s29, s58, 2\ns_lshl_b32 s52, s26, 4\ns_sub_u32 s52, 16, s52\nv_mov_b32 v13, 0x3fb8aa3b")
    table_base(a, 20, "P2_TAB")
    a(f"s_mov_b32 s4, {EP_OFF}\ns_lshl_b32 s54, s27, 8\ns_cmp_ge_u32 s3, 4")
    a("s_waitcnt lgkmcnt(0)")
    sn(a, "A", "karg")
    a("s_load_dword s30, s[44:45], s29\ns_load_dword s31, s[46:47], s29\ns_load_dword s96, s[12:13], s4")
    a("global_load_ushort v11, v5, s[32:33]\nglobal_load_ushort v12, v5, s[34:35]")
    a("s_cbranch_scc0 A_P")
    for i in range(2, 6): a(f"global_load_ushort v{16+i}, v5, s[{32+2*i}:{33+2*i}]")
    a("A_P:")
    a("v_and_b32 v3, 0xff, v0\nv_lshlrev_b32 v6, 5, v3")
    a(f"s_lshr_b32 s24, s3, 2\ns_mul_i32 s25, s24, {A_KSS}\ns_add_u32 s25, s25, {A_KS}\nv_lshl_add_u32 v126, v3, 4, s25")
    a(f"s_mul_i32 s23, s24, {K_CH}\ns_add_u32 s23, s23, {A_KB + 64}\nv_lshl_add_u32 v127, v3, 4, s23")
    a("s_and_b32 s23, s3, 3\ns_cmp_ge_u32 s23, 1\ns_cselect_b64 s[56:57], -1, 0\ns_cmp_ge_u32 s23, 2\ns_cselect_b64 s[62:63], -1, 0")
    a("v_mov_b32 v104, 0\nv_mov_b32 v105, 0\nv_mov_b32 v7, s25\nds_write_b64 v7, v[104:105] offset:8")
    a(f"s_mul_i32 s22, s27, {U_P1}\ns_mul_i32 s23, s26, {U_P2}\ns_mul_i32 s25, s24, {U_CH}\ns_add_u32 s22, s22, s23\ns_add_u32 s22, s22, s25\ns_add_u32 s22, s22, {A_UB}")
    a(f"v_lshl_add_u32 v7, v1, 2, s22\nds_write_b32 v7, v104\ns_mul_i32 s23, s3, {K_CS}\nv_lshl_add_u32 v113, v10, 2, s23")
    a("s_waitcnt lgkmcnt(0)")
    a("s_lshl_b32 s30, s30, s52\ns_and_b32 s30, s30, 0xffff0000\nv_mul_f32 v14, s30, v13\nv_exp_f32 v14, v14\ns_add_u32 s96, s96, 1")
    a("v_cvt_pk_bf16_f32 v14, v14, v14\nv_and_b32 v14, 0xffff0000, v14\nv_mul_f32 v13, v14, v13\nv_mul_f32 v15, 0.15915494, v14")
    a("s_cmp_ge_u32 s3, 4\ns_cbranch_scc1 A_B")
    a("v_lshrrev_b32 v22, 3, v1\nv_and_b32 v7, 7, v1\nv_lshlrev_b32 v8, 15, v22\nv_lshl_add_u32 v8, v7, 4, v8")
    a(f"s_lshl_b32 s28, s58, 7\ns_lshl_b32 s29, s3, 19\ns_add_u32 s28, s28, s29\ns_add_u32 s28, s28, {UT_OFF}\ns_add_u32 s29, s28, 0x40000")
    a(f"v_and_b32 v9, 1, v7\nv_mul_u32_u24 v9, {U_P2}, v9\nv_bfe_u32 v19, v7, 1, 1\nv_mul_u32_u24 v19, {U_P1}, v19\nv_lshrrev_b32 v7, 2, v7\nv_mul_u32_u24 v7, {U_CH}, v7")
    a(f"v_add3_u32 v9, v9, v19, v7\ns_lshl_b32 s22, s3, 8\ns_add_u32 s22, s22, {A_UB + 256}\nv_lshl_add_u32 v22, v22, 4, s22\nv_add_u32 v119, v22, v9")
    a(f"s_mul_i32 s22, s26, {K_CH}\ns_lshl_b32 s59, s27, 5\ns_add_u32 s22, s22, s59\ns_add_u32 s22, s22, {A_KB + 56}")
    a(f"v_bfe_u32 v18, v1, 2, 2\nv_mul_u32_u24 v18, {K_CS}, v18\nv_and_b32 v17, 3, v1\nv_lshl_add_u32 v18, v17, 3, v18\nv_and_b32 v17, 16, v1\nv_lshlrev_b32 v17, 1, v17\nv_sub_u32 v18, v18, v17\nv_and_b32 v17, 32, v1\nv_lshrrev_b32 v17, 1, v17\nv_sub_u32 v18, v18, v17\nv_add_u32 v112, s22, v18")
    a(f"s_mul_i32 s22, s26, {U_CH}\ns_add_u32 s22, s22, {A_UB}\nv_and_b32 v18, 1, v4\nv_mul_u32_u24 v18, {U_P1}, v18\nv_lshrrev_b32 v17, 5, v1\nv_mul_u32_u24 v17, {U_P2}, v17")
    a("v_lshl_add_u32 v18, v10, 4, v18\nv_add3_u32 v117, v18, v17, s22")
    a(f"s_mul_i32 s22, s26, {E_CH}\ns_add_u32 s22, s22, s59\ns_add_u32 s22, s22, {A_KS}")
    a("v_mul_u32_u24 v18, 72, v10\nv_lshl_add_u32 v18, v4, 3, v18\nv_add_u32 v116, s22, v18")
    a(f"v_and_b32 v20, 62, v0\nv_and_b32 v21, 1, v0\ns_mul_i32 s22, s3, 72\ns_add_u32 s22, s22, {A_KS}")
    a(f"v_mul_u32_u24 v21, {2304+64}, v21\nv_add3_u32 v118, v21, v20, s22\ns_mov_b32 s59, 0x05040100")
    ACC = 80
    a(f"s_mul_i32 s53, s26, {A_TAS}\ns_add_u32 m0, s53, s54")
    a(f"v_lshl_add_u32 v16, s27, 4, v10\nv_mul_u32_u24 v16, {RS}, v16\nv_lshl_add_u32 v16, v4, 4, v16\nv_add_u32 v46, s53, v16")
    a(f"s_mul_i32 s53, s26, {A_TBS}\ns_add_u32 s53, s53, {A_TB}\nv_mul_u32_u24 v16, {RS}, v10\nv_lshl_add_u32 v16, v4, 4, v16\nv_add_u32 v47, s53, v16")
    a("s_lshl_b32 s31, s31, s52\ns_and_b32 s31, s31, 0xffff0000\ns_cmp_eq_u32 s27, 0\ns_cselect_b32 s31, s31, 0")
    a("v_cmp_eq_u32 vcc, 0, v1\nv_mov_b32 v16, s31\nv_mov_b32 v20, 1.0\nv_mov_b32 v21, 0\nv_cndmask_b32 v45, 0, v16, vcc")
    a("s_waitcnt vmcnt(0)")
    sn(a, "A", "params")
    a("global_load_dwordx4 v[120:123], v6, s[20:21] offset:1024\nglobal_load_dwordx2 v[124:125], v6, s[20:21] offset:1040")
    a("global_load_dwordx2 v[114:115], v2, s[20:21] offset:-4096")
    a("v_lshlrev_b32 v11, 16, v11\nv_lshlrev_b32 v12, 16, v12\nv_mul_f32 v11, v13, v11\nv_mul_f32 v12, v15, v12")
    zpow(a, [(22, "0x41000000", 30), (28, "0x42000000", 32)], 11, 12)
    cmul_seq(a, [(24, 22, 22, 30)]); cmul_seq(a, [(26, 24, 22, 30)])
    for it in range(8):
        for c in range(4): a(f"v_cvt_pk_bf16_f32 v{16+c}, v{20+2*c}, v{21+2*c}")
        for c in range(4):
            if it < 7: pk1(a, 20+2*c, 28, 30+2*c)
            a(f"ds_write_addtid_b32 v{16+c} offset:{RS*(4*it+c)}")
        if it < 7:
            for c in range(4): pk2(a, 20+2*c, 20+2*c, 28, 30+2*c)
    sn(a, "A", "tabiss")
    a(f"s_mul_i32 s31, s26, {A_KSS}\ns_add_u32 s31, s31, s54\ns_add_u32 s31, s31, {A_KS + 16}\nv_lshl_add_u32 v16, v4, 6, s31")
    a("s_waitcnt vmcnt(0)\nv_add_u32 v114, v114, v16\nv_add_u32 v115, v115, v16")
    a("s_waitcnt lgkmcnt(0)")
    sn(a, "A", "tables")
    a("s_barrier")
    def rd(ks):
        b = 48 + 12 * (ks % 4)
        a(f"ds_read_b128 {q(b)}, v46 offset:{64*ks}\nds_read_b128 {q(b+4)}, v47 offset:{64*ks}\nds_read_b128 {q(b+8)}, v47 offset:{64*ks + 16*RS}")
    for ks in range(4): rd(ks)
    for ks in range(8):
        b = 48 + 12 * (ks % 4)
        a(f"s_waitcnt lgkmcnt({3 * (min(ks + 3, 7) - ks)})")
        c0 = "0" if ks == 0 else q(16); c1 = "0" if ks == 0 else q(20)
        a(f"{MF32} {q(16)}, {q(b)}, {q(b+4)}, {c0}\n{MF32} {q(20)}, {q(b)}, {q(b+8)}, {c1}")
        if ks + 4 < 8: rd(ks + 4)
    a("v_add_f32 v16, v45, v16")
    for i in range(4): a(f"v_cvt_pk_bf16_f32 v{24+i}, v{16+2*i}, v{17+2*i}")
    for nt in range(2):
        for h in range(2):
            a(f"ds_write_b16 v{114+nt}, v{24+2*nt+h} offset:{32*h}\nds_write_b16_d16_hi v{114+nt}, v{24+2*nt+h} offset:{32*h+16}")
    def expand():
        a("s_waitcnt lgkmcnt(0)")
        sn(a, "A", "staged")
        a("s_barrier")
        a("ds_read_b128 v[16:19], v126 offset:16\nds_read_b64 v[20:21], v126 offset:8\nds_read_b32 v22, v126 offset:32\nds_write_b32 v113, v104")
        a("s_waitcnt lgkmcnt(3)")
        a("v_cndmask_b32 v17, v17, v16, s[56:57]\nv_cndmask_b32 v18, v18, v16, s[62:63]")
        a("v_perm_b32 v24, v16, v16, v122\nv_perm_b32 v25, v18, v17, v123")
        a("s_waitcnt lgkmcnt(1)")
        a("v_perm_b32 v26, v22, v18, v124\nv_perm_b32 v27, v22, v19, v125\nv_perm_b32 v28, v16, v21, v121\nv_perm_b32 v23, v16, v20, v120")
        a("ds_write_b128 v127, v[24:27]")
        a("v_mov_b32 v29, v24\nv_mov_b32 v30, v25\nv_mov_b32 v31, v26")
        a(f"ds_write_b128 v127, v[28:31] offset:{2*K_CS}")
        a("v_alignbit_b32 v32, v24, v28, 16\nv_alignbit_b32 v33, v25, v24, 16\nv_alignbit_b32 v34, v26, v25, 16\nv_alignbit_b32 v35, v27, v26, 16")
        a(f"ds_write_b128 v127, v[32:35] offset:{K_CS}")
        a("v_alignbit_b32 v36, v28, v23, 16\nv_mov_b32 v37, v32\nv_mov_b32 v38, v33\nv_mov_b32 v39, v34")
        a(f"ds_write_b128 v127, v[36:39] offset:{3*K_CS}")
        a(f"s_lshl_b32 s53, s58, 13\ns_add_u32 s53, s53, {AT_OFF}\nv_lshlrev_b32 v126, 4, v0")
    expand()
    sn(a, "A", "expand")
    sn(a, "A", "pdrain")
    a("s_cmp_lg_u32 s3, 0\ns_cbranch_scc1 A_S1")
    poll(a, [3], cfg.afirst)
    a("A_S1:\ns_barrier")
    sn(a, "A", "p0pass")
    a("buffer_load_dwordx4 v[96:99], v8, s[12:15], s28 offen sc1\nbuffer_load_dwordx4 v[100:103], v8, s[12:15], s29 offen sc1")
    a("s_waitcnt vmcnt(1)\nds_write_b128 v119, v[96:99]\ns_waitcnt vmcnt(0)\nds_write_b128 v119, v[100:103] offset:128")
    a("s_waitcnt lgkmcnt(0)\ns_barrier")
    sn(a, "A", "ustaged")
    SET = (16, 48)
    def ldA(s, e, d, half):
        a(f"ds_read_b64_tr_b16 {p(SET[s] + 4*e + 2*half)}, v112 offset:{64*d + 1024*e + (8 if half == 0 else 0)}")
    def ldG(s, c, d): a(f"ds_read_b128 {q(SET[s]+16+4*c)}, v117 offset:{16*(16-d) + 256*c}")
    fresh = set(range(4))
    def mm(s, e, cb):
        c = "0" if cb in fresh else q(ACC+4*cb); fresh.discard(cb)
        a(f"{MF32} {q(ACC+4*cb)}, {q(SET[s]+4*e)}, {q(SET[s]+16+4*(cb-e))}, {c}")
    ldA(0,0,0,0); ldA(0,0,0,1)
    for c in range(4): ldG(0, c, 0)
    for e in range(1, 4): ldA(0,e,0,0); ldA(0,e,0,1)
    W = lambda n: a(f"s_waitcnt lgkmcnt({n})")
    for d in range(16):
        P, Q = d & 1, 1 - (d & 1)
        if d < 15:
            n = d + 1
            W(9 if d == 0 else 6); mm(P,0,0); ldA(Q,0,n,0)
            if d == 0: W(7)
            mm(P,0,1); ldA(Q,0,n,1); ldG(Q,0,n)
            mm(P,0,2); ldG(Q,1,n)
            mm(P,0,3); ldG(Q,2,n)
            W(7); mm(P,1,1); ldG(Q,3,n)
            mm(P,1,2); ldA(Q,1,n,0); ldA(Q,1,n,1)
            mm(P,1,3); ldA(Q,2,n,0)
            mm(P,2,2); ldA(Q,2,n,1)
            mm(P,2,3); ldA(Q,3,n,0)
            W(11); mm(P,3,3); ldA(Q,3,n,1)
        else:
            W(6); mm(P,0,0); mm(P,0,1); mm(P,0,2); mm(P,0,3); W(2); mm(P,1,1); mm(P,1,2); mm(P,1,3)
            mm(P,2,2); mm(P,2,3); W(0); mm(P,3,3)
    sn(a, "A", "convend")
    a("s_add_u32 s55, s53, 4096")
    for cb in range(4):
        a(f"v_cvt_pk_bf16_f32 v{96+2*cb}, v{ACC+4*cb}, v{ACC+4*cb+1}\nv_cvt_pk_bf16_f32 v{97+2*cb}, v{ACC+4*cb+2}, v{ACC+4*cb+3}")
        a(f"ds_write_b64 v116, {p(96+2*cb)} offset:{1152*cb + (64 if cb >= 2 else 0)}")
    a("s_waitcnt lgkmcnt(0)\ns_barrier")
    for j in range(2):
        for i in range(4): a(f"ds_read_u16 v{16+8*j+i}, v118 offset:{288*j + 576*i}\nds_read_u16 v{20+8*j+i}, v118 offset:{288*j + 576*i + E_CH}")
        if j == 0: a("s_waitcnt lgkmcnt(7)")
    for j in range(2):
        for i in range(4): a(f"s_waitcnt lgkmcnt({8*(1-j) + 6-2*i})\nv_perm_b32 v{32+4*j+i}, v{20+8*j+i}, v{16+8*j+i}, s59")
        a(f"buffer_store_dwordx4 {q(32+4*j)}, v126, s[12:15], s{53 + 2*j} offen sc1")
    sn(a, "A", "end")
    evend(a, "A")
    end(a, 0, pad=False)
    a("A_B:")
    a(f"s_cmp_lg_u32 s58, 0\ns_cbranch_scc1 A_B1\ns_lshl_b32 s22, s3, 11\ns_add_u32 s22, s22, {YN_OFF - 8192}")
    for i in range(4): a(f"v_mov_b32 v{40+i}, -1")
    a("buffer_store_dwordx4 v[40:43], v2, s[12:15], s22 offen sc1\nbuffer_store_dwordx4 v[40:43], v2, s[12:15], s22 offen offset:1024 sc1\nA_B1:")
    a("s_and_b32 s22, s58, 7\ns_lshl_b32 s22, s22, 5\ns_lshr_b32 s23, s58, 3\ns_add_u32 s22, s22, s23\nv_and_b32 v7, 7, v1\nv_lshl_add_u32 v7, s22, 3, v7\nv_mul_u32_u24 v8, 514, v7\nv_lshlrev_b32 v102, 1, v7")
    a(f"s_mul_i32 s53, s26, {A_TBS}\ns_add_u32 s53, s53, s54\ns_add_u32 m0, s53, {A_TB}")
    a("s_waitcnt vmcnt(0)")
    sn(a, "A", "params")
    a("s_cmp_lg_u32 s3, 5\ns_cbranch_scc1 A_B2")
    a("global_load_ushort v100, v8, s[48:49] offset:512\nglobal_load_ushort v101, v8, s[50:51] offset:512\nA_B2:")
    a("global_load_dwordx4 v[120:123], v6, s[20:21] offset:1024\nglobal_load_dwordx2 v[124:125], v6, s[20:21] offset:1040")
    a("v_lshlrev_b32 v11, 16, v11\nv_lshlrev_b32 v12, 16, v12")
    for i in range(2, 6): a(f"v_lshlrev_b32 v{16+i}, 16, v{16+i}")
    a("v_mul_f32 v11, v13, v11\nv_mul_f32 v12, v15, v12")
    a(f"v_pk_mul_f32 {p(18)}, {p(18)}, {p(14)} op_sel_hi:[1,0]")
    zpow(a, [(22, None, 30), (24, "0x43800000", 32)], 11, 12)
    Z1, Z256, Z2, Z4, C0 = 22, 24, 26, 28, 34
    cmul_seq(a, [(C0, 20, 18, 30), (Z2, Z1, Z1, 32)])
    wr = [0]
    def put(row, src):
        t = 60 + (wr[0] % 4); wr[0] += 1
        a(f"v_cvt_pk_bf16_f32 v{t}, v{src}, -v{src+1}\nds_write_addtid_b32 v{t} offset:{RS*row}")
    cmul_seq(a, [(38, C0, Z1, 30), (40, C0, Z256, 32), (36, C0, Z2, 44), (Z4, Z2, Z2, 46)])
    put(0, C0); put(1, 38); put(8, 40); put(2, 36)
    cmul_seq(a, [(42, 40, Z2, 30), (48, 40, Z4, 32), (40, 40, Z256, 44), (38, 38, Z2, 46), (36, 36, Z2, 50)])
    put(9, 42); put(10, 48); put(12, 40); put(3, 38); put(4, 36)
    cmul_seq(a, [(42, 48, Z2, 30), (48, 40, Z4, 32), (40, 40, Z256, 44), (38, 38, Z2, 46), (36, 36, Z2, 50)])
    put(11, 42); put(13, 48); put(14, 40); put(5, 38); put(6, 36)
    cmul_seq(a, [(48, 40, Z4, 32), (40, 40, Z256, 44), (38, 38, Z2, 46), (52, Z256, Z256, 50)])
    put(15, 48); put(16, 40); put(7, 38)
    cmul_seq(a, [(42, 40, Z256, 30), (48, 40, 52, 32)])
    put(17, 42); put(18, 48)
    cmul_seq(a, [(42, 42, 52, 30), (48, 48, 52, 32)])
    put(19, 42); put(20, 48)
    sn(a, "A", "tabiss")
    a("s_waitcnt vmcnt(0) lgkmcnt(0)")
    sn(a, "A", "tables")
    a("s_barrier")
    a("s_cmp_lg_u32 s3, 5\ns_cbranch_scc1 A_B3")
    a(f"s_mov_b64 exec, 0xff\ns_mov_b32 s4, {WN_OFF}\ns_mov_b32 s5, {WN_OFF + 4096}")
    a("buffer_store_short v100, v102, s[12:15], s4 offen sc1\nbuffer_store_short v101, v102, s[12:15], s5 offen sc1\ns_mov_b64 exec, -1\nA_B3:")
    expand()
    sn(a, "A", "expand")
    a("s_cmp_lg_u32 s3, 5\ns_cbranch_scc1 A_B4\ns_waitcnt vmcnt(0)")
    signal(a, 5)
    a("A_B4:")
    a("s_waitcnt lgkmcnt(0)\ns_cmp_eq_u32 s58, 0\ns_cselect_b32 s4, 8, 5\ns_cmp_ge_u32 s3, s4\ns_cbranch_scc1 L_END")
    a("s_barrier\ns_barrier\ns_cmp_lg_u32 s3, 4\ns_cbranch_scc1 A_S2")
    for i in range(4): a(f"v_mov_b32 v{40+i}, -1")
    a("s_add_u32 s55, s53, 4096")
    for i in range(8): a(f"buffer_store_dwordx4 v[40:43], v2, s[12:15], s{53 + 2*(i//4)} offen offset:{1024*(i%4)} sc1")
    a("s_waitcnt vmcnt(0)")
    sn(a, "A", "pdrain")
    signal(a, 2)
    a("s_cmp_lg_u32 s58, 0\ns_cbranch_scc1 L_END")
    a("A_S2:")
    for i in range(4): a(f"global_load_dwordx4 {q(112+4*i)}, v2, s[20:21] offset:{1024*i-3072}")
    a(f"s_sub_u32 s7, s3, 4\nv_lshl_add_u32 v7, v4, 6, v10\ns_lshl_b32 s4, s7, 3\nv_lshl_add_u32 v110, v7, 5, s4\ns_lshl_b32 s4, s7, 2\nv_lshl_add_u32 v109, v7, 4, s4")
    a(f"s_mov_b32 s23, {XN_OFF}\ns_mov_b32 s25, {WN_OFF}\ns_mov_b32 s28, {WN_OFF + 4096}\ns_mov_b32 s63, {YN_OFF}\ns_mov_b32 s7, 1")
    poll(a, [0, 5])
    for j, r in enumerate((72, 76, 74, 78)): a(f"buffer_load_dwordx2 {p(r)}, v110, s[12:15], s23 offen offset:{512*j} sc1")
    for r in range(4): a(f"buffer_load_dword v{80+r}, v109, s[12:15], s25 offen offset:{256*r} sc1\nbuffer_load_dword v{84+r}, v109, s[12:15], s28 offen offset:{256*r} sc1")
    if cfg.prio: a("s_setprio 2")
    a("s_waitcnt vmcnt(0)\ns_branch B_FFT")
    a("A_NYS:")
    for r in range(4): a(f"buffer_store_dwordx2 {p(48+2*r)}, v110, s[12:15], s63 offen offset:{512*r} sc1")
    a("s_branch L_END")
    a("B_PF:")
    a("s_cmp_ge_u32 s3, 6\ns_cbranch_scc1 L_EXIT")
    a(f"s_and_b32 s60, s2, 7\ns_lshr_b32 s61, s2, 3\ns_mov_b32 s4, {EP_OFF}\ns_cmp_eq_u32 s3, 5\ns_cbranch_scc1 B_H")
    srd_pre(a, 8, 2097152)
    a("s_lshr_b32 s53, s61, 2\ns_lshl_b32 s53, s53, 3\ns_add_u32 s30, s60, s53\ns_and_b32 s31, s61, 3")
    a("v_lshlrev_b32 v6, 4, v10\nv_lshlrev_b32 v5, 5, v4\nv_xor_b32 v6, v5, v6\nv_lshl_add_u32 v6, v4, 10, v6\nv_xor_b32 v5, 128, v6")
    a(f"s_lshl_b32 s54, s30, 15\ns_lshl_b32 s56, s31, 8\ns_add_u32 s55, s54, s56\ns_mov_b32 m0, {B_UX}")
    a("s_waitcnt lgkmcnt(0)")
    sn(a, "B", "karg")
    for e in range(8):
        a(f"buffer_load_dwordx4 v{5 if (e >> 1) & 1 else 6}, s[8:11], s55 offen lds")
        if e < 7: a(f"s_add_u32 m0, m0, 1024\ns_add_u32 s55, s55, 4096")
    a("s_load_dword s96, s[12:13], s4")
    a("v_bfe_u32 v7, v1, 2, 2\nv_and_b32 v8, 1, v4\nv_lshl_or_b32 v8, v8, 2, v7")
    a("v_lshl_add_u32 v7, v4, 3, v7\nv_lshlrev_b32 v7, 8, v7\nv_lshl_add_u32 v7, v8, 5, v7\nv_and_b32 v8, 3, v1\nv_lshl_add_u32 v48, v8, 3, v7")
    for cg in range(1, 8): a(f"v_xor_b32 v{48+cg}, {32*cg}, v48")
    a("v_lshlrev_b32 v5, 6, v10\nv_lshl_add_u32 v5, v4, 4, v5")
    a(f"s_lshl_b32 s55, s31, 13\ns_add_u32 s54, s54, s55\ns_add_u32 s54, s54, {UT_OFF}\ns_add_u32 s55, s54, 4096")
    a("s_waitcnt vmcnt(0) lgkmcnt(0)")
    sn(a, "B", "rows")
    for cg in range(8):
        a(f"ds_read_b64_tr_b16 {p(16+4*cg)}, v{48+cg} offset:{B_UX}\nds_read_b64_tr_b16 {p(18+4*cg)}, v{48+cg} offset:{B_UX+1024}")
        if cg == 6: a("s_waitcnt lgkmcnt(12)")
    for cg in range(8):
        a(f"s_waitcnt lgkmcnt({14-2*cg})\nbuffer_store_dwordx4 {q(16+4*cg)}, v5, s[12:15], s{54 + cg//4} offen offset:{1024*(cg%4)} sc1")
    a("s_add_u32 s96, s96, 1")
    sn(a, "B", "stores")
    a("s_barrier\ns_waitcnt vmcnt(0)")
    sn(a, "B", "drain")
    signal(a, 3)
    a("s_branch L_END")
    a("B_H:")
    table_base(a, 20, "L_CODE"); table_base(a, 24, "P1_TAB")
    a("s_lshl_b32 s26, s61, 10\nv_add_u32 v3, s26, v2")
    a("v_min_u32 v5, L_CEND-L_CODE-16, v3\nglobal_load_dwordx4 v[20:23], v5, s[20:21] offset:-4096")
    a("v_min_u32 v5, TAB_END-P1_TAB-16, v3\nglobal_load_dwordx4 v[24:27], v5, s[24:25] offset:-4096")
    a("s_waitcnt lgkmcnt(0)\ns_load_dword s96, s[12:13], s4")
    a("s_mov_b32 s32, s48\ns_mov_b32 s33, s49\ns_mov_b32 s36, s50\ns_mov_b32 s37, s51")
    srd_pre(a, 32, 2048 * 514); srd_pre(a, 36, 2048 * 514)
    if cfg.prefetch_w == 3:
        a("s_lshl_b32 s22, s61, 6\ns_add_u32 s22, s22, s60\ns_mul_i32 s22, s22, 514\nv_lshrrev_b32 v5, 3, v1\nv_mul_u32_u24 v5, 4112, v5\nv_and_b32 v6, 7, v1\nv_mul_u32_u24 v6, 73, v6\nv_add_u32 v5, v5, v6")
        a("buffer_load_ubyte v16, v5, s[32:35], s22 offen\nbuffer_load_ubyte v17, v5, s[36:39], s22 offen")
    if cfg.touch:
        a("v_and_b32 v5, 7, v1\nv_lshlrev_b32 v5, 21, v5\nbuffer_load_dword v28, v5, s[12:15], 0 offen sc1")
        a("s_load_dwordx2 s[8:9], s[0:1], 104\nv_mov_b32 v6, 0\nbuffer_load_ubyte v29, v6, s[32:35], 0 offen\nbuffer_load_ubyte v30, v6, s[36:39], 0 offen")
        a("s_waitcnt lgkmcnt(0)\nglobal_load_dword v31, v6, s[8:9]")
    for i in range(4): a(f"v_mov_b32 v{40+i}, -1")
    a(f"s_lshl_b32 s63, s60, 5\ns_add_u32 s63, s63, s61\ns_lshl_b32 s63, s63, 13\ns_add_u32 s62, s63, {Y1_OFF}\ns_add_u32 s63, s62, 4096")
    a(f"s_mul_i32 s26, s60, 514\ns_lshl_b32 s27, s61, 4\ns_add_u32 s26, s26, s27\nv_mul_u32_u24 v14, 4112, v1\ns_mov_b32 m0, {B_WB}")
    a("s_waitcnt lgkmcnt(0)\ns_add_u32 s96, s96, 1")
    if cfg.ypace: a("s_waitcnt vmcnt(0)")
    def ypoison():
        for i in range(8): a(f"buffer_store_dwordx4 v[40:43], v2, s[12:15], s{62 + i//4} offen offset:{1024*(i%4)} sc1")
    if not cfg.ylate: ypoison()
    if cfg.prefetch_w in (1, 2):
        a("s_lshl_b32 s22, s61, 6\ns_add_u32 s22, s22, s60\ns_mul_i32 s22, s22, 514\nv_lshrrev_b32 v5, 3, v1\nv_mul_u32_u24 v5, 4112, v5\nv_and_b32 v6, 7, v1\nv_mul_u32_u24 v6, 73, v6\nv_add_u32 v5, v5, v6")
        if cfg.prefetch_w == 2: a("s_barrier")
        a("buffer_load_ubyte v16, v5, s[32:35], s22 offen\nbuffer_load_ubyte v17, v5, s[36:39], s22 offen")
    if cfg.prefetch_w != 2: a("s_barrier")
    a("s_waitcnt vmcnt(0)")
    sn(a, "B", "poison")
    a("s_barrier")
    for w in range(0 if cfg.wby else 4):
        a(f"buffer_load_dwordx4 v14, s[32:35], s26 offen lds\ns_add_u32 m0, m0, 4096\ns_nop 0\nbuffer_load_dwordx4 v14, s[36:39], s26 offen lds")
        if w < 3: a(f"s_sub_u32 m0, m0, 3072\ns_add_u32 s26, s26, {512*514}")
    a("s_waitcnt vmcnt(0)")
    if not cfg.wby: sn(a, "B", "wgot")
    poll(a, [0], cfg.bfirst)
    sn(a, "B", "hp0")
    if cfg.ylate:
        a("s_barrier\ns_barrier")
        ypoison()
        a("s_waitcnt vmcnt(0)")
        signal(a, 1)
        a("s_barrier")
        poll(a, [1])
        sn(a, "B", "p1")
        a("s_barrier")
    else:
        a("s_barrier\ns_barrier\ns_barrier\ns_barrier")
    poll(a, [2])
    sn(a, "B", "p12")
    a("s_branch L_END")
    a("L_EXIT:\ns_endpgm")
    return a

def build(path):
    a = gen()
    _, t1, _ = G1.gen_p1(); _, t2, _ = G1.gen_p2(); T = p3_tables(nyq=False); t3 = table_text('P3_TAB', np.concatenate([T[k].reshape(-1) for k in ('Bre', 'Bim', 'dre', 'dim', 'Tc', 'Ts', 'F0', 'F1')]))
    body, n = a.finish()
    lab = NAME + "_kernel"
    print("instructions:", len(a.lines), "nops inserted:", n, "bytes:", a.nbytes, "lds:", LDS, file=sys.stderr)
    s = HEADER + f"; @launch grid=(512,1,1) block=(512,1,1) lds={LDS}\n" + '.amdgcn_target "amdgcn-amd-amdhsa--gfx950"\n.text\n'
    s += kernel_begin(lab) + "L_CODE:\n" + body + "L_CEND:\n" + '.section .rodata,"a"\n.p2align 6\n' + descriptor(lab, 128) + t1 + t2 + t3 + 'TAB_END:\n'
    open(path, "w").write(s)

if __name__ == "__main__":
    cfg.prio = 0; cfg.prefetch_w = 0
    for o in sys.argv[2:]:
        k, v = o.split("="); setattr(cfg, k, int(v) if v.lstrip("-").isdigit() else v)
    build(sys.argv[1])
```

```python
import sys, numpy as np
from asmgen import *
from tables import *
import gen as G1
from gen import cfg, srd_pre, st, st_begin, end, pad_begin, table_base, lane_base, twiddle, q, p, MF32, MF16, pk1, pk2, cmul_seq, zpow, expand_table
from gen import X1_OFF, XN_OFF, WN_OFF, YN_OFF, UT_OFF, Y1_OFF, AT_OFF

FL_OFF = 0x230000; FL_SET = 0x4000; FL_REP = 1280
EP_OFF = 0x250000
WS_USED = 0xB00000
RS = 544
cfg.psleep = 4
cfg.wsoff = 0
def wsadj(a):
    if cfg.wsoff: a(f"s_add_u32 s12, s12, {cfg.wsoff << 20}\ns_addc_u32 s13, s13, 0")
cfg.gsleep = 1
cfg.afirst = 0
cfg.bfirst = 0
cfg.nrep = 8
cfg.hpoll = 1
cfg.ywait = 1
cfg.aearly = 1
cfg.ypace = 0
cfg.ylate = 1
cfg.touch = 1
cfg.outsc = 1

B_EX = 8192; B_EXS = 2064; B_UX = B_EX + 4 * B_EXS; B_GW = B_UX + 8192; B_WB = B_GW + 1024; B_GL = B_WB + 8192
B_XB = B_GL + 64; B_YB = B_XB + 8192; B_PS = 2624; B_AB = B_YB + 4 * B_PS
A_TAS = 32 * RS; A_TB = 2 * A_TAS; A_TBS = 21 * RS
A_KS = A_TB + 2 * A_TBS; A_KSS = 4672; E_CH = 64 * 72 + 64
A_KB = 0; K_CS = 4160; K_CH = 4 * K_CS
A_XB = 2 * K_CH; A_WB = A_XB + 8192
A_UB = (A_KS + 2 * A_KSS + 255) // 256 * 256; U_P1 = 1280; U_P2 = 2592; U_CH = 5200
LDS = A_UB + 2 * U_CH
SPIN = 0x10000

cfg.stB = "karg,rows,stores,drain,p0pass,ystaged"
cfg.stA = "karg,params,expand,pdrain,ustaged,convend"
def sn(a, role, name):
    l = (cfg.stB if role == "B" else cfg.stA).split(",")
    if name in l: st(a, l.index(name) + 1)
_u = [0]
def signal(a, fset):
    a(f"s_mov_b64 exec, {(1 << cfg.nrep) - 1}\nv_mul_u32_u24 v60, {FL_REP}, v1\nv_mov_b32 v61, s96\ns_add_u32 s5, s97, {FL_OFF + fset*FL_SET}")
    a("buffer_store_dword v61, v60, s[12:15], s5 offen sc0 sc1\ns_mov_b64 exec, -1")
def poll(a, fsets, first=0):
    _u[0] += 1; u = _u[0]
    a(f"s_and_b32 s5, s2, {cfg.nrep - 1}\ns_mul_i32 s5, s5, {FL_REP}\ns_mov_b32 s6, {SPIN}")
    for k, f in enumerate(fsets): a(f"s_add_u32 s{98+k}, s5, {FL_OFF + f*FL_SET}")
    if first: a(f"s_sleep {first}")
    a(f"LPOLL{u}:")
    for k, f in enumerate(fsets): a(f"buffer_load_dwordx4 {q(60+4*k)}, v2, s[12:15], s{98+k} offen sc1")
    a("s_waitcnt vmcnt(0)")
    n = 4 * len(fsets)
    for i in range(n): a(f"v_xor_b32 v{60+i}, s96, v{60+i}")
    for i in range(1, n - 1, 2): a(f"v_or3_b32 v60, v60, v{60+i}, v{61+i}")
    a(f"v_or_b32 v60, v60, v{60+n-1}\nv_cmp_ne_u32 vcc, 0, v60\ns_sub_u32 s6, s6, 1\ns_cbranch_scc1 LPOLX{u}\ns_cbranch_vccz LPOLX{u}")
    a(f"s_sleep {cfg.psleep}\ns_branch LPOLL{u}\nLPOLX{u}:")
def gather(a, loads, checks, issued=False):
    _u[0] += 1; u = _u[0]
    a(f"s_mov_b32 s6, {SPIN}")
    if issued: a(f"s_branch LGC{u}")
    a(f"LG{u}:")
    for l in loads: a(l)
    a(f"LGC{u}:\ns_waitcnt vmcnt(0)")
    c = list(checks)
    a(f"v_max_u32 v60, v{c[0]}, v{c[1]}" if len(c) == 2 else f"v_max3_u32 v60, v{c[0]}, v{c[1]}, v{c[2]}")
    a(f"v_cmp_eq_u32 vcc, -1, v60\ns_sub_u32 s6, s6, 1\ns_cbranch_scc1 LGX{u}\ns_and_b64 exec, exec, vcc\ns_cbranch_scc0 LGX{u}")
    if cfg.gsleep: a(f"s_sleep {cfg.gsleep}")
    a(f"s_branch LG{u}\nLGX{u}:\ns_mov_b64 exec, -1")

def gen():
    a = Asm()
    st_begin(a); pad_begin(a, 0)
    a("s_load_dwordx2 s[12:13], s[0:1], 120\ns_load_dwordx2 s[8:9], s[0:1], 0\ns_load_dwordx2 s[16:17], s[0:1], 96")
    a("s_load_dwordx8 s[32:39], s[0:1], 8\ns_load_dwordx8 s[40:47], s[0:1], 40\ns_load_dwordx4 s[48:51], s[0:1], 80")
    a("v_readfirstlane_b32 s3, v0\nv_and_b32 v1, 63, v0\nv_lshlrev_b32 v2, 4, v1\ns_lshr_b32 s3, s3, 6")
    srd_pre(a, 12, WS_USED)
    a("v_lshrrev_b32 v4, 4, v1\nv_and_b32 v10, 15, v1\ns_and_b32 s97, s2, 0xff\ns_lshl_b32 s97, s97, 2")
    a("s_cmpk_ge_u32 s2, 256\ns_cbranch_scc1 A_IN")
    a("s_cmp_ge_u32 s3, 4\ns_cbranch_scc1 B_PF")
    table_base(a, 20, "P1_TAB")
    for i in range(8): a(f"global_load_dwordx4 {q(16+4*i)}, v2, s[20:21] offset:{1024*i-4096}")
    srd_pre(a, 8, 2097152); srd_pre(a, 16, 1024)
    a("s_and_b32 s60, s2, 7\ns_lshr_b32 s61, s2, 3\ns_lshl_b32 s52, s60, 5\ns_add_u32 s52, s52, s61")
    a("s_lshl_b32 s22, s52, 10\ns_lshl_b32 s23, s3, 19\ns_add_u32 s22, s22, s23\ns_lshl_b32 s24, s3, 11\ns_add_u32 s23, s22, 0x40000")
    a("s_mov_b32 m0, s24")
    a("s_waitcnt lgkmcnt(0)")
    wsadj(a)
    sn(a, "B", "karg")
    a("buffer_load_dwordx4 v2, s[8:11], s22 offen lds\ns_add_u32 m0, s24, 1024\ns_nop 0")
    a(f"buffer_load_dwordx4 v2, s[8:11], s23 offen lds\ns_mov_b32 m0, {B_GW}\ns_mov_b32 s4, {EP_OFF}")
    a("buffer_load_dwordx4 v2, s[16:19], 0 offen lds\ns_load_dword s96, s[12:13], s4\ns_load_dwordx2 s[8:9], s[0:1], 104")
    FRE, FIM, TC, TS = 112, 116, 120, 124
    a("v_bfe_u32 v3, v1, 1, 3\nv_lshl_add_u32 v5, v4, 9, s52\nv_mul_u32_u24 v5, v3, v5")
    a("v_and_b32 v6, 1, v1\nv_lshl_add_u32 v5, v6, 9, v5\nv_lshl_add_u32 v6, v3, 8, v5")
    a("v_cvt_f32_u32 v5, v5\nv_cvt_f32_u32 v6, v6\nv_mul_f32 v5, 0x3a000000, v5\nv_mul_f32 v6, 0x3a000000, v6")
    a("v_cos_f32 v7, v5\nv_sin_f32 v5, v5\nv_cos_f32 v8, v6\nv_sin_f32 v6, v6")
    a("v_cvt_pk_bf16_f32 v48, v7, v5\nv_cvt_pk_bf16_f32 v49, v8, v6")
    lane_base(a, 103, 1, 10, 11)
    a(f"s_mul_i32 s25, s3, {B_EXS}\ns_add_u32 s25, s25, {B_EX}")
    a("v_lshl_add_u32 v9, v103, 3, s25\nv_cndmask_b32 v50, 0, -1, vcc")
    a("s_mov_b32 s26, 0xffff\ns_cmp_eq_u32 s3, 0\ns_cselect_b32 s26, s26, -1\nv_mov_b32 v11, s26\nv_cndmask_b32 v51, -1, v11, vcc")
    a(f"v_mul_u32_u24 v14, {B_EXS}, v4\ns_lshl_b32 s26, s3, 9\nv_add_u32 v14, {B_EX}, v14\nv_lshl_add_u32 v11, v10, 5, v14\nv_add_u32 v11, s26, v11")
    a("v_lshlrev_b32 v12, 11, v4\nv_lshl_add_u32 v12, v10, 4, v12")
    a("s_lshl_b32 s27, s52, 13\ns_lshl_b32 s26, s3, 8\ns_add_u32 s27, s27, s26")
    a("v_lshl_add_u32 v13, v1, 3, s24\nv_lshlrev_b32 v15, 3, v1")
    a("v_lshlrev_b32 v6, 3, v4")
    a(f"s_lshl_b32 s53, s52, 5\ns_add_u32 s56, s53, {XN_OFF}")
    a("s_waitcnt vmcnt(1) lgkmcnt(0)")
    sn(a, "B", "rows")
    a("ds_read_b64_tr_b16 v[52:53], v13\nds_read_b64_tr_b16 v[54:55], v13 offset:512")
    a("ds_read_b64_tr_b16 v[56:57], v13 offset:1024\nds_read_b64_tr_b16 v[58:59], v13 offset:1536")
    a("s_waitcnt lgkmcnt(2)")
    a(f"{MF32} {q(60)}, {q(52)}, {q(16)}, 0\n{MF32} {q(64)}, {q(52)}, {q(20)}, 0")
    a("s_waitcnt lgkmcnt(0)")
    a(f"{MF32} {q(68)}, {q(56)}, {q(16)}, 0\n{MF32} {q(72)}, {q(56)}, {q(20)}, 0")
    a("s_add_u32 s96, s96, 1")
    for e in range(2):
        re, im = 60 + 8*e, 64 + 8*e
        twiddle(a, re, im, 24, 28, 76, 80)
        B, Bm = (84, 88) if e else (16, 20)
        for r in range(4): a(f"v_cvt_pk_bf16_f32 v{B+r}, v{76+r}, v{80+r}")
        for r in range(4): a(f"v_and_b32 v{Bm+r}, v50, v{B+r}")
        a(f"{MF32} {q(re)}, {q(32)}, {q(B)}, 0\n{MF32} {q(im)}, {q(36)}, {q(B)}, 0")
        a(f"{MF32} {q(re)}, {q(40)}, {q(Bm)}, {q(re)}\n{MF32} {q(im)}, {q(44)}, {q(Bm)}, {q(im)}")
    for e in range(2):
        for r in range(4): a(f"v_cvt_pk_bf16_f32 v{92+2*r+e}, v{60+8*e+r}, v{64+8*e+r}")
    for r in range(4): a(f"ds_write_b64 v9, {p(92+2*r)} offset:{256*r}")
    a("s_waitcnt vmcnt(0) lgkmcnt(0)")
    sn(a, "B", "exch")
    a("s_barrier")
    a("ds_read_b128 v[16:19], v11\nds_read_b128 v[20:23], v11 offset:16\nds_read_b64 v[24:25], v14")
    a(f"ds_read_b64_tr_b16 v[36:37], v15 offset:{B_GW}\nds_read_b64_tr_b16 v[38:39], v15 offset:{B_GW+512}")
    a("s_waitcnt lgkmcnt(4)")
    a("v_and_b32 v16, v51, v16\nv_and_b32 v17, v51, v17")
    a(f"{MF16} {q(64)}, {p(48)}, {p(18)}, 0")
    a("s_waitcnt lgkmcnt(2)")
    a(f"{MF16} {q(60)}, {p(48)}, {p(16)}, 0")
    a("v_lshrrev_b32 v24, 16, v24\nv_lshrrev_b32 v25, 16, v25")
    a(f"{MF16} {q(68)}, {p(48)}, {p(20)}, 0\n{MF16} {q(72)}, {p(48)}, {p(22)}, 0\n{MF16} {q(40)}, {p(48)}, {p(24)}, 0")
    for t in (1, 0, 2, 3):
        a(f"v_cvt_pk_bf16_f32 v{76+t}, v{60+4*t}, v{61+4*t}\nv_cvt_pk_bf16_f32 v{80+t}, v{62+4*t}, v{63+4*t}")
    a(f"buffer_store_dwordx4 {q(76)}, v12, s[12:15], s27 offen sc1\nbuffer_store_dwordx4 {q(80)}, v12, s[12:15], s27 offen offset:1024 sc1")
    a("v_cvt_pk_bf16_f32 v44, v40, v41\nv_cvt_pk_bf16_f32 v45, v42, v43")
    a("s_cmp_lg_u32 s3, 0\ns_cbranch_scc1 B_NONYQ")
    a("s_mov_b32 exec_lo, 0x10001\ns_mov_b32 exec_hi, 0x10001\nbuffer_store_dwordx2 v[44:45], v6, s[12:15], s56 offen sc1")
    a("s_mov_b64 exec, -1")
    a("B_NONYQ:")
    sn(a, "B", "stores")
    a("s_waitcnt lgkmcnt(0)")
    for i in range(4):
        for e in range(2): a(f"v_dot2_f32_bf16 v{60+e}, v{52+4*e+i}, v{36+i}, " + ("0" if i == 0 else f"v{60+e}"))
    for sh in ("row_shr:1", "row_shr:2", "row_shr:4", "row_shr:8"):
        for e in range(2): a(f"v_add_f32_dpp v{60+e}, v{60+e}, v{60+e} {sh} row_mask:0xf bank_mask:0xf bound_ctrl:0")
    for e in range(2): a(f"v_add_f32_dpp v{60+e}, v{60+e}, v{60+e} row_bcast:15 row_mask:0xa bank_mask:0xf")
    for e in range(2): a(f"v_add_f32_dpp v{60+e}, v{60+e}, v{60+e} row_bcast:31 row_mask:0xc bank_mask:0xf")
    a("v_cvt_pk_bf16_f32 v60, v60, v61\nv_and_b32 v61, 0xffff0000, v60\nv_lshlrev_b32 v60, 16, v60")
    a("v_mul_f32 v60, 0xbfb8aa3b, v60\nv_mul_f32 v61, 0xbfb8aa3b, v61\nv_exp_f32 v60, v60\nv_exp_f32 v61, v61")
    a("v_add_f32 v60, 1.0, v60\nv_add_f32 v61, 1.0, v61\nv_rcp_f32 v60, v60\nv_rcp_f32 v61, v61")
    a(f"s_lshl_b32 s4, s3, 3\ns_add_u32 s4, s4, {B_GL}\nv_mov_b32 v62, s4")
    a("v_cvt_pk_bf16_f32 v60, v60, v61\nv_and_b32 v61, 0xffff0000, v60\nv_lshlrev_b32 v60, 16, v60")
    a("s_mov_b32 exec_lo, 0\ns_mov_b32 exec_hi, 0x80000000\nds_write_b64 v62, v[60:61]\ns_mov_b64 exec, -1")
    a("v_readlane_b32 s40, v60, 63\nv_readlane_b32 s41, v61, 63")
    a("v_lshrrev_b32 v12, 1, v1\nv_and_b32 v13, 1, v1\nv_lshlrev_b32 v13, 4, v13\nv_lshl_add_u32 v104, v12, 16, v13\nv_lshl_add_u32 v12, v12, 13, v13")
    a(f"s_lshl_b32 s4, s3, 19\ns_lshl_b32 s5, s60, 10\ns_add_u32 s4, s4, s5\ns_lshl_b32 s5, s61, 5\ns_add_u32 s22, s4, s5\ns_add_u32 s23, s22, {32*8192}")
    a(f"s_lshl_b32 s63, s60, 5\ns_add_u32 s63, s63, s61\ns_lshl_b32 s63, s63, 13\ns_add_u32 s63, s63, {Y1_OFF}\ns_add_u32 s62, s63, s24")
    a(f"v_add_u32 v13, s24, v2\nv_lshl_add_u32 v7, v4, 6, v10\ns_lshl_b32 s4, s3, 3\nv_lshl_add_u32 v110, v7, 5, s4\nv_add_u32 v111, {B_XB}, v110")
    a(f"s_lshl_b32 s4, s3, 2\ns_add_u32 s4, s4, {B_WB}\nv_lshl_add_u32 v109, v7, 4, s4")
    a("s_mov_b32 s7, 0\ns_lshr_b32 s42, s40, 16\ns_lshr_b32 s43, s41, 16")
    a("s_waitcnt vmcnt(0) lgkmcnt(0)")
    sn(a, "B", "drain")
    a("s_barrier")
    a("s_cmp_lg_u32 s3, 0\ns_cbranch_scc1 B_S1")
    signal(a, 0)
    a("B_S1:")
    table_base(a, 20, "P2_TAB")
    for i in range(4): a(f"global_load_dwordx4 {q(112+4*i)}, v2, s[20:21] offset:{1024*i-3072}")
    if not cfg.hpoll:
        a("s_cmp_lg_u32 s3, 0\ns_cbranch_scc1 B_S3")
        poll(a, [0], cfg.bfirst)
    a("B_S3:\ns_barrier")
    sn(a, "B", "p0pass")
    a("buffer_load_dwordx4 v[16:19], v12, s[12:15], s22 offen sc1\nbuffer_load_dwordx4 v[20:23], v12, s[12:15], s23 offen sc1")
    a(f"s_waitcnt vmcnt(1)\nds_write_b128 v13, v[16:19] offset:{B_XB}\ns_waitcnt vmcnt(0)\nds_write_b128 v13, v[20:23] offset:{B_XB+1024}")
    a("s_waitcnt lgkmcnt(0)")
    sn(a, "B", "xstaged")
    a("s_barrier")
    if cfg.prio: a("s_setprio 2")
    for j, r in enumerate((72, 76, 74, 78)): a(f"ds_read_b64 {p(r)}, v111 offset:{512*j}")
    for arr in range(2):
        for r in (0, 2): a(f"ds_read2st64_b32 {p(80+4*arr+r)}, v109 offset0:{16*arr+r} offset1:{16*arr+r+1}")
    a("s_waitcnt lgkmcnt(4)\nB_FFT:\nv_swap_b32 v73, v76\nv_swap_b32 v75, v78")
    col = (72, 76); D = ((16, 20), (24, 28)); T = ((32, 36), (40, 44))
    for c in range(2): a(f"{MF32} {q(D[c][0])}, {q(col[c])}, {q(FRE)}, 0\n{MF32} {q(D[c][1])}, {q(col[c])}, {q(FIM)}, 0")
    a("s_waitcnt lgkmcnt(0)")
    for r in range(4): a(f"v_lshlrev_b32 v{48+r}, 16, v{80+r}\nv_lshlrev_b32 v{52+r}, 16, v{84+r}")
    for c in range(2):
        twiddle(a, D[c][0], D[c][1], TC, TS, T[c][0], T[c][1], packed=False)
        for r in range(4): a(f"v_cvt_pk_bf16_f32 v{col[c]+r}, v{T[c][0]+r}, v{T[c][1]+r}")
        a(f"{MF32} {q(D[c][0])}, {q(FRE)}, {q(col[c])}, 0\n{MF32} {q(D[c][1])}, {q(FIM)}, {q(col[c])}, 0")
    for r in range(4): a(f"v_and_b32 v{56+r}, 0xffff0000, v{80+r}\nv_and_b32 v{60+r}, 0xffff0000, v{84+r}")
    for c in range(2):
        twiddle(a, D[c][0], D[c][1], 48 + 8*c, 52 + 8*c, T[c][0], T[c][1], conj=True, packed=False)
        for r in range(4): a(f"v_cvt_pk_bf16_f32 v{col[c]+r}, v{T[c][1]+r}, v{T[c][0]+r}")
        a(f"{MF32} {q(D[c][0])}, {q(col[c])}, {q(FRE)}, 0\n{MF32} {q(D[c][1])}, {q(col[c])}, {q(FIM)}, 0")
    for c in range(2):
        twiddle(a, D[c][0], D[c][1], TC, TS, T[c][0], T[c][1], packed=False)
        for r in range(4): a(f"v_cvt_pk_bf16_f32 v{col[c]+r}, v{T[c][0]+r}, v{T[c][1]+r}")
        a(f"{MF32} {q(D[c][0])}, {q(FRE)}, {q(col[c])}, 0\n{MF32} {q(D[c][1])}, {q(FIM)}, {q(col[c])}, 0")
    for c in range(2):
        for r in range(4): a(f"v_cvt_pk_bf16_f32 v{48+2*r+c}, v{D[c][1]+r}, v{D[c][0]+r}")
    sn(a, "B", "fftdone")
    a("s_cmp_lg_u32 s7, 0\ns_cbranch_scc1 A_NYS")
    for r in range(4): a(f"ds_write_b64 v111, {p(48+2*r)} offset:{512*r}")
    a("s_waitcnt lgkmcnt(0)\ns_barrier")
    a(f"ds_read_b128 v[64:67], v13 offset:{B_XB}\nds_read_b128 v[68:71], v13 offset:{B_XB+1024}")
    a("s_waitcnt lgkmcnt(1)\nbuffer_store_dwordx4 v[64:67], v2, s[12:15], s62 offen sc1")
    a("s_waitcnt lgkmcnt(0)\nbuffer_store_dwordx4 v[68:71], v2, s[12:15], s62 offen offset:1024 sc1")
    table_base(a, 20, "P3_TAB")
    for i in range(8): a(f"global_load_dwordx4 {q(16+4*i)}, v2, s[20:21] offset:{1024*i-4096}")
    a(f"v_bfe_u32 v3, v1, 1, 3\nv_lshlrev_b32 v15, 2, v3\nds_read_b32 v14, v15 offset:{B_GL}")
    srd_pre(a, 8, 2097152)
    a("v_lshl_add_u32 v5, v3, 8, s52\nv_mul_u32_u24 v6, v4, v5\nv_and_b32 v7, 1, v1\nv_lshlrev_b32 v7, 8, v7\nv_sub_u32 v6, v7, v6\nv_lshlrev_b32 v6, 1, v6\nv_sub_u32 v5, v6, v5")
    a("v_cvt_f32_i32 v6, v6\nv_cvt_f32_i32 v5, v5\nv_mul_f32 v6, 0x3a000000, v6\nv_mul_f32 v5, 0x3a000000, v5")
    a("v_cos_f32 v7, v6\nv_sin_f32 v6, v6\nv_cos_f32 v8, v5\nv_sin_f32 v5, v5")
    a(f"s_mul_i32 s26, s3, {B_PS}\ns_add_u32 s26, s26, {B_YB}")
    a("v_cmp_eq_u32 vcc, 0, v10\nv_lshl_add_u32 v9, v103, 2, s26\nv_add_u32 v50, 1280, v9\nv_cndmask_b32 v92, 0, -1, vcc\nv_add_u32 v105, s26, v2")
    a("v_lshlrev_b32 v106, 3, v4\ns_lshl_b32 s39, s3, 4")
    a(f"v_mul_u32_u24 v15, {B_PS}, v4\nv_lshl_add_u32 v15, v10, 2, v15\nv_add_u32 v15, {B_YB}, v15\ns_lshl_b32 s31, s3, 6\nv_add_u32 v11, s31, v15")
    a(f"v_lshl_add_u32 v107, v4, 5, v10\nv_lshlrev_b32 v107, 5, v107\ns_lshl_b32 s31, s3, 3\ns_add_u32 s31, s31, {B_AB}\nv_add_u32 v107, s31, v107")
    a("v_lshlrev_b32 v108, 5, v10\nv_lshl_add_u32 v108, v4, 3, v108")
    a("s_lshl_b32 s34, s52, 10\ns_lshl_b32 s35, s3, 19\ns_add_u32 s34, s34, s35\ns_add_u32 s35, s34, 0x40000")
    a(f"s_lshl_b32 s24, s3, 19\ns_add_u32 s24, s24, s53\ns_add_u32 s24, s24, {Y1_OFF}\ns_add_u32 s25, s24, {32*8192}\ns_add_u32 s38, s53, {YN_OFF}")
    a(f"s_and_b32 s27, s3, 1\ns_lshl_b32 s27, s27, 2\ns_lshr_b32 s28, s3, 1\ns_add_u32 s27, s27, s28\ns_lshl_b32 s27, s27, 13\ns_add_u32 s27, s27, s53\ns_add_u32 s27, s27, {AT_OFF}\ns_add_u32 s28, s27, 16384")
    a("s_waitcnt lgkmcnt(0)")
    a("v_sub_f32 v14, 1.0, v14\nv_cvt_pk_bf16_f32 v14, v14, v14\nv_and_b32 v14, 0xffff0000, v14")
    a("v_mul_f32 v7, v14, v7\nv_mul_f32 v6, v14, v6\nv_mul_f32 v8, v14, v8\nv_mul_f32 v5, v14, v5")
    a("v_cvt_pk_bf16_f32 v48, v7, v6\nv_cvt_pk_bf16_f32 v49, v8, v5")
    if cfg.ywait: a("s_waitcnt vmcnt(0)")
    sn(a, "B", "ydrain")
    a("s_barrier")
    gather(a, ["buffer_load_dwordx4 v[64:67], v12, s[12:15], s24 offen sc1", "buffer_load_dwordx4 v[68:71], v12, s[12:15], s25 offen sc1"], [64, 68])
    a("ds_write_b128 v105, v[64:67]\nds_write_b128 v105, v[68:71] offset:1280")
    a("s_waitcnt lgkmcnt(0)")
    sn(a, "B", "ystaged")
    a("s_barrier")
    al = ["buffer_load_dwordx4 v[112:115], v104, s[12:15], s27 offen sc1", "buffer_load_dwordx4 v[116:119], v104, s[12:15], s28 offen sc1",
          "buffer_load_dwordx2 v[120:121], v106, s[12:15], s38 offen sc1"]
    if cfg.aearly:
        for l in al: a(l)
    for t in range(4): a(f"ds_read2st64_b32 {p(52+2*t)}, v11 offset0:{t} offset1:{t+5}")
    for t in range(4):
        a(f"s_waitcnt lgkmcnt({3-t})\n{MF16} {q(60+4*t)}, {p(48)}, {p(52+2*t)}, 0")
    for t in range(4):
        a(f"v_cvt_pk_bf16_f32 v{52+2*t}, v{60+4*t}, v{61+4*t}\nv_cvt_pk_bf16_f32 v{53+2*t}, v{62+4*t}, v{63+4*t}")
        a(f"ds_write2st64_b32 v11, v{52+2*t}, v{53+2*t} offset0:{t} offset1:{t+5}")
    a("s_waitcnt lgkmcnt(0)\ns_barrier")
    for e, ad in ((0, 9), (1, 50)):
        a(f"ds_read2_b32 {p(52+8*e)}, v{ad} offset1:32\nds_read2_b32 {p(54+8*e)}, v{ad} offset0:64 offset1:96")
    for e in range(2):
        A, Am = 52 + 8*e, 56 + 8*e
        re, im = 68 + 8*e, 72 + 8*e
        a(f"s_waitcnt lgkmcnt({2-2*e})")
        for r in range(4): a(f"v_and_b32 v{Am+r}, v92, v{A+r}")
        a(f"{MF32} {q(re)}, {q(A)}, {q(16)}, 0\n{MF32} {q(im)}, {q(A)}, {q(20)}, 0")
        a(f"{MF32} {q(re)}, {q(Am)}, {q(24)}, {q(re)}\n{MF32} {q(im)}, {q(Am)}, {q(28)}, {q(im)}")
    for e in range(2):
        re, im = 68 + 8*e, 72 + 8*e
        twiddle(a, re, im, 32, 36, 84, 88, conj=True, packed=False)
        for r in range(4): a(f"v_cvt_pk_bf16_f32 v{52+4*e+r}, v{84+r}, v{88+r}")
        a(f"{MF32} {q(re)}, {q(52+4*e)}, {q(40)}, 0\n{MF32} {q(im)}, {q(52+4*e)}, {q(44)}, 0")
    sn(a, "B", "bdone")
    gather(a, al, [112, 116, 120], issued=cfg.aearly)
    sn(a, "B", "agot")
    a(f"ds_write_b128 v13, v[112:115] offset:{B_AB}\nds_write_b128 v13, v[116:119] offset:{B_AB+1024}")
    a(f"{MF16} {q(28)}, {p(48)}, {p(120)}, 0")
    a("v_mul_f32 v28, 0x35800000, v28\nv_mul_f32 v30, 0x35800000, v30\nv_readlane_b32 s44, v28, s39\nv_readlane_b32 s45, v30, s39")
    for e in range(2):
        for hb in range(2):
            D_ = 68 + 8*e + 4*hb
            a(f"v_add_f32 v{D_}, s{44+e}, v{D_}\nv_subrev_f32 v{D_+1}, s{44+e}, v{D_+1}\nv_add_f32 v{D_+2}, s{44+e}, v{D_+2}\nv_subrev_f32 v{D_+3}, s{44+e}, v{D_+3}")
    a("s_waitcnt lgkmcnt(0)\ns_barrier")
    for i, (hb, e2) in enumerate(((0,0),(0,1),(1,0),(1,1))): a(f"ds_read_b64 {p(96+2*i)}, v107 offset:{4096*e2+512*hb}")
    osc = " sc1" if cfg.outsc == 1 else (" nt" if cfg.outsc == 2 else "")
    for hb in range(2):
        a(f"s_waitcnt lgkmcnt({2-2*hb})")
        for e in range(2):
            D_ = 68 + 8*e + 4*hb
            for e2 in range(2):
                av = 96 + 2*(2*hb + e2) + e
                a(f"v_dot2_f32_bf16 v{D_+2*e2}, v{av}, s{42+e}, v{D_+2*e2}\nv_dot2_f32_bf16 v{D_+2*e2+1}, v{av}, s{40+e}, v{D_+2*e2+1}")
        for e in range(2):
            D_ = 68 + 8*e + 4*hb; o = 60 + 4*e + 2*hb
            a(f"v_cvt_pk_bf16_f32 v{o}, v{D_}, v{D_+1}\nv_cvt_pk_bf16_f32 v{o+1}, v{D_+2}, v{D_+3}")
            a(f"buffer_store_dwordx2 {p(o)}, v108, s[8:11], s{34+e} offen offset:{512*hb}{osc}")
    a("s_or_b32 s4, s2, s3\ns_cmp_lg_u32 s4, 0\ns_cbranch_scc1 L_END0")
    a(f"s_mov_b64 exec, 1\nv_mov_b32 v60, 0\nv_mov_b32 v61, s96\ns_mov_b32 s4, {EP_OFF}\nbuffer_store_dword v61, v60, s[12:15], s4 offen sc1")
    a("L_END0:")
    if cfg.padk >= 0: end(a, 0)
    a("L_END:")
    end(a, 0, pad=False)
    a("A_IN:")
    a("s_cmpk_ge_u32 s2, 512\ns_cbranch_scc1 L_EXIT")
    a("s_sub_u32 s58, s2, 256\ns_and_b32 s27, s3, 1\ns_bfe_u32 s26, s3, 0x10001\ns_lshl_b32 s28, s58, 9\ns_lshl_b32 s29, s26, 8\ns_add_u32 s28, s28, s29\ns_lshl_b32 s29, s27, 7\ns_add_u32 s28, s28, s29")
    a("v_lshl_add_u32 v5, v1, 1, s28\ns_lshl_b32 s29, s58, 2\ns_lshl_b32 s52, s26, 4\ns_sub_u32 s52, 16, s52\nv_mov_b32 v13, 0x3fb8aa3b")
    table_base(a, 20, "P2_TAB")
    a(f"s_mov_b32 s4, {EP_OFF}\ns_lshl_b32 s54, s27, 8\ns_cmp_ge_u32 s3, 4")
    a("s_waitcnt lgkmcnt(0)")
    wsadj(a)
    a("s_cmp_ge_u32 s3, 4")
    sn(a, "A", "karg")
    a("s_load_dword s30, s[44:45], s29\ns_load_dword s31, s[46:47], s29\ns_load_dword s96, s[12:13], s4")
    a("global_load_ushort v11, v5, s[32:33]\nglobal_load_ushort v12, v5, s[34:35]")
    a("s_cbranch_scc0 A_P")
    for i in range(2, 6): a(f"global_load_ushort v{16+i}, v5, s[{32+2*i}:{33+2*i}]")
    a("A_P:")
    a("v_and_b32 v3, 0xff, v0\nv_lshlrev_b32 v6, 5, v3")
    a(f"s_lshr_b32 s24, s3, 2\ns_mul_i32 s25, s24, {A_KSS}\ns_add_u32 s25, s25, {A_KS}\nv_lshl_add_u32 v126, v3, 4, s25")
    a(f"s_mul_i32 s23, s24, {K_CH}\ns_add_u32 s23, s23, {A_KB + 64}\nv_lshl_add_u32 v127, v3, 4, s23")
    a("s_and_b32 s23, s3, 3\ns_cmp_ge_u32 s23, 1\ns_cselect_b64 s[56:57], -1, 0\ns_cmp_ge_u32 s23, 2\ns_cselect_b64 s[62:63], -1, 0")
    a("v_mov_b32 v104, 0\nv_mov_b32 v105, 0\nv_mov_b32 v7, s25\nds_write_b64 v7, v[104:105] offset:8")
    a(f"s_mul_i32 s22, s27, {U_P1}\ns_mul_i32 s23, s26, {U_P2}\ns_mul_i32 s25, s24, {U_CH}\ns_add_u32 s22, s22, s23\ns_add_u32 s22, s22, s25\ns_add_u32 s22, s22, {A_UB}")
    a(f"v_lshl_add_u32 v7, v1, 2, s22\nds_write_b32 v7, v104\ns_mul_i32 s23, s3, {K_CS}\nv_lshl_add_u32 v113, v10, 2, s23")
    a("s_waitcnt lgkmcnt(0)")
    a("s_lshl_b32 s30, s30, s52\ns_and_b32 s30, s30, 0xffff0000\nv_mul_f32 v14, s30, v13\nv_exp_f32 v14, v14\ns_add_u32 s96, s96, 1")
    a("v_cvt_pk_bf16_f32 v14, v14, v14\nv_and_b32 v14, 0xffff0000, v14\nv_mul_f32 v13, v14, v13\nv_mul_f32 v15, 0.15915494, v14")
    a("s_cmp_ge_u32 s3, 4\ns_cbranch_scc1 A_B")
    a("v_lshrrev_b32 v22, 3, v1\nv_and_b32 v7, 7, v1\nv_lshlrev_b32 v8, 15, v22\nv_lshl_add_u32 v8, v7, 4, v8")
    a(f"s_lshl_b32 s28, s58, 7\ns_lshl_b32 s29, s3, 19\ns_add_u32 s28, s28, s29\ns_add_u32 s28, s28, {UT_OFF}\ns_add_u32 s29, s28, 0x40000")
    a(f"v_and_b32 v9, 1, v7\nv_mul_u32_u24 v9, {U_P2}, v9\nv_bfe_u32 v19, v7, 1, 1\nv_mul_u32_u24 v19, {U_P1}, v19\nv_lshrrev_b32 v7, 2, v7\nv_mul_u32_u24 v7, {U_CH}, v7")
    a(f"v_add3_u32 v9, v9, v19, v7\ns_lshl_b32 s22, s3, 8\ns_add_u32 s22, s22, {A_UB + 256}\nv_lshl_add_u32 v22, v22, 4, s22\nv_add_u32 v119, v22, v9")
    a(f"s_mul_i32 s22, s26, {K_CH}\ns_lshl_b32 s59, s27, 5\ns_add_u32 s22, s22, s59\ns_add_u32 s22, s22, {A_KB + 56}")
    a(f"v_bfe_u32 v18, v1, 2, 2\nv_mul_u32_u24 v18, {K_CS}, v18\nv_and_b32 v17, 3, v1\nv_lshl_add_u32 v18, v17, 3, v18\nv_and_b32 v17, 16, v1\nv_lshlrev_b32 v17, 1, v17\nv_sub_u32 v18, v18, v17\nv_and_b32 v17, 32, v1\nv_lshrrev_b32 v17, 1, v17\nv_sub_u32 v18, v18, v17\nv_add_u32 v112, s22, v18")
    a(f"s_mul_i32 s22, s26, {U_CH}\ns_add_u32 s22, s22, {A_UB}\nv_and_b32 v18, 1, v4\nv_mul_u32_u24 v18, {U_P1}, v18\nv_lshrrev_b32 v17, 5, v1\nv_mul_u32_u24 v17, {U_P2}, v17")
    a("v_lshl_add_u32 v18, v10, 4, v18\nv_add3_u32 v117, v18, v17, s22")
    a(f"s_mul_i32 s22, s26, {E_CH}\ns_add_u32 s22, s22, s59\ns_add_u32 s22, s22, {A_KS}")
    a("v_mul_u32_u24 v18, 72, v10\nv_lshl_add_u32 v18, v4, 3, v18\nv_add_u32 v116, s22, v18")
    a(f"v_and_b32 v20, 62, v0\nv_and_b32 v21, 1, v0\ns_mul_i32 s22, s3, 72\ns_add_u32 s22, s22, {A_KS}")
    a(f"v_mul_u32_u24 v21, {2304+64}, v21\nv_add3_u32 v118, v21, v20, s22\ns_mov_b32 s59, 0x05040100")
    ACC = 80
    a(f"s_mul_i32 s53, s26, {A_TAS}\ns_add_u32 m0, s53, s54")
    a(f"v_lshl_add_u32 v16, s27, 4, v10\nv_mul_u32_u24 v16, {RS}, v16\nv_lshl_add_u32 v16, v4, 4, v16\nv_add_u32 v46, s53, v16")
    a(f"s_mul_i32 s53, s26, {A_TBS}\ns_add_u32 s53, s53, {A_TB}\nv_mul_u32_u24 v16, {RS}, v10\nv_lshl_add_u32 v16, v4, 4, v16\nv_add_u32 v47, s53, v16")
    a("s_lshl_b32 s31, s31, s52\ns_and_b32 s31, s31, 0xffff0000\ns_cmp_eq_u32 s27, 0\ns_cselect_b32 s31, s31, 0")
    a("v_cmp_eq_u32 vcc, 0, v1\nv_mov_b32 v16, s31\nv_mov_b32 v20, 1.0\nv_mov_b32 v21, 0\nv_cndmask_b32 v45, 0, v16, vcc")
    a("s_waitcnt vmcnt(0)")
    sn(a, "A", "params")
    a("global_load_dwordx4 v[120:123], v6, s[20:21] offset:1024\nglobal_load_dwordx2 v[124:125], v6, s[20:21] offset:1040")
    a("global_load_dwordx2 v[114:115], v2, s[20:21] offset:-4096")
    a("v_lshlrev_b32 v11, 16, v11\nv_lshlrev_b32 v12, 16, v12\nv_mul_f32 v11, v13, v11\nv_mul_f32 v12, v15, v12")
    zpow(a, [(22, "0x41000000", 30), (28, "0x42000000", 32)], 11, 12)
    cmul_seq(a, [(24, 22, 22, 30)]); cmul_seq(a, [(26, 24, 22, 30)])
    for it in range(8):
        for c in range(4): a(f"v_cvt_pk_bf16_f32 v{16+c}, v{20+2*c}, v{21+2*c}")
        for c in range(4):
            if it < 7: pk1(a, 20+2*c, 28, 30+2*c)
            a(f"ds_write_addtid_b32 v{16+c} offset:{RS*(4*it+c)}")
        if it < 7:
            for c in range(4): pk2(a, 20+2*c, 20+2*c, 28, 30+2*c)
    sn(a, "A", "tabiss")
    a(f"s_mul_i32 s31, s26, {A_KSS}\ns_add_u32 s31, s31, s54\ns_add_u32 s31, s31, {A_KS + 16}\nv_lshl_add_u32 v16, v4, 6, s31")
    a("s_waitcnt vmcnt(0)\nv_add_u32 v114, v114, v16\nv_add_u32 v115, v115, v16")
    a("s_waitcnt lgkmcnt(0)")
    sn(a, "A", "tables")
    a("s_barrier")
    def rd(ks):
        b = 48 + 12 * (ks % 4)
        a(f"ds_read_b128 {q(b)}, v46 offset:{64*ks}\nds_read_b128 {q(b+4)}, v47 offset:{64*ks}\nds_read_b128 {q(b+8)}, v47 offset:{64*ks + 16*RS}")
    for ks in range(4): rd(ks)
    for ks in range(8):
        b = 48 + 12 * (ks % 4)
        a(f"s_waitcnt lgkmcnt({3 * (min(ks + 3, 7) - ks)})")
        c0 = "0" if ks == 0 else q(16); c1 = "0" if ks == 0 else q(20)
        a(f"{MF32} {q(16)}, {q(b)}, {q(b+4)}, {c0}\n{MF32} {q(20)}, {q(b)}, {q(b+8)}, {c1}")
        if ks + 4 < 8: rd(ks + 4)
    a("v_add_f32 v16, v45, v16")
    for i in range(4): a(f"v_cvt_pk_bf16_f32 v{24+i}, v{16+2*i}, v{17+2*i}")
    for nt in range(2):
        for h in range(2):
            a(f"ds_write_b16 v{114+nt}, v{24+2*nt+h} offset:{32*h}\nds_write_b16_d16_hi v{114+nt}, v{24+2*nt+h} offset:{32*h+16}")
    def expand():
        a("s_waitcnt lgkmcnt(0)")
        sn(a, "A", "staged")
        a("s_barrier")
        a("ds_read_b128 v[16:19], v126 offset:16\nds_read_b64 v[20:21], v126 offset:8\nds_read_b32 v22, v126 offset:32\nds_write_b32 v113, v104")
        a("s_waitcnt lgkmcnt(3)")
        a("v_cndmask_b32 v17, v17, v16, s[56:57]\nv_cndmask_b32 v18, v18, v16, s[62:63]")
        a("v_perm_b32 v24, v16, v16, v122\nv_perm_b32 v25, v18, v17, v123")
        a("s_waitcnt lgkmcnt(1)")
        a("v_perm_b32 v26, v22, v18, v124\nv_perm_b32 v27, v22, v19, v125\nv_perm_b32 v28, v16, v21, v121\nv_perm_b32 v23, v16, v20, v120")
        a("ds_write_b128 v127, v[24:27]")
        a("v_mov_b32 v29, v24\nv_mov_b32 v30, v25\nv_mov_b32 v31, v26")
        a(f"ds_write_b128 v127, v[28:31] offset:{2*K_CS}")
        a("v_alignbit_b32 v32, v24, v28, 16\nv_alignbit_b32 v33, v25, v24, 16\nv_alignbit_b32 v34, v26, v25, 16\nv_alignbit_b32 v35, v27, v26, 16")
        a(f"ds_write_b128 v127, v[32:35] offset:{K_CS}")
        a("v_alignbit_b32 v36, v28, v23, 16\nv_mov_b32 v37, v32\nv_mov_b32 v38, v33\nv_mov_b32 v39, v34")
        a(f"ds_write_b128 v127, v[36:39] offset:{3*K_CS}")
        a(f"s_lshl_b32 s53, s58, 13\ns_add_u32 s53, s53, {AT_OFF}\nv_lshlrev_b32 v126, 4, v0")
    expand()
    sn(a, "A", "expand")
    sn(a, "A", "pdrain")
    a("s_cmp_lg_u32 s3, 0\ns_cbranch_scc1 A_S1")
    poll(a, [3], cfg.afirst)
    a("A_S1:\ns_barrier")
    sn(a, "A", "p0pass")
    a("buffer_load_dwordx4 v[96:99], v8, s[12:15], s28 offen sc1\nbuffer_load_dwordx4 v[100:103], v8, s[12:15], s29 offen sc1")
    a("s_waitcnt vmcnt(1)\nds_write_b128 v119, v[96:99]\ns_waitcnt vmcnt(0)\nds_write_b128 v119, v[100:103] offset:128")
    a("s_waitcnt lgkmcnt(0)\ns_barrier")
    sn(a, "A", "ustaged")
    SET = (16, 48)
    def ldA(s, e, d, half):
        a(f"ds_read_b64_tr_b16 {p(SET[s] + 4*e + 2*half)}, v112 offset:{64*d + 1024*e + (8 if half == 0 else 0)}")
    def ldG(s, c, d): a(f"ds_read_b128 {q(SET[s]+16+4*c)}, v117 offset:{16*(16-d) + 256*c}")
    fresh = set(range(4))
    def mm(s, e, cb):
        c = "0" if cb in fresh else q(ACC+4*cb); fresh.discard(cb)
        a(f"{MF32} {q(ACC+4*cb)}, {q(SET[s]+4*e)}, {q(SET[s]+16+4*(cb-e))}, {c}")
    ldA(0,0,0,0); ldA(0,0,0,1)
    for c in range(4): ldG(0, c, 0)
    for e in range(1, 4): ldA(0,e,0,0); ldA(0,e,0,1)
    W = lambda n: a(f"s_waitcnt lgkmcnt({n})")
    for d in range(16):
        P, Q = d & 1, 1 - (d & 1)
        if d < 15:
            n = d + 1
            W(9 if d == 0 else 6); mm(P,0,0); ldA(Q,0,n,0)
            if d == 0: W(7)
            mm(P,0,1); ldA(Q,0,n,1); ldG(Q,0,n)
            mm(P,0,2); ldG(Q,1,n)
            mm(P,0,3); ldG(Q,2,n)
            W(7); mm(P,1,1); ldG(Q,3,n)
            mm(P,1,2); ldA(Q,1,n,0); ldA(Q,1,n,1)
            mm(P,1,3); ldA(Q,2,n,0)
            mm(P,2,2); ldA(Q,2,n,1)
            mm(P,2,3); ldA(Q,3,n,0)
            W(11); mm(P,3,3); ldA(Q,3,n,1)
        else:
            W(6); mm(P,0,0); mm(P,0,1); mm(P,0,2); mm(P,0,3); W(2); mm(P,1,1); mm(P,1,2); mm(P,1,3)
            mm(P,2,2); mm(P,2,3); W(0); mm(P,3,3)
    sn(a, "A", "convend")
    a("s_add_u32 s55, s53, 4096")
    for cb in range(4):
        a(f"v_cvt_pk_bf16_f32 v{96+2*cb}, v{ACC+4*cb}, v{ACC+4*cb+1}\nv_cvt_pk_bf16_f32 v{97+2*cb}, v{ACC+4*cb+2}, v{ACC+4*cb+3}")
        a(f"ds_write_b64 v116, {p(96+2*cb)} offset:{1152*cb + (64 if cb >= 2 else 0)}")
    a("s_waitcnt lgkmcnt(0)\ns_barrier")
    for j in range(2):
        for i in range(4): a(f"ds_read_u16 v{16+8*j+i}, v118 offset:{288*j + 576*i}\nds_read_u16 v{20+8*j+i}, v118 offset:{288*j + 576*i + E_CH}")
        if j == 0: a("s_waitcnt lgkmcnt(7)")
    for j in range(2):
        for i in range(4): a(f"s_waitcnt lgkmcnt({8*(1-j) + 6-2*i})\nv_perm_b32 v{32+4*j+i}, v{20+8*j+i}, v{16+8*j+i}, s59")
        a(f"buffer_store_dwordx4 {q(32+4*j)}, v126, s[12:15], s{53 + 2*j} offen sc1")
    end(a, 0, pad=False)
    a("A_B:")
    a(f"s_cmp_lg_u32 s58, 0\ns_cbranch_scc1 A_B1\ns_lshl_b32 s22, s3, 11\ns_add_u32 s22, s22, {YN_OFF - 8192}")
    for i in range(4): a(f"v_mov_b32 v{40+i}, -1")
    a("buffer_store_dwordx4 v[40:43], v2, s[12:15], s22 offen sc1\nbuffer_store_dwordx4 v[40:43], v2, s[12:15], s22 offen offset:1024 sc1\nA_B1:")
    a("s_and_b32 s22, s58, 7\ns_lshl_b32 s22, s22, 5\ns_lshr_b32 s23, s58, 3\ns_add_u32 s22, s22, s23\nv_and_b32 v7, 7, v1\nv_lshl_add_u32 v7, s22, 3, v7\nv_mul_u32_u24 v8, 514, v7\nv_lshlrev_b32 v102, 1, v7")
    a(f"s_mul_i32 s53, s26, {A_TBS}\ns_add_u32 s53, s53, s54\ns_add_u32 m0, s53, {A_TB}")
    a("s_waitcnt vmcnt(0)")
    sn(a, "A", "params")
    a("s_cmp_lg_u32 s3, 5\ns_cbranch_scc1 A_B2")
    a("global_load_ushort v100, v8, s[48:49] offset:512\nglobal_load_ushort v101, v8, s[50:51] offset:512\nA_B2:")
    a("global_load_dwordx4 v[120:123], v6, s[20:21] offset:1024\nglobal_load_dwordx2 v[124:125], v6, s[20:21] offset:1040")
    a("v_lshlrev_b32 v11, 16, v11\nv_lshlrev_b32 v12, 16, v12")
    for i in range(2, 6): a(f"v_lshlrev_b32 v{16+i}, 16, v{16+i}")
    a("v_mul_f32 v11, v13, v11\nv_mul_f32 v12, v15, v12")
    a(f"v_pk_mul_f32 {p(18)}, {p(18)}, {p(14)} op_sel_hi:[1,0]")
    zpow(a, [(22, None, 30), (24, "0x43800000", 32)], 11, 12)
    Z1, Z256, Z2, Z4, C0 = 22, 24, 26, 28, 34
    cmul_seq(a, [(C0, 20, 18, 30), (Z2, Z1, Z1, 32)])
    wr = [0]
    def put(row, src):
        t = 60 + (wr[0] % 4); wr[0] += 1
        a(f"v_cvt_pk_bf16_f32 v{t}, v{src}, -v{src+1}\nds_write_addtid_b32 v{t} offset:{RS*row}")
    cmul_seq(a, [(38, C0, Z1, 30), (40, C0, Z256, 32), (36, C0, Z2, 44), (Z4, Z2, Z2, 46)])
    put(0, C0); put(1, 38); put(8, 40); put(2, 36)
    cmul_seq(a, [(42, 40, Z2, 30), (48, 40, Z4, 32), (40, 40, Z256, 44), (38, 38, Z2, 46), (36, 36, Z2, 50)])
    put(9, 42); put(10, 48); put(12, 40); put(3, 38); put(4, 36)
    cmul_seq(a, [(42, 48, Z2, 30), (48, 40, Z4, 32), (40, 40, Z256, 44), (38, 38, Z2, 46), (36, 36, Z2, 50)])
    put(11, 42); put(13, 48); put(14, 40); put(5, 38); put(6, 36)
    cmul_seq(a, [(48, 40, Z4, 32), (40, 40, Z256, 44), (38, 38, Z2, 46), (52, Z256, Z256, 50)])
    put(15, 48); put(16, 40); put(7, 38)
    cmul_seq(a, [(42, 40, Z256, 30), (48, 40, 52, 32)])
    put(17, 42); put(18, 48)
    cmul_seq(a, [(42, 42, 52, 30), (48, 48, 52, 32)])
    put(19, 42); put(20, 48)
    sn(a, "A", "tabiss")
    a("s_waitcnt vmcnt(0) lgkmcnt(0)")
    sn(a, "A", "tables")
    a("s_barrier")
    a("s_cmp_lg_u32 s3, 5\ns_cbranch_scc1 A_B3")
    a(f"s_mov_b64 exec, 0xff\ns_mov_b32 s4, {WN_OFF}\ns_mov_b32 s5, {WN_OFF + 4096}")
    a("buffer_store_short v100, v102, s[12:15], s4 offen sc1\nbuffer_store_short v101, v102, s[12:15], s5 offen sc1\ns_mov_b64 exec, -1\nA_B3:")
    expand()
    sn(a, "A", "expand")
    a("s_cmp_lg_u32 s3, 5\ns_cbranch_scc1 A_B4\ns_waitcnt vmcnt(0)")
    signal(a, 5)
    a("A_B4:")
    a("s_waitcnt lgkmcnt(0)\ns_cmp_eq_u32 s58, 0\ns_cselect_b32 s4, 8, 5\ns_cmp_ge_u32 s3, s4\ns_cbranch_scc1 L_END")
    a("s_barrier\ns_barrier\ns_cmp_lg_u32 s3, 4\ns_cbranch_scc1 A_S2")
    for i in range(4): a(f"v_mov_b32 v{40+i}, -1")
    a("s_add_u32 s55, s53, 4096")
    for i in range(8): a(f"buffer_store_dwordx4 v[40:43], v2, s[12:15], s{53 + 2*(i//4)} offen offset:{1024*(i%4)} sc1")
    a("s_waitcnt vmcnt(0)")
    sn(a, "A", "pdrain")
    signal(a, 2)
    a("s_cmp_lg_u32 s58, 0\ns_cbranch_scc1 L_END")
    a("A_S2:")
    for i in range(4): a(f"global_load_dwordx4 {q(112+4*i)}, v2, s[20:21] offset:{1024*i-3072}")
    a(f"s_sub_u32 s7, s3, 4\nv_lshl_add_u32 v7, v4, 6, v10\ns_lshl_b32 s4, s7, 3\nv_lshl_add_u32 v110, v7, 5, s4\ns_lshl_b32 s4, s7, 2\nv_lshl_add_u32 v109, v7, 4, s4")
    a(f"s_mov_b32 s23, {XN_OFF}\ns_mov_b32 s25, {WN_OFF}\ns_mov_b32 s28, {WN_OFF + 4096}\ns_mov_b32 s63, {YN_OFF}\ns_mov_b32 s7, 1")
    poll(a, [0, 5])
    for j, r in enumerate((72, 76, 74, 78)): a(f"buffer_load_dwordx2 {p(r)}, v110, s[12:15], s23 offen offset:{512*j} sc1")
    for r in range(4): a(f"buffer_load_dword v{80+r}, v109, s[12:15], s25 offen offset:{256*r} sc1\nbuffer_load_dword v{84+r}, v109, s[12:15], s28 offen offset:{256*r} sc1")
    if cfg.prio: a("s_setprio 2")
    a("s_waitcnt vmcnt(0)\ns_branch B_FFT")
    a("A_NYS:")
    for r in range(4): a(f"buffer_store_dwordx2 {p(48+2*r)}, v110, s[12:15], s63 offen offset:{512*r} sc1")
    a("s_branch L_END")
    a("B_PF:")
    a("s_cmp_ge_u32 s3, 6\ns_cbranch_scc1 L_EXIT")
    a(f"s_and_b32 s60, s2, 7\ns_lshr_b32 s61, s2, 3\ns_mov_b32 s4, {EP_OFF}\ns_cmp_eq_u32 s3, 5\ns_cbranch_scc1 B_H")
    srd_pre(a, 8, 2097152)
    a("s_lshr_b32 s53, s61, 2\ns_lshl_b32 s53, s53, 3\ns_add_u32 s30, s60, s53\ns_and_b32 s31, s61, 3")
    a("v_lshlrev_b32 v6, 4, v10\nv_lshlrev_b32 v5, 5, v4\nv_xor_b32 v6, v5, v6\nv_lshl_add_u32 v6, v4, 10, v6\nv_xor_b32 v5, 128, v6")
    a(f"s_lshl_b32 s54, s30, 15\ns_lshl_b32 s56, s31, 8\ns_add_u32 s55, s54, s56\ns_mov_b32 m0, {B_UX}")
    a("s_waitcnt lgkmcnt(0)")
    wsadj(a)
    sn(a, "B", "karg")
    for e in range(8):
        a(f"buffer_load_dwordx4 v{5 if (e >> 1) & 1 else 6}, s[8:11], s55 offen lds")
        if e < 7: a(f"s_add_u32 m0, m0, 1024\ns_add_u32 s55, s55, 4096")
    a("s_load_dword s96, s[12:13], s4")
    a("v_bfe_u32 v7, v1, 2, 2\nv_and_b32 v8, 1, v4\nv_lshl_or_b32 v8, v8, 2, v7")
    a("v_lshl_add_u32 v7, v4, 3, v7\nv_lshlrev_b32 v7, 8, v7\nv_lshl_add_u32 v7, v8, 5, v7\nv_and_b32 v8, 3, v1\nv_lshl_add_u32 v48, v8, 3, v7")
    for cg in range(1, 8): a(f"v_xor_b32 v{48+cg}, {32*cg}, v48")
    a("v_lshlrev_b32 v5, 6, v10\nv_lshl_add_u32 v5, v4, 4, v5")
    a(f"s_lshl_b32 s55, s31, 13\ns_add_u32 s54, s54, s55\ns_add_u32 s54, s54, {UT_OFF}\ns_add_u32 s55, s54, 4096")
    a("s_waitcnt vmcnt(0) lgkmcnt(0)")
    sn(a, "B", "rows")
    for cg in range(8):
        a(f"ds_read_b64_tr_b16 {p(16+4*cg)}, v{48+cg} offset:{B_UX}\nds_read_b64_tr_b16 {p(18+4*cg)}, v{48+cg} offset:{B_UX+1024}")
        if cg == 6: a("s_waitcnt lgkmcnt(12)")
    for cg in range(8):
        a(f"s_waitcnt lgkmcnt({14-2*cg})\nbuffer_store_dwordx4 {q(16+4*cg)}, v5, s[12:15], s{54 + cg//4} offen offset:{1024*(cg%4)} sc1")
    a("s_add_u32 s96, s96, 1")
    sn(a, "B", "stores")
    a("s_barrier\ns_waitcnt vmcnt(0)")
    sn(a, "B", "drain")
    signal(a, 3)
    a("s_branch L_END")
    a("B_H:")
    table_base(a, 20, "L_CODE"); table_base(a, 24, "P1_TAB")
    a("s_lshl_b32 s26, s61, 10\nv_add_u32 v3, s26, v2")
    a("v_min_u32 v5, L_CEND-L_CODE-16, v3\nglobal_load_dwordx4 v[20:23], v5, s[20:21] offset:-4096")
    a("v_min_u32 v5, TAB_END-P1_TAB-16, v3\nglobal_load_dwordx4 v[24:27], v5, s[24:25] offset:-4096")
    a("s_waitcnt lgkmcnt(0)")
    wsadj(a)
    a("s_load_dword s96, s[12:13], s4")
    a("s_mov_b32 s32, s48\ns_mov_b32 s33, s49\ns_mov_b32 s36, s50\ns_mov_b32 s37, s51")
    srd_pre(a, 32, 2048 * 514); srd_pre(a, 36, 2048 * 514)
    if cfg.prefetch_w == 3:
        a("s_lshl_b32 s22, s61, 6\ns_add_u32 s22, s22, s60\ns_mul_i32 s22, s22, 514\nv_lshrrev_b32 v5, 3, v1\nv_mul_u32_u24 v5, 4112, v5\nv_and_b32 v6, 7, v1\nv_mul_u32_u24 v6, 73, v6\nv_add_u32 v5, v5, v6")
        a("buffer_load_ubyte v16, v5, s[32:35], s22 offen\nbuffer_load_ubyte v17, v5, s[36:39], s22 offen")
    if cfg.touch:
        a("v_and_b32 v5, 7, v1\nv_lshlrev_b32 v5, 21, v5\nbuffer_load_dword v28, v5, s[12:15], 0 offen sc1")
        a("s_load_dwordx2 s[8:9], s[0:1], 104\nv_mov_b32 v6, 0\nbuffer_load_ubyte v29, v6, s[32:35], 0 offen\nbuffer_load_ubyte v30, v6, s[36:39], 0 offen")
        a("s_waitcnt lgkmcnt(0)\nglobal_load_dword v31, v6, s[8:9]")
    for i in range(4): a(f"v_mov_b32 v{40+i}, -1")
    a(f"s_lshl_b32 s63, s60, 5\ns_add_u32 s63, s63, s61\ns_lshl_b32 s63, s63, 13\ns_add_u32 s62, s63, {Y1_OFF}\ns_add_u32 s63, s62, 4096")
    a(f"s_mul_i32 s26, s60, 514\ns_lshl_b32 s27, s61, 4\ns_add_u32 s26, s26, s27\nv_mul_u32_u24 v14, 4112, v1\ns_mov_b32 m0, {B_WB}")
    a("s_waitcnt lgkmcnt(0)\ns_add_u32 s96, s96, 1")
    if cfg.ypace: a("s_waitcnt vmcnt(0)")
    def ypoison():
        for i in range(8): a(f"buffer_store_dwordx4 v[40:43], v2, s[12:15], s{62 + i//4} offen offset:{1024*(i%4)} sc1")
    if not cfg.ylate: ypoison()
    if cfg.prefetch_w in (1, 2):
        a("s_lshl_b32 s22, s61, 6\ns_add_u32 s22, s22, s60\ns_mul_i32 s22, s22, 514\nv_lshrrev_b32 v5, 3, v1\nv_mul_u32_u24 v5, 4112, v5\nv_and_b32 v6, 7, v1\nv_mul_u32_u24 v6, 73, v6\nv_add_u32 v5, v5, v6")
        if cfg.prefetch_w == 2: a("s_barrier")
        a("buffer_load_ubyte v16, v5, s[32:35], s22 offen\nbuffer_load_ubyte v17, v5, s[36:39], s22 offen")
    if cfg.prefetch_w != 2: a("s_barrier")
    a("s_waitcnt vmcnt(0)")
    sn(a, "B", "poison")
    a("s_barrier")
    for w in range(4):
        a(f"buffer_load_dwordx4 v14, s[32:35], s26 offen lds\ns_add_u32 m0, m0, 4096\ns_nop 0\nbuffer_load_dwordx4 v14, s[36:39], s26 offen lds")
        if w < 3: a(f"s_sub_u32 m0, m0, 3072\ns_add_u32 s26, s26, {512*514}")
    a("s_waitcnt vmcnt(0)")
    sn(a, "B", "wgot")
    poll(a, [0], cfg.bfirst)
    if cfg.ylate:
        a("s_barrier\ns_barrier")
        ypoison()
        a("s_waitcnt vmcnt(0)")
        signal(a, 1)
        a("s_barrier")
        poll(a, [1])
        sn(a, "B", "p1")
        a("s_barrier")
    else:
        a("s_barrier\ns_barrier\ns_barrier\ns_barrier")
    poll(a, [2])
    sn(a, "B", "p12")
    a("s_branch L_END")
    a("L_EXIT:\ns_endpgm")
    return a

def build(path):
    a = gen()
    _, t1, _ = G1.gen_p1(); _, t2, _ = G1.gen_p2(); T = p3_tables(nyq=False); t3 = table_text('P3_TAB', np.concatenate([T[k].reshape(-1) for k in ('Bre', 'Bim', 'dre', 'dim', 'Tc', 'Ts', 'F0', 'F1')]))
    body, n = a.finish()
    lab = NAME + "_kernel"
    print("instructions:", len(a.lines), "nops inserted:", n, "bytes:", a.nbytes, "lds:", LDS, file=sys.stderr)
    s = HEADER + f"; @launch grid=(512,1,1) block=(512,1,1) lds={LDS}\n" + '.amdgcn_target "amdgcn-amd-amdhsa--gfx950"\n.text\n'
    s += kernel_begin(lab) + "L_CODE:\n" + body + "L_CEND:\n" + '.section .rodata,"a"\n.p2align 6\n' + descriptor(lab, 128) + t1 + t2 + t3 + 'TAB_END:\n'
    open(path, "w").write(s)

if __name__ == "__main__":
    cfg.prio = 0; cfg.prefetch_w = 0
    for o in sys.argv[2:]:
        k, v = o.split("="); setattr(cfg, k, int(v) if v.lstrip("-").isdigit() else v)
    build(sys.argv[1])
```

```python
import sys, numpy as np
from asmgen import *
from tables import *
import gen as G1
from gen import cfg, srd_pre, st, st_begin, end, pad_begin, table_base, lane_base, twiddle, q, p, MF32, MF16, pk1, pk2, cmul_seq, zpow, expand_table
from gen import X1_OFF, XN_OFF, WN_OFF, YN_OFF, UT_OFF, Y1_OFF, AT_OFF

FL_OFF = 0x230000; FL_SET = 0x4000; FL_REP = 1280
EP_OFF = 0x250000
WS_USED = 0xB00000
RS = 544
cfg.psleep = 4
cfg.wsoff = 0
def wsadj(a):
    if cfg.wsoff: a(f"s_add_u32 s12, s12, {cfg.wsoff << 20}\ns_addc_u32 s13, s13, 0")
cfg.gsleep = 1
cfg.afirst = 0
cfg.bfirst = 8
cfg.nrep = 8
cfg.hpoll = 1
cfg.ywait = 1
cfg.aearly = 1
cfg.ypace = 0
cfg.ylate = 0
cfg.wby = 0
cfg.touch = 0
cfg.ftouch = 0
cfg.yfirst = 0
cfg.p2first = 24
cfg.nprio = 1
cfg.apdelay = 0
cfg.hint = 0
cfg.ntx = 0
cfg.ntp = 0
cfg.ntw = 0
cfg.ntt = 0
cfg.hsleep = 6
cfg.ymode = 1
cfg.wpace = 0
cfg.wafter = 0
cfg.ypos = 0
cfg.outsc = 1

B_EX = 8192; B_EXS = 2064; B_UX = B_EX + 4 * B_EXS; B_GW = B_UX + 8192; B_WB = B_GW + 1024; B_GL = B_WB + 8192
B_XB = B_GL + 64; B_YB = B_XB + 8192; B_PS = 2624; B_AB = B_YB + 4 * B_PS
A_TAS = 32 * RS; A_TB = 2 * A_TAS; A_TBS = 21 * RS
A_KS = A_TB + 2 * A_TBS; A_KSS = 4672; E_CH = 64 * 72 + 64
A_KB = 0; K_CS = 4160; K_CH = 4 * K_CS
A_XB = 2 * K_CH; A_WB = A_XB + 8192
A_UB = (A_KS + 2 * A_KSS + 255) // 256 * 256; U_P1 = 1280; U_P2 = 2592; U_CH = 5200
A_CT = A_UB + 2 * U_CH
LDS = A_CT + 16
SPIN = 0x10000

cfg.stB = "karg,rows,stores,drain,p0pass,ystaged"
cfg.stA = "karg,params,expand,pdrain,ustaged,convend"
cfg.ev = ""
def evend(a, role):
    if cfg.ev.startswith(role):
        a(f"s_waitcnt vmcnt(0) lgkmcnt(0)\nLEV{role}:\ns_memrealtime s[86:87]\ns_waitcnt lgkmcnt(0)\ns_sub_u32 s86, s86, s84\ns_cmp_lt_u32 s86, 2000\ns_cbranch_scc1 LEV{role}\ns_endpgm")
def sn(a, role, name):
    if cfg.ev == role + ":" + name: a("s_memrealtime s[84:85]")
    l = (cfg.stB if role == "B" else cfg.stA).split(",")
    if cfg.stamps == 2 and role == "A": return
    if name in l: st(a, l.index(name) + 1)
_u = [0]
def signal(a, fset):
    a(f"s_mov_b64 exec, {(1 << cfg.nrep) - 1}\nv_mul_u32_u24 v60, {FL_REP}, v1\nv_mov_b32 v61, s96\ns_add_u32 s5, s97, {FL_OFF + fset*FL_SET}")
    a("buffer_store_dword v61, v60, s[12:15], s5 offen sc0 sc1\ns_mov_b64 exec, -1")
def arrive(a, fset, n, u, ctr=0):
    a(f"v_mov_b32 v60, {B_GL + 32 + 4*ctr}\nv_mov_b32 v61, 1\ns_mov_b64 exec, 1\nds_add_rtn_u32 v61, v60, v61\ns_waitcnt lgkmcnt(0)\ns_mov_b64 exec, -1")
    a(f"v_readfirstlane_b32 s5, v61\ns_cmp_lg_u32 s5, {n-1}\ns_cbranch_scc1 LARR{u}")
    signal(a, fset)
    a(f"LARR{u}:")
def poll(a, fsets, first=0):
    _u[0] += 1; u = _u[0]
    a(f"s_and_b32 s5, s2, {cfg.nrep - 1}\ns_mul_i32 s5, s5, {FL_REP}\ns_mov_b32 s6, {SPIN}")
    for k, f in enumerate(fsets): a(f"s_add_u32 s{98+k}, s5, {FL_OFF + f*FL_SET}")
    if first: a(f"s_sleep {first}")
    a(f"LPOLL{u}:")
    for k, f in enumerate(fsets): a(f"buffer_load_dwordx4 {q(60+4*k)}, v2, s[12:15], s{98+k} offen sc1")
    a("s_waitcnt vmcnt(0)")
    n = 4 * len(fsets)
    for i in range(n): a(f"v_xor_b32 v{60+i}, s96, v{60+i}")
    for i in range(1, n - 1, 2): a(f"v_or3_b32 v60, v60, v{60+i}, v{61+i}")
    a(f"v_or_b32 v60, v60, v{60+n-1}\nv_cmp_ne_u32 vcc, 0, v60\ns_sub_u32 s6, s6, 1\ns_cbranch_scc1 LPOLX{u}\ns_cbranch_vccz LPOLX{u}")
    a(f"s_sleep {cfg.psleep}\ns_branch LPOLL{u}\nLPOLX{u}:")
def gather(a, loads, checks, issued=False, lsb=False, first=0):
    _u[0] += 1; u = _u[0]
    a(f"s_mov_b32 s6, {SPIN}")
    if first: a(f"s_sleep {first}")
    if issued: a(f"s_branch LGC{u}")
    a(f"LG{u}:")
    for l in loads: a(l)
    a(f"LGC{u}:\ns_waitcnt vmcnt(0)")
    c = list(checks)
    if lsb: a(f"v_or_b32 v60, v{c[0]}, v{c[1]}\nv_and_b32 v60, 1, v60\nv_cmp_eq_u32 vcc, 1, v60")
    else: a((f"v_max_u32 v60, v{c[0]}, v{c[1]}" if len(c) == 2 else f"v_max3_u32 v60, v{c[0]}, v{c[1]}, v{c[2]}") + "\nv_cmp_eq_u32 vcc, -1, v60")
    a(f"s_sub_u32 s6, s6, 1\ns_cbranch_scc1 LGX{u}\ns_and_b64 exec, exec, vcc\ns_cbranch_scc0 LGX{u}")
    if cfg.gsleep: a(f"s_sleep {cfg.gsleep}")
    a(f"s_branch LG{u}\nLGX{u}:\ns_mov_b64 exec, -1")

def gen():
    a = Asm()
    st_begin(a); pad_begin(a, 0)
    sn(a, "B", "start"); sn(a, "A", "start")
    a("s_load_dwordx2 s[12:13], s[0:1], 120\ns_load_dwordx2 s[8:9], s[0:1], 0\ns_load_dwordx2 s[16:17], s[0:1], 96")
    a("s_load_dwordx8 s[32:39], s[0:1], 8\ns_load_dwordx8 s[40:47], s[0:1], 40\ns_load_dwordx4 s[48:51], s[0:1], 80")
    a("v_readfirstlane_b32 s3, v0\nv_and_b32 v1, 63, v0\nv_lshlrev_b32 v2, 4, v1\ns_lshr_b32 s3, s3, 6")
    srd_pre(a, 12, WS_USED)
    a("v_lshrrev_b32 v4, 4, v1\nv_and_b32 v10, 15, v1\ns_and_b32 s97, s2, 0xff\ns_lshl_b32 s97, s97, 2")
    a("s_cmpk_ge_u32 s2, 256\ns_cbranch_scc1 A_IN")
    a("s_cmp_ge_u32 s3, 4\ns_cbranch_scc1 B_PF")
    table_base(a, 20, "P1_TAB")
    for i in range(8): a(f"global_load_dwordx4 {q(16+4*i)}, v2, s[20:21] offset:{1024*i-4096}")
    srd_pre(a, 8, 2097152); srd_pre(a, 16, 1024)
    a("s_and_b32 s60, s2, 7\ns_lshr_b32 s61, s2, 3\ns_lshl_b32 s52, s60, 5\ns_add_u32 s52, s52, s61")
    a("s_lshl_b32 s22, s52, 10\ns_lshl_b32 s23, s3, 19\ns_add_u32 s22, s22, s23\ns_lshl_b32 s24, s3, 11\ns_add_u32 s23, s22, 0x40000")
    a("s_mov_b32 m0, s24")
    a("s_waitcnt lgkmcnt(0)")
    wsadj(a)
    sn(a, "B", "karg")
    NX = " nt" if cfg.ntx & 1 else ""
    a(f"buffer_load_dwordx4 v2, s[8:11], s22 offen{NX} lds\ns_add_u32 m0, s24, 1024\ns_nop 0")
    a(f"buffer_load_dwordx4 v2, s[8:11], s23 offen{NX} lds\ns_mov_b32 m0, {B_GW}\ns_mov_b32 s4, {EP_OFF}")
    a("buffer_load_dwordx4 v2, s[16:19], 0 offen lds\ns_load_dword s96, s[12:13], s4\ns_load_dwordx2 s[8:9], s[0:1], 104")
    FRE, FIM, TC, TS = 112, 116, 120, 124
    a("v_bfe_u32 v3, v1, 1, 3\nv_lshl_add_u32 v5, v4, 9, s52\nv_mul_u32_u24 v5, v3, v5")
    a("v_and_b32 v6, 1, v1\nv_lshl_add_u32 v5, v6, 9, v5\nv_lshl_add_u32 v6, v3, 8, v5")
    a("v_cvt_f32_u32 v5, v5\nv_cvt_f32_u32 v6, v6\nv_mul_f32 v5, 0x3a000000, v5\nv_mul_f32 v6, 0x3a000000, v6")
    a("v_cos_f32 v7, v5\nv_sin_f32 v5, v5\nv_cos_f32 v8, v6\nv_sin_f32 v6, v6")
    a("v_cvt_pk_bf16_f32 v48, v7, v5\nv_cvt_pk_bf16_f32 v49, v8, v6")
    lane_base(a, 103, 1, 10, 11)
    a(f"s_mul_i32 s25, s3, {B_EXS}\ns_add_u32 s25, s25, {B_EX}")
    a("v_lshl_add_u32 v9, v103, 3, s25\nv_cndmask_b32 v50, 0, -1, vcc")
    a("s_mov_b32 s26, 0xffff\ns_cmp_eq_u32 s3, 0\ns_cselect_b32 s26, s26, -1\nv_mov_b32 v11, s26\nv_cndmask_b32 v51, -1, v11, vcc")
    a(f"v_mul_u32_u24 v14, {B_EXS}, v4\ns_lshl_b32 s26, s3, 9\nv_add_u32 v14, {B_EX}, v14\nv_lshl_add_u32 v11, v10, 5, v14\nv_add_u32 v11, s26, v11")
    a("v_lshlrev_b32 v12, 11, v4\nv_lshl_add_u32 v12, v10, 4, v12")
    a("s_lshl_b32 s27, s52, 13\ns_lshl_b32 s26, s3, 8\ns_add_u32 s27, s27, s26")
    a("v_lshl_add_u32 v13, v1, 3, s24\nv_lshlrev_b32 v15, 3, v1")
    a("v_lshlrev_b32 v6, 3, v4")
    a(f"s_lshl_b32 s53, s52, 5\ns_add_u32 s56, s53, {XN_OFF}")
    a("s_waitcnt vmcnt(1) lgkmcnt(0)")
    sn(a, "B", "rows")
    a("ds_read_b64_tr_b16 v[52:53], v13\nds_read_b64_tr_b16 v[54:55], v13 offset:512")
    a("ds_read_b64_tr_b16 v[56:57], v13 offset:1024\nds_read_b64_tr_b16 v[58:59], v13 offset:1536")
    a("s_waitcnt lgkmcnt(2)")
    a(f"{MF32} {q(60)}, {q(52)}, {q(16)}, 0\n{MF32} {q(64)}, {q(52)}, {q(20)}, 0")
    a("s_waitcnt lgkmcnt(0)")
    a(f"{MF32} {q(68)}, {q(56)}, {q(16)}, 0\n{MF32} {q(72)}, {q(56)}, {q(20)}, 0")
    a("s_add_u32 s96, s96, 1")
    for e in range(2):
        re, im = 60 + 8*e, 64 + 8*e
        twiddle(a, re, im, 24, 28, 76, 80)
        B, Bm = (84, 88) if e else (16, 20)
        for r in range(4): a(f"v_cvt_pk_bf16_f32 v{B+r}, v{76+r}, v{80+r}")
        for r in range(4): a(f"v_and_b32 v{Bm+r}, v50, v{B+r}")
        a(f"{MF32} {q(re)}, {q(32)}, {q(B)}, 0\n{MF32} {q(im)}, {q(36)}, {q(B)}, 0")
        a(f"{MF32} {q(re)}, {q(40)}, {q(Bm)}, {q(re)}\n{MF32} {q(im)}, {q(44)}, {q(Bm)}, {q(im)}")
    for e in range(2):
        for r in range(4): a(f"v_cvt_pk_bf16_f32 v{92+2*r+e}, v{60+8*e+r}, v{64+8*e+r}")
    for r in range(4): a(f"ds_write_b64 v9, {p(92+2*r)} offset:{256*r}")
    a("s_waitcnt vmcnt(0) lgkmcnt(0)")
    sn(a, "B", "exch")
    a("s_barrier")
    a("ds_read_b128 v[16:19], v11\nds_read_b128 v[20:23], v11 offset:16\nds_read_b64 v[24:25], v14")
    a(f"ds_read_b64_tr_b16 v[36:37], v15 offset:{B_GW}\nds_read_b64_tr_b16 v[38:39], v15 offset:{B_GW+512}")
    a("s_waitcnt lgkmcnt(4)")
    a("v_and_b32 v16, v51, v16\nv_and_b32 v17, v51, v17")
    a(f"{MF16} {q(64)}, {p(48)}, {p(18)}, 0")
    a("s_waitcnt lgkmcnt(2)")
    a(f"{MF16} {q(60)}, {p(48)}, {p(16)}, 0")
    a("v_lshrrev_b32 v24, 16, v24\nv_lshrrev_b32 v25, 16, v25")
    a(f"{MF16} {q(68)}, {p(48)}, {p(20)}, 0\n{MF16} {q(72)}, {p(48)}, {p(22)}, 0\n{MF16} {q(40)}, {p(48)}, {p(24)}, 0")
    for t in (1, 0, 2, 3):
        a(f"v_cvt_pk_bf16_f32 v{76+t}, v{60+4*t}, v{61+4*t}\nv_cvt_pk_bf16_f32 v{80+t}, v{62+4*t}, v{63+4*t}")
    if cfg.ymode == 0: a("v_or_b32 v76, 1, v76\nv_or_b32 v80, 1, v80")
    a(f"buffer_store_dwordx4 {q(76)}, v12, s[12:15], s27 offen sc1\nbuffer_store_dwordx4 {q(80)}, v12, s[12:15], s27 offen offset:1024 sc1")
    a("v_cvt_pk_bf16_f32 v44, v40, v41\nv_cvt_pk_bf16_f32 v45, v42, v43")
    a("s_cmp_lg_u32 s3, 0\ns_cbranch_scc1 B_NONYQ")
    a("s_mov_b32 exec_lo, 0x10001\ns_mov_b32 exec_hi, 0x10001\nbuffer_store_dwordx2 v[44:45], v6, s[12:15], s56 offen sc1")
    a("s_mov_b64 exec, -1")
    a("B_NONYQ:")
    sn(a, "B", "stores")
    a("s_waitcnt lgkmcnt(0)")
    for i in range(4):
        for e in range(2): a(f"v_dot2_f32_bf16 v{60+e}, v{52+4*e+i}, v{36+i}, " + ("0" if i == 0 else f"v{60+e}"))
    for sh in ("row_shr:1", "row_shr:2", "row_shr:4", "row_shr:8"):
        for e in range(2): a(f"v_add_f32_dpp v{60+e}, v{60+e}, v{60+e} {sh} row_mask:0xf bank_mask:0xf bound_ctrl:0")
    for e in range(2): a(f"v_add_f32_dpp v{60+e}, v{60+e}, v{60+e} row_bcast:15 row_mask:0xa bank_mask:0xf")
    for e in range(2): a(f"v_add_f32_dpp v{60+e}, v{60+e}, v{60+e} row_bcast:31 row_mask:0xc bank_mask:0xf")
    a("v_cvt_pk_bf16_f32 v60, v60, v61\nv_and_b32 v61, 0xffff0000, v60\nv_lshlrev_b32 v60, 16, v60")
    a("v_mul_f32 v60, 0xbfb8aa3b, v60\nv_mul_f32 v61, 0xbfb8aa3b, v61\nv_exp_f32 v60, v60\nv_exp_f32 v61, v61")
    a("v_add_f32 v60, 1.0, v60\nv_add_f32 v61, 1.0, v61\nv_rcp_f32 v60, v60\nv_rcp_f32 v61, v61")
    a(f"s_lshl_b32 s4, s3, 3\ns_add_u32 s4, s4, {B_GL}\nv_mov_b32 v62, s4")
    a("v_cvt_pk_bf16_f32 v60, v60, v61\nv_and_b32 v61, 0xffff0000, v60\nv_lshlrev_b32 v60, 16, v60")
    a("s_mov_b32 exec_lo, 0\ns_mov_b32 exec_hi, 0x80000000\nds_write_b64 v62, v[60:61]\ns_mov_b64 exec, -1")
    a("v_readlane_b32 s40, v60, 63\nv_readlane_b32 s41, v61, 63")
    a("v_lshrrev_b32 v12, 1, v1\nv_and_b32 v13, 1, v1\nv_lshlrev_b32 v13, 4, v13\nv_lshl_add_u32 v104, v12, 16, v13\nv_lshl_add_u32 v12, v12, 13, v13")
    a(f"s_lshl_b32 s4, s3, 19\ns_lshl_b32 s5, s60, 10\ns_add_u32 s4, s4, s5\ns_lshl_b32 s5, s61, 5\ns_add_u32 s22, s4, s5\ns_add_u32 s23, s22, {32*8192}")
    a(f"s_lshl_b32 s63, s60, 5\ns_add_u32 s63, s63, s61\ns_lshl_b32 s63, s63, 13\ns_add_u32 s63, s63, {Y1_OFF}\ns_add_u32 s62, s63, s24")
    a(f"v_add_u32 v13, s24, v2\nv_lshl_add_u32 v7, v4, 6, v10\ns_lshl_b32 s4, s3, 3\nv_lshl_add_u32 v110, v7, 5, s4\nv_add_u32 v111, {B_XB}, v110")
    a(f"s_lshl_b32 s4, s3, 2\ns_add_u32 s4, s4, {B_WB}\nv_lshl_add_u32 v109, v7, 4, s4")
    a("s_mov_b32 s7, 0\ns_lshr_b32 s42, s40, 16\ns_lshr_b32 s43, s41, 16")
    a("s_waitcnt vmcnt(0) lgkmcnt(0)")
    sn(a, "B", "drain")
    arrive(a, 0, 4 + cfg.ymode, 1)
    if cfg.wby:
        a("s_mov_b32 s32, s48\ns_mov_b32 s33, s49\ns_mov_b32 s36, s50\ns_mov_b32 s37, s51")
        srd_pre(a, 32, 2048 * 514); srd_pre(a, 36, 2048 * 514)
        a("s_lshl_b32 s26, s3, 9\ns_add_u32 s26, s26, s60\ns_mul_i32 s26, s26, 514\ns_lshl_b32 s27, s61, 4\ns_add_u32 s26, s26, s27\nv_mul_u32_u24 v14, 4112, v1")
        a(f"s_lshl_b32 s27, s3, 10\ns_add_u32 s27, s27, {B_WB}\ns_mov_b32 m0, s27")
    if cfg.wby == 1:
        a("s_nop 0\nbuffer_load_dwordx4 v14, s[32:35], s26 offen lds\ns_add_u32 m0, s27, 4096\ns_nop 0\nbuffer_load_dwordx4 v14, s[36:39], s26 offen lds")
    if cfg.wby == 2:
        a("buffer_load_dwordx2 v[24:25], v14, s[32:35], s26 offen\nbuffer_load_dwordx2 v[26:27], v14, s[32:35], s26 offen offset:8")
        a("buffer_load_dwordx2 v[28:29], v14, s[36:39], s26 offen\nbuffer_load_dwordx2 v[30:31], v14, s[36:39], s26 offen offset:8\nv_add_u32 v14, s27, v2")
    table_base(a, 20, "P2_TAB")
    for i in range(4): a(f"global_load_dwordx4 {q(112+4*i)}, v2, s[20:21] offset:{1024*i-3072}")
    if cfg.wby == 2: a("s_waitcnt vmcnt(6)\nds_write_b128 v14, v[24:27]\ns_waitcnt vmcnt(4)\nds_write_b128 v14, v[28:31] offset:4096")
    if cfg.wby: a("s_waitcnt vmcnt(0)"); sn(a, "B", "wgot")
    if not cfg.hpoll:
        a("s_cmp_lg_u32 s3, 0\ns_cbranch_scc1 B_S3")
        poll(a, [0], cfg.bfirst)
    a("B_S3:\ns_barrier")
    sn(a, "B", "p0pass")
    a("buffer_load_dwordx4 v[16:19], v12, s[12:15], s22 offen sc1\nbuffer_load_dwordx4 v[20:23], v12, s[12:15], s23 offen sc1")
    a(f"s_waitcnt vmcnt(1)\nds_write_b128 v13, v[16:19] offset:{B_XB}\ns_waitcnt vmcnt(0)\nds_write_b128 v13, v[20:23] offset:{B_XB+1024}")
    a("s_waitcnt lgkmcnt(0)")
    sn(a, "B", "xstaged")
    a("s_barrier")
    if cfg.prio: a("s_setprio 2")
    for j, r in enumerate((72, 76, 74, 78)): a(f"ds_read_b64 {p(r)}, v111 offset:{512*j}")
    a("s_waitcnt lgkmcnt(0)\nB_FFT:\nv_swap_b32 v73, v76\nv_swap_b32 v75, v78")
    col = (72, 76); D = ((16, 20), (24, 28)); T = ((32, 36), (40, 44))
    for c in range(2): a(f"{MF32} {q(D[c][0])}, {q(col[c])}, {q(FRE)}, 0\n{MF32} {q(D[c][1])}, {q(col[c])}, {q(FIM)}, 0")
    for c in range(2):
        twiddle(a, D[c][0], D[c][1], TC, TS, T[c][0], T[c][1], packed=False)
        if c == 1:
            a("s_cmp_lg_u32 s7, 0\ns_cbranch_scc1 B_FW\ns_barrier")
            for arr in range(2):
                for r in (0, 2): a(f"ds_read2st64_b32 {p(80+4*arr+r)}, v109 offset0:{16*arr+r} offset1:{16*arr+r+1}")
            a("B_FW:")
        for r in range(4): a(f"v_cvt_pk_bf16_f32 v{col[c]+r}, v{T[c][0]+r}, v{T[c][1]+r}")
        a(f"{MF32} {q(D[c][0])}, {q(FRE)}, {q(col[c])}, 0\n{MF32} {q(D[c][1])}, {q(FIM)}, {q(col[c])}, 0")
    a("s_waitcnt lgkmcnt(0)")
    for r in range(4): a(f"v_lshlrev_b32 v{48+r}, 16, v{80+r}\nv_lshlrev_b32 v{52+r}, 16, v{84+r}")
    for r in range(4): a(f"v_and_b32 v{56+r}, 0xffff0000, v{80+r}\nv_and_b32 v{60+r}, 0xffff0000, v{84+r}")
    for c in range(2):
        twiddle(a, D[c][0], D[c][1], 48 + 8*c, 52 + 8*c, T[c][0], T[c][1], conj=True, packed=False)
        for r in range(4): a(f"v_cvt_pk_bf16_f32 v{col[c]+r}, v{T[c][1]+r}, v{T[c][0]+r}")
        a(f"{MF32} {q(D[c][0])}, {q(col[c])}, {q(FRE)}, 0\n{MF32} {q(D[c][1])}, {q(col[c])}, {q(FIM)}, 0")
    for c in range(2):
        twiddle(a, D[c][0], D[c][1], TC, TS, T[c][0], T[c][1], packed=False)
        for r in range(4): a(f"v_cvt_pk_bf16_f32 v{col[c]+r}, v{T[c][0]+r}, v{T[c][1]+r}")
        a(f"{MF32} {q(D[c][0])}, {q(FRE)}, {q(col[c])}, 0\n{MF32} {q(D[c][1])}, {q(FIM)}, {q(col[c])}, 0")
    for c in range(2):
        for r in range(4): a(f"v_cvt_pk_bf16_f32 v{48+2*r+c}, v{D[c][1]+r}, v{D[c][0]+r}")
    sn(a, "B", "fftdone")
    a("s_cmp_lg_u32 s7, 0\ns_cbranch_scc1 A_NYS")
    for r in range(4): a(f"ds_write_b64 v111, {p(48+2*r)} offset:{512*r}")
    a("s_waitcnt lgkmcnt(0)\ns_barrier")
    a(f"ds_read_b128 v[64:67], v13 offset:{B_XB}\nds_read_b128 v[68:71], v13 offset:{B_XB+1024}")
    if cfg.ymode == 0:
        a("s_waitcnt lgkmcnt(1)\nv_and_b32 v64, -2, v64\nbuffer_store_dwordx4 v[64:67], v12, s[12:15], s22 offen sc1")
        a("s_waitcnt lgkmcnt(0)\nv_and_b32 v68, -2, v68\nbuffer_store_dwordx4 v[68:71], v12, s[12:15], s23 offen sc1")
    else:
        a("s_waitcnt lgkmcnt(1)\nbuffer_store_dwordx4 v[64:67], v2, s[12:15], s62 offen sc1")
        a("s_waitcnt lgkmcnt(0)\nbuffer_store_dwordx4 v[68:71], v2, s[12:15], s62 offen offset:1024 sc1")
    sn(a, "B", "ystores")
    table_base(a, 20, "P3_TAB")
    for i in range(8): a(f"global_load_dwordx4 {q(16+4*i)}, v2, s[20:21] offset:{1024*i-4096}")
    a(f"v_bfe_u32 v3, v1, 1, 3\nv_lshlrev_b32 v15, 2, v3\nds_read_b32 v14, v15 offset:{B_GL}")
    srd_pre(a, 8, 2097152)
    a("v_lshl_add_u32 v5, v3, 8, s52\nv_mul_u32_u24 v6, v4, v5\nv_and_b32 v7, 1, v1\nv_lshlrev_b32 v7, 8, v7\nv_sub_u32 v6, v7, v6\nv_lshlrev_b32 v6, 1, v6\nv_sub_u32 v5, v6, v5")
    a("v_cvt_f32_i32 v6, v6\nv_cvt_f32_i32 v5, v5\nv_mul_f32 v6, 0x3a000000, v6\nv_mul_f32 v5, 0x3a000000, v5")
    a("v_cos_f32 v7, v6\nv_sin_f32 v6, v6\nv_cos_f32 v8, v5\nv_sin_f32 v5, v5")
    a(f"s_mul_i32 s26, s3, {B_PS}\ns_add_u32 s26, s26, {B_YB}")
    a("v_cmp_eq_u32 vcc, 0, v10\nv_lshl_add_u32 v9, v103, 2, s26\nv_add_u32 v50, 1280, v9\nv_cndmask_b32 v92, 0, -1, vcc\nv_add_u32 v105, s26, v2")
    a("v_lshlrev_b32 v106, 3, v4\ns_lshl_b32 s39, s3, 4")
    a(f"v_mul_u32_u24 v15, {B_PS}, v4\nv_lshl_add_u32 v15, v10, 2, v15\nv_add_u32 v15, {B_YB}, v15\ns_lshl_b32 s31, s3, 6\nv_add_u32 v11, s31, v15")
    a(f"v_lshl_add_u32 v107, v4, 5, v10\nv_lshlrev_b32 v107, 5, v107\ns_lshl_b32 s31, s3, 3\ns_add_u32 s31, s31, {B_AB}\nv_add_u32 v107, s31, v107")
    a("v_lshlrev_b32 v108, 5, v10\nv_lshl_add_u32 v108, v4, 3, v108")
    a("s_lshl_b32 s34, s52, 10\ns_lshl_b32 s35, s3, 19\ns_add_u32 s34, s34, s35\ns_add_u32 s35, s34, 0x40000")
    if cfg.ymode == 0: a(f"s_lshl_b32 s25, s52, 13\ns_add_u32 s24, s24, s25\ns_add_u32 s38, s53, {YN_OFF}")
    else: a(f"s_lshl_b32 s24, s3, 19\ns_add_u32 s24, s24, s53\ns_add_u32 s24, s24, {Y1_OFF}\ns_add_u32 s25, s24, {32*8192}\ns_add_u32 s38, s53, {YN_OFF}")
    a(f"s_and_b32 s27, s3, 1\ns_lshl_b32 s27, s27, 2\ns_lshr_b32 s28, s3, 1\ns_add_u32 s27, s27, s28\ns_lshl_b32 s27, s27, 13\ns_add_u32 s27, s27, s53\ns_add_u32 s27, s27, {AT_OFF}\ns_add_u32 s28, s27, 16384")
    a("s_waitcnt lgkmcnt(0)")
    a("v_sub_f32 v14, 1.0, v14\nv_cvt_pk_bf16_f32 v14, v14, v14\nv_and_b32 v14, 0xffff0000, v14")
    a("v_mul_f32 v7, v14, v7\nv_mul_f32 v6, v14, v6\nv_mul_f32 v8, v14, v8\nv_mul_f32 v5, v14, v5")
    a("v_cvt_pk_bf16_f32 v48, v7, v6\nv_cvt_pk_bf16_f32 v49, v8, v5")
    sn(a, "B", "ysetup")
    if cfg.ywait: a("s_waitcnt vmcnt(0)")
    sn(a, "B", "yack")
    if cfg.ymode == 0: gather(a, ["buffer_load_dwordx4 v[64:67], v2, s[12:15], s24 offen sc1", "buffer_load_dwordx4 v[68:71], v2, s[12:15], s24 offen offset:1024 sc1"], [64, 68], lsb=True, first=cfg.yfirst)
    else: gather(a, ["buffer_load_dwordx4 v[64:67], v12, s[12:15], s24 offen sc1", "buffer_load_dwordx4 v[68:71], v12, s[12:15], s25 offen sc1"], [64, 68], first=cfg.yfirst)
    a("ds_write_b128 v105, v[64:67]\nds_write_b128 v105, v[68:71] offset:1280")
    a("s_waitcnt lgkmcnt(0)")
    sn(a, "B", "ystaged")
    a("s_barrier")
    al = ["buffer_load_dwordx4 v[112:115], v104, s[12:15], s27 offen sc1", "buffer_load_dwordx4 v[116:119], v104, s[12:15], s28 offen sc1",
          "buffer_load_dwordx2 v[120:121], v106, s[12:15], s38 offen sc1"]
    if cfg.hint: cfg.aearly = 0
    if cfg.aearly:
        for l in al: a(l)
    for t in range(4): a(f"ds_read2st64_b32 {p(52+2*t)}, v11 offset0:{t} offset1:{t+5}")
    for t in range(4):
        a(f"s_waitcnt lgkmcnt({3-t})\n{MF16} {q(60+4*t)}, {p(48)}, {p(52+2*t)}, 0")
    for t in range(4):
        a(f"v_cvt_pk_bf16_f32 v{52+2*t}, v{60+4*t}, v{61+4*t}\nv_cvt_pk_bf16_f32 v{53+2*t}, v{62+4*t}, v{63+4*t}")
        a(f"ds_write2st64_b32 v11, v{52+2*t}, v{53+2*t} offset0:{t} offset1:{t+5}")
    a("s_waitcnt lgkmcnt(0)\ns_barrier")
    for e, ad in ((0, 9), (1, 50)):
        a(f"ds_read2_b32 {p(52+8*e)}, v{ad} offset1:32\nds_read2_b32 {p(54+8*e)}, v{ad} offset0:64 offset1:96")
    for e in range(2):
        A, Am = 52 + 8*e, 56 + 8*e
        re, im = 68 + 8*e, 72 + 8*e
        a(f"s_waitcnt lgkmcnt({2-2*e})")
        for r in range(4): a(f"v_and_b32 v{Am+r}, v92, v{A+r}")
        a(f"{MF32} {q(re)}, {q(A)}, {q(16)}, 0\n{MF32} {q(im)}, {q(A)}, {q(20)}, 0")
        a(f"{MF32} {q(re)}, {q(Am)}, {q(24)}, {q(re)}\n{MF32} {q(im)}, {q(Am)}, {q(28)}, {q(im)}")
    for e in range(2):
        re, im = 68 + 8*e, 72 + 8*e
        twiddle(a, re, im, 32, 36, 84, 88, conj=True, packed=False)
        for r in range(4): a(f"v_cvt_pk_bf16_f32 v{52+4*e+r}, v{84+r}, v{88+r}")
        a(f"{MF32} {q(re)}, {q(52+4*e)}, {q(40)}, 0\n{MF32} {q(im)}, {q(52+4*e)}, {q(44)}, 0")
    sn(a, "B", "bdone")
    if cfg.hint: a("s_barrier")
    sn(a, "B", "hpass")
    gather(a, al, [112, 116, 120], issued=cfg.aearly)
    sn(a, "B", "agot")
    a(f"ds_write_b128 v13, v[112:115] offset:{B_AB}\nds_write_b128 v13, v[116:119] offset:{B_AB+1024}")
    a(f"{MF16} {q(28)}, {p(48)}, {p(120)}, 0")
    a("v_mul_f32 v28, 0x35800000, v28\nv_mul_f32 v30, 0x35800000, v30\nv_readlane_b32 s44, v28, s39\nv_readlane_b32 s45, v30, s39")
    for e in range(2):
        for hb in range(2):
            D_ = 68 + 8*e + 4*hb
            a(f"v_add_f32 v{D_}, s{44+e}, v{D_}\nv_subrev_f32 v{D_+1}, s{44+e}, v{D_+1}\nv_add_f32 v{D_+2}, s{44+e}, v{D_+2}\nv_subrev_f32 v{D_+3}, s{44+e}, v{D_+3}")
    a("s_waitcnt lgkmcnt(0)\ns_barrier")
    for i, (hb, e2) in enumerate(((0,0),(0,1),(1,0),(1,1))): a(f"ds_read_b64 {p(96+2*i)}, v107 offset:{4096*e2+512*hb}")
    osc = ("", " sc1", " nt", " sc1 nt", " sc0 sc1")[cfg.outsc]
    for hb in range(2):
        a(f"s_waitcnt lgkmcnt({2-2*hb})")
        for e in range(2):
            D_ = 68 + 8*e + 4*hb
            for e2 in range(2):
                av = 96 + 2*(2*hb + e2) + e
                a(f"v_dot2_f32_bf16 v{D_+2*e2}, v{av}, s{42+e}, v{D_+2*e2}\nv_dot2_f32_bf16 v{D_+2*e2+1}, v{av}, s{40+e}, v{D_+2*e2+1}")
        for e in range(2):
            D_ = 68 + 8*e + 4*hb; o = 60 + 4*e + 2*hb
            a(f"v_cvt_pk_bf16_f32 v{o}, v{D_}, v{D_+1}\nv_cvt_pk_bf16_f32 v{o+1}, v{D_+2}, v{D_+3}")
            a(f"buffer_store_dwordx2 {p(o)}, v108, s[8:11], s{34+e} offen offset:{512*hb}{osc}")
    a("s_or_b32 s4, s2, s3\ns_cmp_lg_u32 s4, 0\ns_cbranch_scc1 L_END0")
    a(f"s_mov_b64 exec, 1\nv_mov_b32 v60, 0\nv_mov_b32 v61, s96\ns_mov_b32 s4, {EP_OFF}\nbuffer_store_dword v61, v60, s[12:15], s4 offen sc1")
    a("L_END0:")
    sn(a, "B", "end")
    evend(a, "B")
    if cfg.padk >= 0 or cfg.stamps == 2: end(a, 0)
    a("L_END:")
    if cfg.stamps == 2: a("s_endpgm")
    else: end(a, 0, pad=False)
    a("A_IN:")
    a("s_cmpk_ge_u32 s2, 512\ns_cbranch_scc1 L_EXIT")
    a("s_sub_u32 s58, s2, 256\ns_and_b32 s27, s3, 1\ns_bfe_u32 s26, s3, 0x10001\ns_lshl_b32 s28, s58, 9\ns_lshl_b32 s29, s26, 8\ns_add_u32 s28, s28, s29\ns_lshl_b32 s29, s27, 7\ns_add_u32 s28, s28, s29")
    a("v_lshl_add_u32 v5, v1, 1, s28\ns_lshl_b32 s29, s58, 2\ns_lshl_b32 s52, s26, 4\ns_sub_u32 s52, 16, s52\nv_mov_b32 v13, 0x3fb8aa3b")
    table_base(a, 20, "P2_TAB")
    a(f"s_mov_b32 s4, {EP_OFF}\ns_lshl_b32 s54, s27, 8\ns_cmp_ge_u32 s3, 4")
    a("s_waitcnt lgkmcnt(0)")
    wsadj(a)
    a("s_cmp_ge_u32 s3, 4")
    sn(a, "A", "karg")
    a("s_load_dword s30, s[44:45], s29\ns_load_dword s31, s[46:47], s29\ns_load_dword s96, s[12:13], s4")
    NP = " nt" if cfg.ntp else ""
    a(f"global_load_ushort v11, v5, s[32:33]{NP}\nglobal_load_ushort v12, v5, s[34:35]{NP}")
    a("s_cbranch_scc0 A_P")
    for i in range(2, 6): a(f"global_load_ushort v{16+i}, v5, s[{32+2*i}:{33+2*i}]{NP}")
    a("A_P:")
    a("v_and_b32 v3, 0xff, v0\nv_lshlrev_b32 v6, 5, v3")
    a(f"s_lshr_b32 s24, s3, 2\ns_mul_i32 s25, s24, {A_KSS}\ns_add_u32 s25, s25, {A_KS}\nv_lshl_add_u32 v126, v3, 4, s25")
    a(f"s_mul_i32 s23, s24, {K_CH}\ns_add_u32 s23, s23, {A_KB + 64}\nv_lshl_add_u32 v127, v3, 4, s23")
    a("s_and_b32 s23, s3, 3\ns_cmp_ge_u32 s23, 1\ns_cselect_b64 s[56:57], -1, 0\ns_cmp_ge_u32 s23, 2\ns_cselect_b64 s[62:63], -1, 0")
    a(f"v_mov_b32 v104, 0\nv_mov_b32 v105, 0\nv_mov_b32 v7, s25\nds_write_b64 v7, v[104:105] offset:8\nv_mov_b32 v7, {A_CT}\nds_write_b64 v7, v[104:105]")
    a(f"s_mul_i32 s22, s27, {U_P1}\ns_mul_i32 s23, s26, {U_P2}\ns_mul_i32 s25, s24, {U_CH}\ns_add_u32 s22, s22, s23\ns_add_u32 s22, s22, s25\ns_add_u32 s22, s22, {A_UB}")
    a(f"v_lshl_add_u32 v7, v1, 2, s22\nds_write_b32 v7, v104\ns_mul_i32 s23, s3, {K_CS}\nv_lshl_add_u32 v113, v10, 2, s23")
    a("s_waitcnt lgkmcnt(0)")
    a("s_lshl_b32 s30, s30, s52\ns_and_b32 s30, s30, 0xffff0000\nv_mul_f32 v14, s30, v13\nv_exp_f32 v14, v14\ns_add_u32 s96, s96, 1")
    a("v_cvt_pk_bf16_f32 v14, v14, v14\nv_and_b32 v14, 0xffff0000, v14\nv_mul_f32 v13, v14, v13\nv_mul_f32 v15, 0.15915494, v14")
    a("s_cmp_ge_u32 s3, 4\ns_cbranch_scc1 A_B")
    a("v_lshrrev_b32 v22, 3, v1\nv_and_b32 v7, 7, v1\nv_lshlrev_b32 v8, 15, v22\nv_lshl_add_u32 v8, v7, 4, v8")
    a(f"s_lshl_b32 s28, s58, 7\ns_lshl_b32 s29, s3, 19\ns_add_u32 s28, s28, s29\ns_add_u32 s28, s28, {UT_OFF}\ns_add_u32 s29, s28, 0x40000")
    a(f"v_and_b32 v9, 1, v7\nv_mul_u32_u24 v9, {U_P2}, v9\nv_bfe_u32 v19, v7, 1, 1\nv_mul_u32_u24 v19, {U_P1}, v19\nv_lshrrev_b32 v7, 2, v7\nv_mul_u32_u24 v7, {U_CH}, v7")
    a(f"v_add3_u32 v9, v9, v19, v7\ns_lshl_b32 s22, s3, 8\ns_add_u32 s22, s22, {A_UB + 256}\nv_lshl_add_u32 v22, v22, 4, s22\nv_add_u32 v119, v22, v9")
    a(f"s_mul_i32 s22, s26, {K_CH}\ns_lshl_b32 s59, s27, 5\ns_add_u32 s22, s22, s59\ns_add_u32 s22, s22, {A_KB + 56}")
    a(f"v_bfe_u32 v18, v1, 2, 2\nv_mul_u32_u24 v18, {K_CS}, v18\nv_and_b32 v17, 3, v1\nv_lshl_add_u32 v18, v17, 3, v18\nv_and_b32 v17, 16, v1\nv_lshlrev_b32 v17, 1, v17\nv_sub_u32 v18, v18, v17\nv_and_b32 v17, 32, v1\nv_lshrrev_b32 v17, 1, v17\nv_sub_u32 v18, v18, v17\nv_add_u32 v112, s22, v18")
    a(f"s_mul_i32 s22, s26, {U_CH}\ns_add_u32 s22, s22, {A_UB}\nv_and_b32 v18, 1, v4\nv_mul_u32_u24 v18, {U_P1}, v18\nv_lshrrev_b32 v17, 5, v1\nv_mul_u32_u24 v17, {U_P2}, v17")
    a("v_lshl_add_u32 v18, v10, 4, v18\nv_add3_u32 v117, v18, v17, s22")
    a(f"s_mul_i32 s22, s26, {E_CH}\ns_add_u32 s22, s22, s59\ns_add_u32 s22, s22, {A_KS}")
    a("v_mul_u32_u24 v18, 72, v10\nv_lshl_add_u32 v18, v4, 3, v18\nv_add_u32 v116, s22, v18")
    a(f"v_and_b32 v20, 62, v0\nv_and_b32 v21, 1, v0\ns_mul_i32 s22, s3, 72\ns_add_u32 s22, s22, {A_KS}")
    a(f"v_mul_u32_u24 v21, {2304+64}, v21\nv_add3_u32 v118, v21, v20, s22\ns_mov_b32 s59, 0x05040100")
    ACC = 80
    a(f"s_mul_i32 s53, s26, {A_TAS}\ns_add_u32 m0, s53, s54")
    a(f"v_lshl_add_u32 v16, s27, 4, v10\nv_mul_u32_u24 v16, {RS}, v16\nv_lshl_add_u32 v16, v4, 4, v16\nv_add_u32 v46, s53, v16")
    a(f"s_mul_i32 s53, s26, {A_TBS}\ns_add_u32 s53, s53, {A_TB}\nv_mul_u32_u24 v16, {RS}, v10\nv_lshl_add_u32 v16, v4, 4, v16\nv_add_u32 v47, s53, v16")
    a("s_lshl_b32 s31, s31, s52\ns_and_b32 s31, s31, 0xffff0000\ns_cmp_eq_u32 s27, 0\ns_cselect_b32 s31, s31, 0")
    a("v_cmp_eq_u32 vcc, 0, v1\nv_mov_b32 v16, s31\nv_mov_b32 v20, 1.0\nv_mov_b32 v21, 0\nv_cndmask_b32 v45, 0, v16, vcc")
    a("s_waitcnt vmcnt(0)")
    sn(a, "A", "params")
    a("global_load_dwordx4 v[120:123], v6, s[20:21] offset:1024\nglobal_load_dwordx2 v[124:125], v6, s[20:21] offset:1040")
    a("global_load_dwordx2 v[114:115], v2, s[20:21] offset:-4096")
    a("v_lshlrev_b32 v11, 16, v11\nv_lshlrev_b32 v12, 16, v12\nv_mul_f32 v11, v13, v11\nv_mul_f32 v12, v15, v12")
    zpow(a, [(22, "0x41000000", 30), (28, "0x42000000", 32)], 11, 12)
    cmul_seq(a, [(24, 22, 22, 30)]); cmul_seq(a, [(26, 24, 22, 30)])
    for it in range(8):
        for c in range(4): a(f"v_cvt_pk_bf16_f32 v{16+c}, v{20+2*c}, v{21+2*c}")
        for c in range(4):
            if it < 7: pk1(a, 20+2*c, 28, 30+2*c)
            a(f"ds_write_addtid_b32 v{16+c} offset:{RS*(4*it+c)}")
        if it < 7:
            for c in range(4): pk2(a, 20+2*c, 20+2*c, 28, 30+2*c)
    sn(a, "A", "tabiss")
    a(f"s_mul_i32 s31, s26, {A_KSS}\ns_add_u32 s31, s31, s54\ns_add_u32 s31, s31, {A_KS + 16}\nv_lshl_add_u32 v16, v4, 6, s31")
    a("s_waitcnt vmcnt(0)\nv_add_u32 v114, v114, v16\nv_add_u32 v115, v115, v16")
    a("s_waitcnt lgkmcnt(0)")
    sn(a, "A", "tables")
    a("s_barrier")
    def rd(ks):
        b = 48 + 12 * (ks % 4)
        a(f"ds_read_b128 {q(b)}, v46 offset:{64*ks}\nds_read_b128 {q(b+4)}, v47 offset:{64*ks}\nds_read_b128 {q(b+8)}, v47 offset:{64*ks + 16*RS}")
    for ks in range(4): rd(ks)
    for ks in range(8):
        b = 48 + 12 * (ks % 4)
        a(f"s_waitcnt lgkmcnt({3 * (min(ks + 3, 7) - ks)})")
        c0 = "0" if ks == 0 else q(16); c1 = "0" if ks == 0 else q(20)
        a(f"{MF32} {q(16)}, {q(b)}, {q(b+4)}, {c0}\n{MF32} {q(20)}, {q(b)}, {q(b+8)}, {c1}")
        if ks + 4 < 8: rd(ks + 4)
    a("v_add_f32 v16, v45, v16")
    for i in range(4): a(f"v_cvt_pk_bf16_f32 v{24+i}, v{16+2*i}, v{17+2*i}")
    for nt in range(2):
        for h in range(2):
            a(f"ds_write_b16 v{114+nt}, v{24+2*nt+h} offset:{32*h}\nds_write_b16_d16_hi v{114+nt}, v{24+2*nt+h} offset:{32*h+16}")
    def expand():
        a("s_waitcnt lgkmcnt(0)")
        sn(a, "A", "staged")
        a("s_barrier")
        a("ds_read_b128 v[16:19], v126 offset:16\nds_read_b64 v[20:21], v126 offset:8\nds_read_b32 v22, v126 offset:32\nds_write_b32 v113, v104")
        a("s_waitcnt lgkmcnt(3)")
        a("v_cndmask_b32 v17, v17, v16, s[56:57]\nv_cndmask_b32 v18, v18, v16, s[62:63]")
        a("v_perm_b32 v24, v16, v16, v122\nv_perm_b32 v25, v18, v17, v123")
        a("s_waitcnt lgkmcnt(1)")
        a("v_perm_b32 v26, v22, v18, v124\nv_perm_b32 v27, v22, v19, v125\nv_perm_b32 v28, v16, v21, v121\nv_perm_b32 v23, v16, v20, v120")
        a("ds_write_b128 v127, v[24:27]")
        a("v_mov_b32 v29, v24\nv_mov_b32 v30, v25\nv_mov_b32 v31, v26")
        a(f"ds_write_b128 v127, v[28:31] offset:{2*K_CS}")
        a("v_alignbit_b32 v32, v24, v28, 16\nv_alignbit_b32 v33, v25, v24, 16\nv_alignbit_b32 v34, v26, v25, 16\nv_alignbit_b32 v35, v27, v26, 16")
        a(f"ds_write_b128 v127, v[32:35] offset:{K_CS}")
        a("v_alignbit_b32 v36, v28, v23, 16\nv_mov_b32 v37, v32\nv_mov_b32 v38, v33\nv_mov_b32 v39, v34")
        a(f"ds_write_b128 v127, v[36:39] offset:{3*K_CS}")
        a(f"s_lshl_b32 s53, s58, 13\ns_add_u32 s53, s53, {AT_OFF}\nv_lshlrev_b32 v126, 4, v0")
    expand()
    sn(a, "A", "expand")
    sn(a, "A", "pdrain")
    a("s_cmp_lg_u32 s3, 0\ns_cbranch_scc1 A_S1")
    poll(a, [3], cfg.afirst)
    a("A_S1:\ns_barrier")
    sn(a, "A", "p0pass")
    a("buffer_load_dwordx4 v[96:99], v8, s[12:15], s28 offen sc1\nbuffer_load_dwordx4 v[100:103], v8, s[12:15], s29 offen sc1")
    a("s_waitcnt vmcnt(1)\nds_write_b128 v119, v[96:99]\ns_waitcnt vmcnt(0)\nds_write_b128 v119, v[100:103] offset:128")
    def ctr_sync(n, u):
        a(f"v_mov_b32 v106, {A_CT}\nv_mov_b32 v107, 1\ns_waitcnt lgkmcnt(0)\ns_mov_b64 exec, 1\nds_add_u32 v106, v107\ns_mov_b64 exec, -1\ns_mov_b32 s6, {SPIN}")
        a(f"A_W{u}:\n" + ("ds_read_b32 v107, v106\ns_waitcnt lgkmcnt(0)" if n == 4 else "ds_read_b64 v[108:109], v106\ns_waitcnt lgkmcnt(0)\nv_add_u32 v107, v108, v109") + f"\nv_readfirstlane_b32 s5, v107\ns_sub_u32 s6, s6, 1\ns_cselect_b32 s5, {n}, s5\ns_cmp_lt_u32 s5, {n}\ns_cbranch_scc1 A_W{u}")
    ctr_sync(4, "U")
    sn(a, "A", "ustaged")
    SET = (16, 48)
    def ldA(s, e, d, half):
        a(f"ds_read_b64_tr_b16 {p(SET[s] + 4*e + 2*half)}, v112 offset:{64*d + 1024*e + (8 if half == 0 else 0)}")
    def ldG(s, c, d): a(f"ds_read_b128 {q(SET[s]+16+4*c)}, v117 offset:{16*(16-d) + 256*c}")
    fresh = set(range(4))
    def mm(s, e, cb):
        c = "0" if cb in fresh else q(ACC+4*cb); fresh.discard(cb)
        a(f"{MF32} {q(ACC+4*cb)}, {q(SET[s]+4*e)}, {q(SET[s]+16+4*(cb-e))}, {c}")
    ldA(0,0,0,0); ldA(0,0,0,1)
    for c in range(4): ldG(0, c, 0)
    for e in range(1, 4): ldA(0,e,0,0); ldA(0,e,0,1)
    W = lambda n: a(f"s_waitcnt lgkmcnt({n})")
    for d in range(16):
        P, Q = d & 1, 1 - (d & 1)
        if d < 15:
            n = d + 1
            W(9 if d == 0 else 6); mm(P,0,0); ldA(Q,0,n,0)
            if d == 0: W(7)
            mm(P,0,1); ldA(Q,0,n,1); ldG(Q,0,n)
            mm(P,0,2); ldG(Q,1,n)
            mm(P,0,3); ldG(Q,2,n)
            W(7); mm(P,1,1); ldG(Q,3,n)
            mm(P,1,2); ldA(Q,1,n,0); ldA(Q,1,n,1)
            mm(P,1,3); ldA(Q,2,n,0)
            mm(P,2,2); ldA(Q,2,n,1)
            mm(P,2,3); ldA(Q,3,n,0)
            W(11); mm(P,3,3); ldA(Q,3,n,1)
        else:
            W(6); mm(P,0,0); mm(P,0,1); mm(P,0,2); mm(P,0,3); W(2); mm(P,1,1); mm(P,1,2); mm(P,1,3)
            mm(P,2,2); mm(P,2,3); W(0); mm(P,3,3)
    sn(a, "A", "convend")
    a("s_add_u32 s55, s53, 4096")
    for cb in range(4):
        a(f"v_cvt_pk_bf16_f32 v{96+2*cb}, v{ACC+4*cb}, v{ACC+4*cb+1}\nv_cvt_pk_bf16_f32 v{97+2*cb}, v{ACC+4*cb+2}, v{ACC+4*cb+3}")
        a(f"ds_write_b64 v116, {p(96+2*cb)} offset:{1152*cb + (64 if cb >= 2 else 0)}")
    ctr_sync(9, "E")
    if cfg.hint:
        a("s_cmp_lg_u32 s3, 0\ns_cbranch_scc1 A_H1")
        signal(a, 2)
        a("A_H1:")
    for j in range(2):
        for i in range(4): a(f"ds_read_u16 v{16+8*j+i}, v118 offset:{288*j + 576*i}\nds_read_u16 v{20+8*j+i}, v118 offset:{288*j + 576*i + E_CH}")
        if j == 0: a("s_waitcnt lgkmcnt(7)")
    for j in range(2):
        for i in range(4): a(f"s_waitcnt lgkmcnt({8*(1-j) + 6-2*i})\nv_perm_b32 v{32+4*j+i}, v{20+8*j+i}, v{16+8*j+i}, s59")
        a(f"buffer_store_dwordx4 {q(32+4*j)}, v126, s[12:15], s{53 + 2*j} offen sc1")
    sn(a, "A", "end")
    evend(a, "A")
    if cfg.stamps == 2: a("s_endpgm")
    else: end(a, 0, pad=False)
    a("A_B:")
    a(f"s_cmp_lg_u32 s58, 0\ns_cbranch_scc1 A_B1\ns_lshl_b32 s22, s3, 11\ns_add_u32 s22, s22, {YN_OFF - 8192}")
    for i in range(4): a(f"v_mov_b32 v{40+i}, -1")
    a("buffer_store_dwordx4 v[40:43], v2, s[12:15], s22 offen sc1\nbuffer_store_dwordx4 v[40:43], v2, s[12:15], s22 offen offset:1024 sc1\nA_B1:")
    a("s_and_b32 s22, s58, 7\ns_lshl_b32 s22, s22, 5\ns_lshr_b32 s23, s58, 3\ns_add_u32 s22, s22, s23\nv_and_b32 v7, 7, v1\nv_lshl_add_u32 v7, s22, 3, v7\nv_mul_u32_u24 v8, 514, v7\nv_lshlrev_b32 v102, 1, v7")
    a(f"s_mul_i32 s53, s26, {A_TBS}\ns_add_u32 s53, s53, s54\ns_add_u32 m0, s53, {A_TB}")
    a("s_waitcnt vmcnt(0)")
    sn(a, "A", "params")
    a("s_cmp_lg_u32 s3, 5\ns_cbranch_scc1 A_B2")
    a("global_load_ushort v100, v8, s[48:49] offset:512\nglobal_load_ushort v101, v8, s[50:51] offset:512\nA_B2:")
    a("global_load_dwordx4 v[120:123], v6, s[20:21] offset:1024\nglobal_load_dwordx2 v[124:125], v6, s[20:21] offset:1040")
    a("v_lshlrev_b32 v11, 16, v11\nv_lshlrev_b32 v12, 16, v12")
    for i in range(2, 6): a(f"v_lshlrev_b32 v{16+i}, 16, v{16+i}")
    a("v_mul_f32 v11, v13, v11\nv_mul_f32 v12, v15, v12")
    a(f"v_pk_mul_f32 {p(18)}, {p(18)}, {p(14)} op_sel_hi:[1,0]")
    zpow(a, [(22, None, 30), (24, "0x43800000", 32)], 11, 12)
    Z1, Z256, Z2, Z4, C0 = 22, 24, 26, 28, 34
    cmul_seq(a, [(C0, 20, 18, 30), (Z2, Z1, Z1, 32)])
    wr = [0]
    def put(row, src):
        t = 60 + (wr[0] % 4); wr[0] += 1
        a(f"v_cvt_pk_bf16_f32 v{t}, v{src}, -v{src+1}\nds_write_addtid_b32 v{t} offset:{RS*row}")
    cmul_seq(a, [(38, C0, Z1, 30), (40, C0, Z256, 32), (36, C0, Z2, 44), (Z4, Z2, Z2, 46)])
    put(0, C0); put(1, 38); put(8, 40); put(2, 36)
    cmul_seq(a, [(42, 40, Z2, 30), (48, 40, Z4, 32), (40, 40, Z256, 44), (38, 38, Z2, 46), (36, 36, Z2, 50)])
    put(9, 42); put(10, 48); put(12, 40); put(3, 38); put(4, 36)
    cmul_seq(a, [(42, 48, Z2, 30), (48, 40, Z4, 32), (40, 40, Z256, 44), (38, 38, Z2, 46), (36, 36, Z2, 50)])
    put(11, 42); put(13, 48); put(14, 40); put(5, 38); put(6, 36)
    cmul_seq(a, [(48, 40, Z4, 32), (40, 40, Z256, 44), (38, 38, Z2, 46), (52, Z256, Z256, 50)])
    put(15, 48); put(16, 40); put(7, 38)
    cmul_seq(a, [(42, 40, Z256, 30), (48, 40, 52, 32)])
    put(17, 42); put(18, 48)
    cmul_seq(a, [(42, 42, 52, 30), (48, 48, 52, 32)])
    put(19, 42); put(20, 48)
    sn(a, "A", "tabiss")
    a("s_waitcnt vmcnt(0) lgkmcnt(0)")
    sn(a, "A", "tables")
    a("s_barrier")
    a("s_cmp_lg_u32 s3, 5\ns_cbranch_scc1 A_B3")
    a(f"s_mov_b64 exec, 0xff\ns_mov_b32 s4, {WN_OFF}\ns_mov_b32 s5, {WN_OFF + 4096}")
    a("buffer_store_short v100, v102, s[12:15], s4 offen sc1\nbuffer_store_short v101, v102, s[12:15], s5 offen sc1\ns_mov_b64 exec, -1\nA_B3:")
    expand()
    sn(a, "A", "expand")
    a("s_cmp_lg_u32 s3, 5\ns_cbranch_scc1 A_B4\ns_waitcnt vmcnt(0)")
    signal(a, 5)
    a("A_B4:")
    a("s_waitcnt lgkmcnt(0)\ns_cmp_eq_u32 s58, 0\ns_cselect_b32 s4, 8, 5\ns_cmp_ge_u32 s3, s4\ns_cbranch_scc1 L_END")
    a("s_barrier\ns_cmp_lg_u32 s3, 4\ns_cbranch_scc1 A_S2")
    if cfg.apdelay: a(f"s_sleep {cfg.apdelay}")
    for i in range(4): a(f"v_mov_b32 v{40+i}, -1")
    a("s_add_u32 s55, s53, 4096")
    for i in range(8): a(f"buffer_store_dwordx4 v[40:43], v2, s[12:15], s{53 + 2*(i//4)} offen offset:{1024*(i%4)} sc1")
    a("s_waitcnt vmcnt(0)")
    sn(a, "A", "pdrain")
    a(f"v_mov_b32 v60, {A_CT + 4}\nv_mov_b32 v61, 1\nds_write_b32 v60, v61")
    if not cfg.hint: signal(a, 2)
    a("s_cmp_lg_u32 s58, 0\ns_cbranch_scc1 L_END")
    a("A_S2:")
    for i in range(4): a(f"global_load_dwordx4 {q(112+4*i)}, v2, s[20:21] offset:{1024*i-3072}")
    a(f"s_sub_u32 s7, s3, 4\nv_lshl_add_u32 v7, v4, 6, v10\ns_lshl_b32 s4, s7, 3\nv_lshl_add_u32 v110, v7, 5, s4\ns_lshl_b32 s4, s7, 2\nv_lshl_add_u32 v109, v7, 4, s4")
    a(f"s_mov_b32 s23, {XN_OFF}\ns_mov_b32 s25, {WN_OFF}\ns_mov_b32 s28, {WN_OFF + 4096}\ns_mov_b32 s63, {YN_OFF}\ns_mov_b32 s7, 1")
    sn(a, "A", "n0")
    poll(a, [0, 5])
    sn(a, "A", "n1")
    for j, r in enumerate((72, 76, 74, 78)): a(f"buffer_load_dwordx2 {p(r)}, v110, s[12:15], s23 offen offset:{512*j} sc1")
    for r in range(4): a(f"buffer_load_dword v{80+r}, v109, s[12:15], s25 offen offset:{256*r} sc1\nbuffer_load_dword v{84+r}, v109, s[12:15], s28 offen offset:{256*r} sc1")
    if cfg.nprio: a("s_setprio 2")
    a("s_waitcnt vmcnt(0)")
    sn(a, "A", "n2")
    a("s_branch B_FFT")
    a("A_NYS:")
    for r in range(4): a(f"buffer_store_dwordx2 {p(48+2*r)}, v110, s[12:15], s63 offen offset:{512*r} sc1")
    a("s_branch L_END")
    a("B_PF:")
    a("s_cmp_ge_u32 s3, 6\ns_cbranch_scc1 L_EXIT")
    a(f"s_and_b32 s60, s2, 7\ns_lshr_b32 s61, s2, 3\ns_mov_b32 s4, {EP_OFF}\ns_cmp_eq_u32 s3, 5\ns_cbranch_scc1 B_H")
    srd_pre(a, 8, 2097152)
    a("s_lshr_b32 s53, s61, 2\ns_lshl_b32 s53, s53, 3\ns_add_u32 s30, s60, s53\ns_and_b32 s31, s61, 3")
    a("v_lshlrev_b32 v6, 4, v10\nv_lshlrev_b32 v5, 5, v4\nv_xor_b32 v6, v5, v6\nv_lshl_add_u32 v6, v4, 10, v6\nv_xor_b32 v5, 128, v6")
    a(f"s_lshl_b32 s54, s30, 15\ns_lshl_b32 s56, s31, 8\ns_add_u32 s55, s54, s56\ns_mov_b32 m0, {B_UX}")
    a("s_waitcnt lgkmcnt(0)")
    wsadj(a)
    sn(a, "B", "karg")
    for e in range(8):
        a(f"buffer_load_dwordx4 v{5 if (e >> 1) & 1 else 6}, s[8:11], s55 offen{" nt" if cfg.ntx & 2 else ""} lds")
        if e < 7: a(f"s_add_u32 m0, m0, 1024\ns_add_u32 s55, s55, 4096")
    a("s_load_dword s96, s[12:13], s4\ns_barrier")
    a("v_bfe_u32 v7, v1, 2, 2\nv_and_b32 v8, 1, v4\nv_lshl_or_b32 v8, v8, 2, v7")
    a("v_lshl_add_u32 v7, v4, 3, v7\nv_lshlrev_b32 v7, 8, v7\nv_lshl_add_u32 v7, v8, 5, v7\nv_and_b32 v8, 3, v1\nv_lshl_add_u32 v48, v8, 3, v7")
    for cg in range(1, 8): a(f"v_xor_b32 v{48+cg}, {32*cg}, v48")
    a("v_lshlrev_b32 v5, 6, v10\nv_lshl_add_u32 v5, v4, 4, v5")
    a(f"s_lshl_b32 s55, s31, 13\ns_add_u32 s54, s54, s55\ns_add_u32 s54, s54, {UT_OFF}\ns_add_u32 s55, s54, 4096")
    a("s_waitcnt vmcnt(0) lgkmcnt(0)")
    sn(a, "B", "rows")
    for cg in range(8):
        a(f"ds_read_b64_tr_b16 {p(16+4*cg)}, v{48+cg} offset:{B_UX}\nds_read_b64_tr_b16 {p(18+4*cg)}, v{48+cg} offset:{B_UX+1024}")
        if cg == 6: a("s_waitcnt lgkmcnt(12)")
    for cg in range(8):
        a(f"s_waitcnt lgkmcnt({14-2*cg})\nbuffer_store_dwordx4 {q(16+4*cg)}, v5, s[12:15], s{54 + cg//4} offen offset:{1024*(cg%4)} sc1")
    a("s_add_u32 s96, s96, 1")
    sn(a, "B", "stores")
    a("s_waitcnt vmcnt(0)")
    sn(a, "B", "drain")
    signal(a, 3)
    a(f"v_mov_b32 v60, {B_GL + 40}\nv_mov_b32 v61, 1\nds_write_b32 v60, v61\ns_waitcnt lgkmcnt(0)\ns_branch L_END")
    a("B_H:")
    table_base(a, 20, "L_CODE"); table_base(a, 24, "P1_TAB")
    a("s_lshl_b32 s26, s61, 10\nv_add_u32 v3, s26, v2")
    a("v_min_u32 v5, L_CEND-L_CODE-16, v3\nglobal_load_dwordx4 v[20:23], v5, s[20:21] offset:-4096")
    a("v_min_u32 v5, TAB_END-P1_TAB-16, v3\nglobal_load_dwordx4 v[24:27], v5, s[24:25] offset:-4096")
    a("s_waitcnt lgkmcnt(0)")
    wsadj(a)
    a("s_load_dword s96, s[12:13], s4")
    a("s_mov_b32 s32, s48\ns_mov_b32 s33, s49\ns_mov_b32 s36, s50\ns_mov_b32 s37, s51")
    srd_pre(a, 32, 2048 * 514); srd_pre(a, 36, 2048 * 514)
    a("s_lshl_b32 s22, s61, 6\ns_add_u32 s22, s22, s60\ns_mul_i32 s22, s22, 514\nv_lshrrev_b32 v5, 3, v1\nv_mul_u32_u24 v5, 4112, v5\nv_and_b32 v6, 7, v1\nv_mul_u32_u24 v6, 73, v6\nv_add_u32 v5, v5, v6")
    def wpre():
        if cfg.prefetch_w: a(f"buffer_load_ubyte v16, v5, s[32:35], s22 offen{' nt' if cfg.ntw else ''}\nbuffer_load_ubyte v17, v5, s[36:39], s22 offen{' nt' if cfg.ntw else ''}")
    if cfg.wpace == 0: wpre()
    a(f"s_mul_i32 s26, s60, 514\ns_lshl_b32 s27, s61, 4\ns_add_u32 s26, s26, s27\nv_mul_u32_u24 v14, 4112, v1\ns_mov_b32 m0, {B_WB}")
    a(f"v_mov_b32 v62, {B_GL + 32}\nv_mov_b32 v64, 0\nv_mov_b32 v65, 0\nv_mov_b32 v66, 0\nds_write_b96 v62, v[64:66]")
    for i in range(4): a(f"v_mov_b32 v{40+i}, -1")
    a(f"s_lshl_b32 s63, s60, 5\ns_add_u32 s63, s63, s61\ns_lshl_b32 s63, s63, 13\ns_add_u32 s62, s63, {Y1_OFF}\ns_add_u32 s63, s62, 4096")
    def ypoison():
        for i in range(8): a(f"buffer_store_dwordx4 v[40:43], v2, s[12:15], s{62 + i//4} offen offset:{1024*(i%4)} sc1")
    if cfg.ymode and cfg.ypos == 2: ypoison()
    a("s_waitcnt lgkmcnt(0)\ns_add_u32 s96, s96, 1")
    if cfg.ymode and cfg.ypos == 0: ypoison()
    if cfg.ymode and cfg.ypos == 3:
        a("s_waitcnt vmcnt(0)"); ypoison()
    a("s_barrier")
    if cfg.ymode:
        if cfg.ypos == 1: ypoison()
        a("s_waitcnt vmcnt(0)")
        sn(a, "B", "poison")
        arrive(a, 0, 5, 2)
    a(f"s_mov_b32 s6, {SPIN}\nB_HW:\nds_read_b96 v[64:66], v62\ns_waitcnt lgkmcnt(0)\nv_add_u32 v64, v64, v66\nv_readfirstlane_b32 s5, v64\ns_sub_u32 s6, s6, 1\ns_cselect_b32 s5, 9, s5")
    a(f"s_cmp_ge_u32 s5, {5 + cfg.ymode}\ns_cbranch_scc1 B_HX\ns_sleep 2\ns_branch B_HW\nB_HX:")
    def wdma():
        for w in range(4):
            a(f"buffer_load_dwordx4 v14, s[32:35], s26 offen lds\ns_add_u32 m0, m0, 4096\ns_nop 0\nbuffer_load_dwordx4 v14, s[36:39], s26 offen lds")
            if w < 3: a(f"s_sub_u32 m0, m0, 3072\ns_add_u32 s26, s26, {512*514}")
    if not cfg.wafter:
        wdma()
        a("s_waitcnt vmcnt(0)")
        sn(a, "B", "wgot")
    poll(a, [0], cfg.bfirst)
    sn(a, "B", "hp0")
    a("s_barrier")
    if cfg.wafter:
        a("s_sleep 2"); wdma()
    a("s_barrier\ns_waitcnt vmcnt(0)\ns_barrier\ns_barrier")
    if cfg.hint:
        a("s_barrier\ns_barrier")
        ps = cfg.psleep; cfg.psleep = cfg.hsleep
        poll(a, [2], cfg.p2first)
        cfg.psleep = ps
    else: poll(a, [2], cfg.p2first)
    sn(a, "B", "p12")
    a("s_branch L_END")
    a("L_EXIT:\ns_endpgm")
    return a

def build(path):
    a = gen()
    _, t1, _ = G1.gen_p1(); _, t2, _ = G1.gen_p2(); T = p3_tables(nyq=False); t3 = table_text('P3_TAB', np.concatenate([T[k].reshape(-1) for k in ('Bre', 'Bim', 'dre', 'dim', 'Tc', 'Ts', 'F0', 'F1')]))
    body, n = a.finish()
    lab = NAME + "_kernel"
    print("instructions:", len(a.lines), "nops inserted:", n, "bytes:", a.nbytes, "lds:", LDS, file=sys.stderr)
    s = HEADER + f"; @launch grid=(512,1,1) block=(512,1,1) lds={LDS}\n" + '.amdgcn_target "amdgcn-amd-amdhsa--gfx950"\n.text\n'
    s += kernel_begin(lab) + "L_CODE:\n" + body + "L_CEND:\n" + '.section .rodata,"a"\n.p2align 6\n' + descriptor(lab, 128) + t1 + t2 + t3 + 'TAB_END:\n'
    open(path, "w").write(s)

if __name__ == "__main__":
    cfg.prio = 0; cfg.prefetch_w = 3
    for o in sys.argv[2:]:
        k, v = o.split("="); setattr(cfg, k, int(v) if v.lstrip("-").isdigit() else v)
    build(sys.argv[1])
```
